```python
import torch

def _softmax(x, axis=-1):
    return torch.softmax(x, dim=axis)
def _gelu(x):
    return torch.nn.functional.gelu(x, approximate="tanh")
def _silu(x):
    return torch.nn.functional.silu(x)
def _sigmoid(x):
    return torch.sigmoid(x)
def _layernorm(x, axis=-1, eps=1e-5):
    m = x.mean(dim=axis, keepdim=True)
    v = x.var(dim=axis, keepdim=True, unbiased=False)
    return (x - m) / torch.sqrt(v + eps)
def _scatter_add(tgt, idx, src, axis=0):
    return tgt.clone().index_add_(axis, idx, src)
def _segment_sum(src, seg, n):
    out = torch.zeros((n,) + src.shape[1:], dtype=src.dtype)
    return out.index_add_(0, seg, src)
def _pad(x, pw):
    flat = tuple(v for pair in reversed(pw) for v in pair)
    return torch.nn.functional.pad(x, flat)

kernel_name = 'parallel_sum__sliding_block_cached__geglu_ffn__decode'

def setup_inputs():

    _w = (lambda a: (lambda t: t.to(torch.bfloat16) if t.is_floating_point() else t)(torch.as_tensor(a)))
    def _A_setup():
        B, Sq, D = 1, 1, 512
        Hq, Hkv, Sk, Dh = 32, 8, 65536, 128
        assert Hq % Hkv == 0, (Hq, Hkv)
        return {
            "x": _w((lambda *s: torch.randn(*s, dtype=torch.bfloat16) * 0.05)(B, Sq, D)),
            "k_cache": _w((lambda *s: torch.randn(*s, dtype=torch.bfloat16) * 3.2)(B, Hkv, Sk, Dh)),
            "v_cache": _w((lambda *s: torch.randn(*s, dtype=torch.bfloat16) * 1.6)(B, Hkv, Sk, Dh)),
            "wq": _w((lambda *s: torch.randn(*s, dtype=torch.bfloat16) * 3.2)(D, Hq * Dh) * (D ** -0.5)),
            "wo": _w((lambda *s: torch.randn(*s, dtype=torch.bfloat16) * 1.6)(Hq * Dh, D) * ((Hq * Dh) ** -0.5)),
        }
    _A_in = _A_setup()

    def _B_setup():
        B, S, D, F = 1, 1, 512, 1792
        return {
            "x": _w((lambda *s: torch.randn(*s, dtype=torch.bfloat16) * 0.05)(B, S, D)),
            "w_gate": _w((lambda *s: torch.randn(*s, dtype=torch.bfloat16) * 0.05)(D, F)),
            "w_up": _w((lambda *s: torch.randn(*s, dtype=torch.bfloat16) * 0.05)(D, F)),
            "w_down": _w((lambda *s: torch.randn(*s, dtype=torch.bfloat16) * 0.05)(F, D)),
        }
    _B_in = _B_setup()

    return {
        "A_x": _A_in["x"],
        "A_k_cache": _A_in["k_cache"],
        "A_v_cache": _A_in["v_cache"],
        "A_wq": _A_in["wq"],
        "A_wo": _A_in["wo"],
        "B_x": _B_in["x"],
        "B_w_gate": _B_in["w_gate"],
        "B_w_up": _B_in["w_up"],
        "B_w_down": _B_in["w_down"],
    }

def reference(A_x, A_k_cache, A_v_cache, A_wq, A_wo, B_x, B_w_gate, B_w_up, B_w_down):
    def _A_ref(x, k_cache, v_cache, wq, wo):
        B, Sq, D = x.shape
        Hq, Dh = 32, 128
        Hkv, Sk = k_cache.shape[1], k_cache.shape[2]
        W = min(4096, max(256, Sk // 4))
        rep = Hq // Hkv
        q = (lambda x, *d: x.permute(*d))((x @ wq).reshape(B, Sq, Hq, Dh), 0, 2, 1, 3)
        k = (lambda x, n, axis: torch.repeat_interleave(x, n, dim=axis))(k_cache[:, :, Sk - W:, :], rep, axis=1)
        v = (lambda x, n, axis: torch.repeat_interleave(x, n, dim=axis))(v_cache[:, :, Sk - W:, :], rep, axis=1)
        scores = torch.einsum("bhqd,bhkd->bhqk", q, k) * (Dh ** -0.5)
        p = _softmax(scores, axis=-1)
        o = torch.einsum("bhqk,bhkd->bhqd", p, v)
        return (lambda x, *d: x.permute(*d))(o, 0, 2, 1, 3).reshape(B, Sq, Hq * Dh) @ wo

    def _B_ref(x, w_gate, w_up, w_down):
        return (_gelu(x @ w_gate) * (x @ w_up)) @ w_down

    x = A_x
    xn = _layernorm(x, axis=-1)
    return x + _A_ref(xn, A_k_cache, A_v_cache, A_wq, A_wo) + _B_ref(xn, B_w_gate, B_w_up, B_w_down)
```

```python
import sys, struct, math
NAME = "parallel_sum__sliding_block_cached__geglu_ffn__decode"
STAMP_OFF = 0x10000000

def f32(x): return struct.unpack("<I", struct.pack("<f", x))[0]
def hx(x): return "0x%08x" % (x & 0xffffffff)

class Gen:
    def __init__(self, opts):
        self.L = []; self.o = opts; self.vm = []; self.nst = 0
    def __call__(self, s):
        for l in s.strip("\n").split("\n"):
            l = l.strip()
            if not l: continue
            self.L.append(l if l.endswith(":") else "    " + l)
    def vmem(self, name, s):
        self(s); self.vm.append(name)
    def wait(self, name):
        idx = max(i for i, n in enumerate(self.vm) if n == name)
        n = len(self.vm) - 1 - idx
        assert n <= 63
        self(f"s_waitcnt vmcnt({n})")
    def stamp(self, label=""):
        if not self.o.get("stamps"): return
        i = self.nst; self.nst += 1
        assert i < 19
        self(f"s_memrealtime s[{64+2*i}:{65+2*i}]")
        self.o.setdefault("stamp_names", []).append(label)

QB = 0x1000; MLB = 0x8000; SB = 0x10000; WS_SIZE = SB + 256*4096
L_WQ = 0x0000; L_GU = 0x4000; GU_W = 4352; UPOFF = 2048+128
L_XN = 0x8800; L_QP = 0x8C00; L_GP = 0x8D00; L_M = 0x8E00; L_L = 0x8E40; L_YP = 0x8F00
L_Q = 0x9000; QSTR = 272
L_O = 0x9800; OSTR = 272
LDS_BYTES = 98304
SPIN = 200000

def build(opts):
    a = Gen(opts)
    NT = " nt"
    NTS = " nt" if opts.get("nt_shared", 1) else ""
    X, K, V, WQ, WO, G, U, D, OUT, WS = 4, 8, 12, 16, 20, 24, 28, 32, 36, 40
    srd = lambda r: f"s[{r}:{r+3}]"
    a.stamp("start")
    if opts.get("stamps"):
        for i in range(1, 19): a(f"s_mov_b64 s[{64+2*i}:{65+2*i}], 0")
    a(f"""
    s_cmp_ge_u32 s2, 256
    s_cbranch_scc1 L_end
    s_load_dwordx2 s[{X}:{X+1}], s[0:1], 0
    s_load_dwordx2 s[{WQ}:{WQ+1}], s[0:1], 24
    s_load_dwordx2 s[{K}:{K+1}], s[0:1], 8
    s_load_dwordx2 s[{WS}:{WS+1}], s[0:1], 88
    s_load_dwordx2 s[{V}:{V+1}], s[0:1], 16
    s_getpc_b64 s[58:59]
L_pc:
    v_lshrrev_b32 v2, 6, v0
    v_and_b32 v1, 63, v0
    v_readfirstlane_b32 s3, v2
    s_and_b32 s44, s2, 7
    s_lshr_b32 s45, s2, 3
    s_mov_b32 s{X+2}, 1024
    s_mov_b32 s{X+3}, 0x20000
    s_mov_b32 s{WQ+2}, {512*4096*2}
    s_mov_b32 s{WQ+3}, 0x20000
    s_mov_b32 s{K+2}, {8*65536*256}
    s_mov_b32 s{K+3}, 0x20000
    s_mov_b32 s{WS+2}, {WS_SIZE}
    s_mov_b32 s{WS+3}, 0x20000
    s_mov_b32 s{V+2}, {8*65536*256}
    s_mov_b32 s{V+3}, 0x20000
    v_lshlrev_b32 v2, 4, v1
    v_and_b32 v3, 0x18, v1
    v_lshrrev_b32 v8, 5, v1
    v_lshl_add_u32 v3, v8, 2, v3
    v_bfe_u32 v8, v1, 1, 2
    v_add_u32 v3, v3, v8
    v_lshlrev_b32 v3, 13, v3
    v_and_b32 v8, 1, v1
    v_lshl_add_u32 v3, v8, 4, v3
    v_and_b32 v9, 15, v1                    ; v9 = lane&15
    v_lshrrev_b32 v10, 4, v1                ; v10 = lane>>4
    v_lshlrev_b32 v4, 8, v9
    v_lshl_add_u32 v4, v10, 4, v4
    v_lshlrev_b32 v5, 4, v9
    v_lshl_add_u32 v5, v10, 10, v5
    ; p = g*32+j in s46
    s_lshl_b32 s46, s44, 5
    s_add_u32 s46, s46, s45
    s_lshl_b32 s48, s3, 20
    s_lshl_b32 s49, s46, 5
    s_add_u32 s48, s48, s49
    ; K soffset s50 = g<<24 + (61440+128j+32w)*256
    s_lshl_b32 s50, s44, 24
    s_lshl_b32 s49, s45, 15
    s_add_u32 s50, s50, s49
    s_lshl_b32 s49, s3, 13
    s_add_u32 s50, s50, s49
    s_add_u32 s50, s50, {61440*256}
    s_add_u32 s51, s50, 4096
    s_lshl_b32 s52, s46, 12
    s_add_u32 s52, s52, {SB}
    s_lshl_b32 s53, s46, 6
    s_add_u32 s53, s53, {MLB}
    v_lshlrev_b32 v11, 4, v0                ; tid*16
    v_lshlrev_b32 v12, 5, v0
    v_min_u32 v12, L_end-L_pc, v12
    v_mov_b32 v36, -1
    v_mov_b32 v37, -1
    v_mov_b32 v38, -1
    v_mov_b32 v39, -1
    v_and_b32 v13, 1, v1
    v_lshlrev_b32 v13, 4, v13
    s_lshl_b32 s49, s3, 12
    s_mov_b32 m0, s49                       ; L_WQ + w*4096
    s_waitcnt lgkmcnt(0)
    """)
    a.stamp("karg")
    a.vmem("x", f"buffer_load_dwordx4 v[16:19], v2, {srd(X)}, 0 offen")
    if opts.get("codepf", 1):
        a.vmem("pf", f"global_load_dword v14, v12, s[58:59]")
    for i in range(4):
        a.vmem(f"wq{i}", f"buffer_load_dwordx4 v3, {srd(WQ)}, s48 offen{NTS} lds")
        if i < 3:
            a(f"s_add_u32 s48, s48, {32*8192}\ns_add_u32 m0, m0, 1024")
    a.vmem("clr", f"buffer_store_dwordx4 v[36:39], v11, {srd(WS)}, s52 offen sc1")
    a("s_mov_b64 exec, 3")
    a.vmem("clr2", f"buffer_store_dwordx4 v[36:39], v13, {srd(WS)}, s53 offen sc1")
    a("s_mov_b64 exec, -1")
    for t in range(2):
        for s in range(4):
            r = 40 + 16*t + 4*s
            a.vmem(f"K{t}{s}", f"buffer_load_dwordx4 v[{r}:{r+3}], v4, {srd(K)}, s{50+t} offen offset:{64*s}{NT}")
    a(f"""
    s_load_dword s47, s[{WS}:{WS+1}], 0      ; epoch
    s_load_dwordx2 s[{WO}:{WO+1}], s[0:1], 32
    s_load_dwordx2 s[{G}:{G+1}], s[0:1], 48
    s_load_dwordx2 s[{U}:{U+1}], s[0:1], 56
    s_load_dwordx2 s[{D}:{D+1}], s[0:1], 64
    s_load_dwordx2 s[{OUT}:{OUT+1}], s[0:1], 72
    s_mov_b32 s{WO+2}, {4096*512*2}
    s_mov_b32 s{WO+3}, 0x20000
    s_mov_b32 s{G+2}, {512*1792*2}
    s_mov_b32 s{G+3}, 0x20000
    s_mov_b32 s{U+2}, {512*1792*2}
    s_mov_b32 s{U+3}, 0x20000
    s_mov_b32 s{D+2}, {512*1792*2}
    s_mov_b32 s{D+3}, 0x20000
    s_mov_b32 s{OUT+2}, 1024
    s_mov_b32 s{OUT+3}, 0x20000
    v_lshlrev_b32 v7, 4, v9
    v_lshl_add_u32 v6, v10, 13, v7
    v_lshl_add_u32 v7, v10, 11, v7
    v_and_b32 v15, 0x23, v1
    v_bfe_u32 v8, v1, 2, 2
    v_lshl_add_u32 v15, v8, 3, v15
    v_bfe_u32 v8, v1, 4, 1
    v_lshl_add_u32 v15, v8, 2, v15
    v_mul_u32_u24 v15, 3584, v15
    s_lshr_b32 s49, s45, 2
    s_and_b32 s49, s49, 3
    s_lshl_b32 s54, s44, 2
    s_add_u32 s54, s54, s49
    s_lshl_b32 s54, s54, 7
    s_lshr_b32 s49, s45, 4
    s_lshl_b32 s49, s49, 2
    s_add_u32 s54, s54, s49
    s_and_b32 s49, s45, 3
    s_add_u32 s54, s54, s49
    s_lshl_b32 s54, s54, 10
    s_lshl_b32 s49, s3, 8
    s_add_u32 s54, s54, s49
    s_lshr_b32 s55, s45, 3
    s_lshl_b32 s55, s55, 3
    s_add_u32 s55, s55, s44
    s_cmp_lt_u32 s55, 28
    s_cselect_b32 s57, -1, 0
    s_cselect_b32 s56, 0, 8
    s_sub_u32 s55, s55, s56
    s_lshl_b32 s55, s55, 6
    s_and_b32 s56, s45, 7
    s_lshl_b32 s56, s56, 3
    s_add_u32 s55, s55, s56                 ; f0
    s_lshl_b32 s56, s55, 10
    s_add_u32 s56, s56, s49
    s_lshl_b32 s55, s55, 1
    s_mul_i32 s49, s3, {128*3584}
    s_add_u32 s55, s55, s49
    """)
    def allred(op, t, t2):
        for r in (1, 2, 4, 8):
            a(f"s_nop 1\nv_{op}_f32_dpp v{t}, v{t}, v{t} row_ror:{r} row_mask:0xf bank_mask:0xf")
        for sw in (16, 32):
            a(f"v_mov_b32 v{t2}, v{t}\ns_nop 1\nv_permlane{sw}_swap_b32 v{t}, v{t2}\nv_{op}_f32 v{t}, v{t}, v{t2}")
    a.wait("x")
    a.stamp("x")
    xs = list(range(20, 28))
    for i in range(4):
        a(f"v_lshlrev_b32 v{xs[2*i]}, 16, v{16+i}\nv_and_b32 v{xs[2*i+1]}, 0xffff0000, v{16+i}")
    a("""
    v_add_f32 v28, v20, v21
    v_add_f32 v29, v22, v23
    v_add_f32 v30, v24, v25
    v_add_f32 v31, v26, v27
    v_add_f32 v28, v28, v29
    v_add_f32 v30, v30, v31
    v_add_f32 v28, v28, v30
    """)
    allred("add", 28, 29)
    a(f"v_mul_f32 v28, {hx(f32(1/512))}, v28")
    a("v_sub_f32 v30, v20, v28\nv_mul_f32 v29, v30, v30")
    for i in range(1, 8):
        a(f"v_sub_f32 v30, v{xs[i]}, v28\nv_fmac_f32 v29, v30, v30")
    allred("add", 29, 30)
    a(f"""
    v_mul_f32 v29, {hx(f32(1/512))}, v29
    v_cvt_pk_bf16_f32 v28, 0, v28
    v_cvt_pk_bf16_f32 v29, 0, v29
    v_add_f32 v29, {hx(f32(1e-5))}, v29
    v_cvt_pk_bf16_f32 v29, 0, v29
    v_sqrt_f32 v29, v29
    s_nop 0
    v_cvt_pk_bf16_f32 v29, 0, v29
    v_rcp_f32 v30, v29
    """)
    for i in range(8):
        a(f"v_sub_f32 v{xs[i]}, v{xs[i]}, v28\nv_cvt_pk_bf16_f32 v{xs[i]}, 0, v{xs[i]}")
    for i in range(8):
        a(f"v_mul_f32 v31, v{xs[i]}, v30\nv_fma_f32 v32, -v31, v29, v{xs[i]}\nv_fma_f32 v{xs[i]}, v32, v30, v31")
    for i in range(4):
        a(f"v_cvt_pk_bf16_f32 v{16+i}, v{xs[2*i]}, v{xs[2*i+1]}")
    a(f"""
    ds_write_b128 v2, v[16:19] offset:{L_XN}
    s_lshl_b32 s49, s3, 8
    v_lshl_add_u32 v8, v10, 4, s49          ; 256w + 16jj
    s_lshl_b32 s49, s3, 12
    v_lshl_add_u32 v12, v1, 3, s49
    s_waitcnt lgkmcnt(0)
    """)
    for i in range(4):
        a(f"ds_read_b128 v[{20+4*i}:{23+4*i}], v8 offset:{L_XN+64*i}")
    a(f"""
    s_mul_i32 s47, s47, 0x9E3779B1
    s_add_u32 s47, s47, 0x7F4A7C15
    s_mul_i32 s60, s47, 0x85EBCA6B
    s_xor_b32 s60, s60, 0x5bd1e995          ; tagB
    """)
    for i in range(4):
        a.wait(f"wq{i}")
        a(f"ds_read_b64_tr_b16 v[{192+4*i}:{193+4*i}], v12 offset:{L_WQ+1024*i}")
        a(f"ds_read_b64_tr_b16 v[{194+4*i}:{195+4*i}], v12 offset:{L_WQ+1024*i+512}")
    a.stamp("wq")
    for i in range(4):
        a(f"s_waitcnt lgkmcnt({0 if opts.get('stamps') else 6-2*i})")
        a(f"v_mfma_f32_16x16x32_bf16 v[208:211], v[{20+4*i}:{23+4*i}], v[{192+4*i}:{195+4*i}], {'0' if i==0 else 'v[208:211]'}")
    a(f"""
    s_lshl_b32 s49, s3, 2
    v_lshl_add_u32 v13, v9, 4, s49          ; col*16 + w*4
    s_nop 6
    ds_write_b32 v13, v208 offset:{L_QP}
    """)
    a.wait("clr2")
    a("s_waitcnt lgkmcnt(0)\ns_barrier")
    a.stamp("B1")
    a(f"""
    s_cmp_lg_u32 s3, 0
    s_cbranch_scc1 L_nopub
    v_lshlrev_b32 v14, 4, v9
    ds_read_b128 v[208:211], v14 offset:{L_QP}
    v_mov_b32 v213, s47
    v_mov_b32 v215, s60
    s_lshl_b32 s49, s46, 6
    s_add_u32 s49, s49, {QB}
    v_lshlrev_b32 v14, 2, v9
    s_waitcnt lgkmcnt(0)
    v_add_f32 v208, v208, v209
    v_add_f32 v210, v210, v211
    v_add_f32 v208, v208, v210
    s_nop 1
    v_mov_b32_dpp v209, v208 quad_perm:[1,1,1,1] row_mask:0xf bank_mask:0xf
    v_mov_b32_dpp v210, v208 quad_perm:[2,2,2,2] row_mask:0xf bank_mask:0xf
    v_mov_b32_dpp v211, v208 quad_perm:[3,3,3,3] row_mask:0xf bank_mask:0xf
    v_cvt_pk_bf16_f32 v212, v208, v209
    v_cvt_pk_bf16_f32 v214, v210, v211
    s_mov_b64 exec, 0x1111
    buffer_store_dwordx4 v[212:215], v14, {srd(WS)}, s49 offen sc1
    s_mov_b64 exec, -1
L_nopub:
    """)
    a.stamp("pubq")
    for t in range(8):
        r = 72 + 4*t
        a.vmem(f"V{t}", f"buffer_load_dwordx4 v[{r}:{r+3}], v5, {srd(V)}, s{50+(t>>2)} offen offset:{256*(t&3)}{NT}")
    a(f"""
    s_lshl_b32 s61, s44, 11
    s_lshl_b32 s49, s3, 9
    s_add_u32 s61, s61, s49
    s_add_u32 s61, s61, {QB}
    s_mov_b64 exec, 0xffffffff
    """)
    a.vmem("pq", f"buffer_load_dwordx4 v[212:215], v2, {srd(WS)}, s61 offen sc1")
    a("s_mov_b64 exec, -1")
    a.stamp("pollq_iss")
    for t in range(4):
        r = 136 + 4*t
        a.vmem(f"wo{t}", f"buffer_load_dwordx4 v[{r}:{r+3}], v6, {srd(WO)}, s54 offen{NT}")
        if t < 3: a("s_add_u32 s54, s54, 32768")
    a(f"s_mul_i32 s49, s3, {GU_W}\ns_add_u32 s62, s49, {L_GU}")
    for i in range(2):
        a(f"s_add_u32 m0, s62, {1024*i}\ns_nop 0")
        a.vmem(f"g{i}", f"buffer_load_dwordx4 v15, {srd(G)}, s55 offen{NTS} lds")
        a(f"s_add_u32 m0, s62, {UPOFF+1024*i}\ns_nop 0")
        a.vmem(f"u{i}", f"buffer_load_dwordx4 v15, {srd(U)}, s55 offen{NTS} lds")
        if i == 0: a(f"s_add_u32 s55, s55, {64*3584}")
    for t in range(2):
        r = 152 + 4*t
        a.vmem(f"wd{t}", f"buffer_load_dwordx4 v[{r}:{r+3}], v7, {srd(D)}, s56 offen offset:{1024*t}{NT}")
    a.stamp("iss_done")
    a(f"""
    s_mov_b32 s48, 0x05040100
    s_mov_b32 s49, 0x07060302
    v_mov_b32 v240, 0x3f803f80
    v_mov_b32 v241, 0x3f803f80
    v_mov_b32 v242, 0x3f803f80
    v_mov_b32 v243, 0x3f803f80
    """)
    for r in range(216, 232): a(f"v_mov_b32 v{r}, 0")
    a(f"""
    s_mul_i32 s63, s3, {QSTR}
    s_add_u32 s63, s63, {L_Q}
    v_lshl_add_u32 v13, v1, 3, s63
    v_and_b32 v14, 3, v1
    v_mul_u32_u24 v14, {QSTR}, v14
    v_lshl_add_u32 v14, v10, 4, v14
    """)
    for tp in range(4):
        a.wait(f"V{2*tp+1}")
        for d in range(4):
            lo = 72 + 8*tp + d; hi = lo + 4
            a(f"v_perm_b32 v{104+4*(2*d)+tp}, v{hi}, v{lo}, s48")
            a(f"v_perm_b32 v{104+4*(2*d+1)+tp}, v{hi}, v{lo}, s49")
    a.stamp("V")
    a.wait("pq")
    a(f"""
    s_mov_b32 s63, {SPIN}
    s_mov_b64 exec, 0xffffffff
L_pq:
    v_cmp_ne_u32 vcc, s47, v213
    v_cmp_ne_u32 s[58:59], s60, v215
    s_or_b64 vcc, vcc, s[58:59]
    s_cbranch_vccz L_pq_ok
    s_sub_u32 s63, s63, 1
    s_cbranch_scc1 L_pq_ok
    buffer_load_dwordx4 v[212:215], v2, {srd(WS)}, s61 offen sc1
    s_waitcnt vmcnt(0)
    s_branch L_pq
L_pq_ok:
    ds_write2_b32 v13, v212, v214 offset0:0 offset1:1
    s_mov_b64 exec, -1
    """)
    a.stamp("q_ok")
    a("s_waitcnt lgkmcnt(0)\ns_barrier")
    for s in range(4):
        a(f"ds_read_b128 v[{192+4*s}:{195+4*s}], v14 offset:{L_Q+64*s}")
    for s in range(4):
        a(f"s_waitcnt lgkmcnt({3-s})")
        for t in range(2):
            a(f"v_mfma_f32_16x16x32_bf16 v[{208+4*t}:{211+4*t}], v[{40+16*t+4*s}:{43+16*t+4*s}], v[{192+4*s}:{195+4*s}], {'0' if s==0 else f'v[{208+4*t}:{211+4*t}]'}")
    LOG2E = 1.4426950408889634
    a(f"s_mov_b32 s58, {hx(f32(128**-0.5))}\ns_mov_b32 s59, {hx(f32(LOG2E))}\ns_nop 5")
    for i in range(8): a(f"v_cvt_pk_bf16_f32 v{208+i}, 0, v{208+i}")
    for i in range(8): a(f"v_mul_f32 v{208+i}, s58, v{208+i}")
    for i in range(8): a(f"v_cvt_pk_bf16_f32 v{208+i}, 0, v{208+i}")
    a("""
    v_max3_f32 v244, v208, v209, v210
    v_max3_f32 v245, v211, v212, v213
    v_max3_f32 v244, v244, v214, v215
    v_max_f32 v244, v244, v245
    """)
    for sw in (16, 32):
        a(f"v_mov_b32 v245, v244\ns_nop 1\nv_permlane{sw}_swap_b32 v244, v245\nv_max_f32 v244, v244, v245")
    a("v_mul_f32 v244, s59, v244")
    for i in range(8): a(f"v_fma_f32 v{208+i}, v{208+i}, s59, -v244")
    for i in range(8): a(f"v_exp_f32 v{208+i}, v{208+i}")
    for e in range(4):
        m = 0xF << (4*e); m = m | (m << 16)
        a(f"s_mov_b32 exec_lo, {hx(m)}\ns_mov_b32 exec_hi, {hx(m)}")
        for i in range(4): a(f"v_cvt_pk_bf16_f32 v{216+4*e+i}, v{208+2*i}, v{209+2*i}")
    a("s_mov_b64 exec, -1\ns_nop 0")
    a("v_mfma_f32_16x16x32_bf16 v[248:251], v[240:243], v[216:219], 0")
    for e in range(4):
        for hf in range(2):
            a(f"v_mfma_f32_16x16x32_bf16 v[{232+4*hf}:{235+4*hf}], v[{104+4*(4*hf+e)}:{107+4*(4*hf+e)}], v[{216+4*e}:{219+4*e}], {'0' if e==0 else f'v[{232+4*hf}:{235+4*hf}]'}")
    a(f"""
    s_mul_i32 s63, s3, {8*OSTR}
    v_mul_u32_u24 v13, {OSTR}, v10
    v_lshl_add_u32 v13, v9, 4, v13
    v_add_u32 v13, s63, v13
    s_lshl_b32 s63, s3, 2
    v_lshl_add_u32 v14, v1, 4, s63           ; h*16 + w*4 (lanes 0..3)
    s_mov_b64 exec, 0xf
    ds_write_b32 v14, v244 offset:{L_M}
    ds_write_b32 v14, v248 offset:{L_L}
    s_mov_b64 exec, -1
    ds_write_b128 v13, v[232:235] offset:{L_O}
    ds_write_b128 v13, v[236:239] offset:{L_O+4*OSTR}
    v_and_b32 v13, 3, v1
    v_mul_u32_u24 v13, {OSTR}, v13
    v_and_b32 v14, 12, v1
    v_add_u32 v14, v14, v10
    v_lshl_add_u32 v13, v14, 4, v13
    s_mul_i32 s63, s3, {4*OSTR}
    v_add_u32 v13, s63, v13
    v_lshlrev_b32 v14, 4, v10                ; h*16
    s_waitcnt lgkmcnt(0)
    s_barrier
    """)
    a.stamp("B4")
    a(f"""
    s_cmp_ge_u32 s3, 2
    s_cbranch_scc1 L_nocomb
    ds_read_b128 v[208:211], v14 offset:{L_M}
    ds_read_b128 v[212:215], v14 offset:{L_L}
    """)
    for w in range(4):
        a(f"ds_read_b128 v[{216+4*w}:{219+4*w}], v13 offset:{L_O+8*OSTR*w}")
    a(f"""
    s_waitcnt lgkmcnt({0 if opts.get('stamps') else 5})
    v_max3_f32 v244, v208, v209, v210
    v_max_f32 v244, v244, v211
    """)
    for w in range(4): a(f"v_sub_f32 v{208+w}, v{208+w}, v244")
    for w in range(4): a(f"v_exp_f32 v{208+w}, v{208+w}")
    a("s_waitcnt lgkmcnt(0)")
    for i in range(4): a(f"v_mul_f32 v{232+i}, v208, v{216+i}")
    a("v_mul_f32 v245, v208, v212")
    for w in range(1, 4):
        for i in range(4): a(f"v_fmac_f32 v{232+i}, v{208+w}, v{216+4*w+i}")
        a(f"v_fmac_f32 v245, v{208+w}, v{212+w}")
    for i in range(4): a(f"v_min_u32 v{232+i}, -2, v{232+i}")
    a(f"""
    buffer_store_dwordx4 v[232:235], v11, {srd(WS)}, s52 offen sc1
    v_min_u32 v244, -2, v244
    v_min_u32 v245, -2, v245
    v_lshlrev_b32 v14, 3, v10                ; h*8
    s_cmp_lg_u32 s3, 0
    s_cbranch_scc1 L_nocomb
    s_mov_b32 exec_lo, 0x00010001
    s_mov_b32 exec_hi, 0x00010001
    buffer_store_dwordx2 v[244:245], v14, {srd(WS)}, s53 offen sc1
    s_mov_b64 exec, -1
L_nocomb:
    """)
    a.stamp("pubO")
    a(f"""
    v_lshrrev_b32 v13, 2, v1
    v_lshlrev_b32 v13, 4, v13                ; (4jj+r)*16
    v_and_b32 v14, 1, v1
    v_lshl_add_u32 v13, v14, 3, v13
    v_bfe_u32 v14, v1, 1, 1
    v_mul_u32_u24 v14, {UPOFF}, v14
    v_add3_u32 v13, v13, v14, s62
    s_waitcnt vmcnt(0)
    """)
    a.stamp("allin")
    for i in range(4):
        a(f"ds_read_b64_tr_b16 v[{192+4*i}:{193+4*i}], v13 offset:{512*i}")
        a(f"ds_read_b64_tr_b16 v[{194+4*i}:{195+4*i}], v13 offset:{512*i+256}")
    a(f"""
    v_lshrrev_b32 v4, 2, v1
    v_lshlrev_b32 v5, 6, v4
    v_lshlrev_b32 v4, 12, v4
    v_and_b32 v14, 3, v1
    v_lshl_add_u32 v4, v14, 4, v4
    s_lshl_b32 s50, s44, 17
    s_lshl_b32 s51, s45, 6
    s_add_u32 s50, s50, s51
    s_add_u32 s50, s50, {SB}
    s_add_u32 s51, s50, {16*4096}
    s_lshl_b32 s61, s44, 11
    s_lshr_b32 s63, s45, 2
    s_and_b32 s63, s63, 3
    s_lshl_b32 s63, s63, 3
    s_add_u32 s61, s61, s63
    s_add_u32 s61, s61, {MLB}
    """)
    def pollO():
        a(f"""
        buffer_load_dwordx2 v[40:41], v5, {srd(WS)}, s61 offen sc1
        buffer_load_dwordx2 v[42:43], v5, {srd(WS)}, s61 offen offset:1024 sc1
        buffer_load_dwordx4 v[44:47], v4, {srd(WS)}, s50 offen sc1
        buffer_load_dwordx4 v[48:51], v4, {srd(WS)}, s51 offen sc1
        """)
    pollO()
    for i in range(4):
        a(f"s_waitcnt lgkmcnt({0 if opts.get('stamps') else 6-2*i})")
        a(f"v_mfma_f32_16x16x32_bf16 v[208:211], v[{20+4*i}:{23+4*i}], v[{192+4*i}:{195+4*i}], {'0' if i==0 else 'v[208:211]'}")
    for d in range(4):
        for k, (lo, hi) in enumerate(((136+d, 140+d), (144+d, 148+d), (152+d, 156+d))):
            a(f"v_perm_b32 v{160+4*(2*d)+k}, v{hi}, v{lo}, s48")
            a(f"v_perm_b32 v{160+4*(2*d+1)+k}, v{hi}, v{lo}, s49")
    a(f"""
    s_lshl_b32 s63, s3, 2
    v_lshl_add_u32 v13, v9, 4, s63
    ds_write_b32 v13, v208 offset:{L_GP}
    """)
    for e in range(8): a(f"v_mov_b32 v{163+4*e}, 0")
    for r in range(216, 232): a(f"v_mov_b32 v{r}, 0")
    a(f"""
    v_lshlrev_b32 v13, 5, v10                ; 2jj*16
    s_waitcnt lgkmcnt(0)
    s_barrier
    ds_read_b128 v[192:195], v13 offset:{L_GP}
    ds_read_b128 v[196:199], v13 offset:{L_GP+16}
    ds_read_b128 v[200:203], v13 offset:{L_GP+128}
    ds_read_b128 v[204:207], v13 offset:{L_GP+144}
    s_waitcnt lgkmcnt(0)
    """)
    for k in range(4):
        b = 192 + 4*k
        a(f"v_add_f32 v{b}, v{b}, v{b+1}\nv_add_f32 v{b+2}, v{b+2}, v{b+3}\nv_add_f32 v{b}, v{b}, v{b+2}\nv_cvt_pk_bf16_f32 v{b}, 0, v{b}")
    c1 = -2*0.7978845608028654*LOG2E
    for k in range(2):
        b = 192 + 4*k; u = 200 + 4*k
        a(f"""
        v_mul_f32 v{b+1}, v{b}, v{b}
        v_mul_f32 v{b+1}, {hx(f32(0.044715))}, v{b+1}
        v_fma_f32 v{b+1}, v{b+1}, v{b}, v{b}
        v_mul_f32 v{b+1}, {hx(f32(c1))}, v{b+1}
        v_exp_f32 v{b+1}, v{b+1}
        s_nop 0
        v_add_f32 v{b+1}, 1.0, v{b+1}
        v_rcp_f32 v{b+1}, v{b+1}
        s_nop 0
        v_mul_f32 v{b}, v{b}, v{b+1}
        v_cvt_pk_bf16_f32 v{b}, 0, v{b}
        v_mul_f32 v{b}, v{b}, v{u}
        """)
    a("v_cvt_pk_bf16_f32 v192, v192, v196\nv_and_b32 v192, s57, v192")
    for e in range(4):
        m = 0x11111111 << e
        a(f"s_mov_b32 exec_lo, {hx(m)}\ns_mov_b32 exec_hi, {hx(m)}\nv_mov_b32 v{218+4*e}, v192")
    a("s_mov_b64 exec, -1")
    a.stamp("ffn")
    a(f"""
    s_mov_b32 s63, {SPIN}
L_po:
    s_waitcnt vmcnt(0)
    v_max3_u32 v52, v40, v41, v42
    v_max3_u32 v53, v43, v44, v45
    v_max3_u32 v52, v52, v46, v47
    v_max3_u32 v53, v53, v48, v49
    v_max3_u32 v52, v52, v50, v51
    v_max_u32 v52, v52, v53
    v_cmp_eq_u32 vcc, -1, v52
    s_cbranch_vccz L_po_ok
    s_sub_u32 s63, s63, 1
    s_cbranch_scc1 L_po_ok
    """)
    pollO()
    a("s_branch L_po\nL_po_ok:")
    a.stamp("O_ok")
    a("v_max_f32 v52, v40, v42")
    for r in (4, 8):
        a(f"s_nop 1\nv_max_f32_dpp v52, v52, v52 row_ror:{r} row_mask:0xf bank_mask:0xf")
    for sw in (16, 32):
        a(f"v_mov_b32 v53, v52\ns_nop 1\nv_permlane{sw}_swap_b32 v52, v53\nv_max_f32 v52, v52, v53")
    a("""
    v_sub_f32 v40, v40, v52
    v_sub_f32 v42, v42, v52
    v_exp_f32 v40, v40
    v_exp_f32 v42, v42
    s_nop 0
    v_mul_f32 v41, v40, v41
    v_mul_f32 v44, v40, v44
    v_mul_f32 v45, v40, v45
    v_mul_f32 v46, v40, v46
    v_mul_f32 v47, v40, v47
    v_fmac_f32 v41, v42, v43
    v_fmac_f32 v44, v42, v48
    v_fmac_f32 v46, v42, v50
    v_fmac_f32 v45, v42, v49
    v_fmac_f32 v47, v42, v51
    v_mov_b32 v53, v41
    v_permlane32_swap_b32 v44, v46
    v_add_f32 v44, v44, v46
    v_permlane32_swap_b32 v45, v47
    v_permlane32_swap_b32 v41, v53
    v_add_f32 v45, v45, v47
    v_add_f32 v41, v41, v53
    v_mov_b32 v53, v41
    s_nop 0
    v_permlane16_swap_b32 v44, v45
    v_permlane16_swap_b32 v41, v53
    v_add_f32 v44, v44, v45
    v_add_f32 v41, v41, v53
    s_nop 0
    v_add_f32_dpp v44, v44, v44 row_ror:4 row_mask:0xf bank_mask:0xf
    v_add_f32_dpp v41, v41, v41 row_ror:4 row_mask:0xf bank_mask:0xf
    s_nop 0
    v_add_f32_dpp v44, v44, v44 row_ror:8 row_mask:0xf bank_mask:0xf
    v_add_f32_dpp v41, v41, v41 row_ror:8 row_mask:0xf bank_mask:0xf
    s_nop 0
    v_rcp_f32 v41, v41
    s_nop 0
    v_mul_f32 v44, v44, v41
    s_nop 1
    v_mov_b32_dpp v48, v44 quad_perm:[0,0,0,0] row_mask:0xf bank_mask:0xf
    v_mov_b32_dpp v49, v44 quad_perm:[1,1,1,1] row_mask:0xf bank_mask:0xf
    v_mov_b32_dpp v50, v44 quad_perm:[2,2,2,2] row_mask:0xf bank_mask:0xf
    v_mov_b32_dpp v51, v44 quad_perm:[3,3,3,3] row_mask:0xf bank_mask:0xf
    """)
    for e in range(4):
        m = 0x11111111 << e
        a(f"s_mov_b32 exec_lo, {hx(m)}\ns_mov_b32 exec_hi, {hx(m)}")
        a(f"v_cvt_pk_bf16_f32 v{216+4*e}, v48, v49\nv_cvt_pk_bf16_f32 v{217+4*e}, v50, v51")
    a("s_mov_b64 exec, -1\ns_nop 0")
    for e in range(4):
        for hf in range(2):
            a(f"v_mfma_f32_16x16x32_bf16 v[{232+4*hf}:{235+4*hf}], v[{160+4*(4*hf+e)}:{163+4*(4*hf+e)}], v[{216+4*e}:{219+4*e}], {'0' if e==0 else f'v[{232+4*hf}:{235+4*hf}]'}")
    a(f"""
    s_lshl_b32 s63, s3, 9
    v_lshlrev_b32 v13, 6, v10
    v_lshl_add_u32 v13, v9, 4, v13
    v_add_u32 v13, s63, v13                  ; w*512 + j'*64 + col*16
    s_mov_b32 exec_lo, 0x000f000f
    s_mov_b32 exec_hi, 0x000f000f
    s_nop 1
    """)
    for i in range(8): a(f"v_min_u32 v{232+i}, -2, v{232+i}")
    a(f"""
    buffer_store_dwordx4 v[232:235], v13, {srd(WS)}, s52 offen offset:2048 sc1
    buffer_store_dwordx4 v[236:239], v13, {srd(WS)}, s52 offen offset:2304 sc1
    s_mov_b64 exec, -1
    """)
    a.stamp("pubY")
    a(f"""
    s_cmp_ge_u32 s2, 32
    s_cbranch_scc1 L_fin
    v_lshlrev_b32 v13, 6, v0
    s_mov_b32 s63, {SPIN}
    s_mov_b32 s61, {QB}
    s_lshr_b32 s50, s2, 3
    s_lshl_b32 s50, s50, 7
    s_and_b32 s51, s2, 3
    s_lshl_b32 s51, s51, 5
    s_add_u32 s50, s50, s51
    s_and_b32 s51, s2, 4
    s_add_u32 s50, s50, s51
    s_lshl_b32 s62, s50, 1
    v_and_b32 v14, 12, v1
    v_add_u32 v14, v14, v9
    v_lshlrev_b32 v14, 1, v14
    buffer_load_ushort v60, v14, {srd(X)}, s62 offen
L_pc2:
    buffer_load_dwordx4 v[40:43], v13, {srd(WS)}, s61 offen sc1
    s_waitcnt vmcnt(0)
    v_cmp_ne_u32 vcc, s47, v41
    v_cmp_ne_u32 s[58:59], s60, v43
    s_or_b64 vcc, vcc, s[58:59]
    s_cbranch_vccz L_pc2_ok
    s_sub_u32 s63, s63, 1
    s_cbranch_scc0 L_pc2
L_pc2_ok:
    s_barrier
    s_lshl_b32 s50, s3, 16
    s_lshl_b32 s51, s2, 6
    s_add_u32 s50, s50, s51
    s_add_u32 s50, s50, {SB+2048}
    s_add_u32 s51, s50, {64*4096}
    s_add_u32 s54, s50, {128*4096}
    s_add_u32 s55, s50, {192*4096}
    s_mov_b32 s63, {SPIN}
L_py:
    buffer_load_dwordx4 v[40:43], v4, {srd(WS)}, s50 offen sc1
    buffer_load_dwordx4 v[44:47], v4, {srd(WS)}, s51 offen sc1
    buffer_load_dwordx4 v[48:51], v4, {srd(WS)}, s54 offen sc1
    buffer_load_dwordx4 v[52:55], v4, {srd(WS)}, s55 offen sc1
    s_waitcnt vmcnt(0)
    v_max3_u32 v56, v40, v41, v42
    v_max3_u32 v57, v43, v44, v45
    v_max3_u32 v56, v56, v46, v47
    v_max3_u32 v57, v57, v48, v49
    v_max3_u32 v56, v56, v50, v51
    v_max3_u32 v57, v57, v52, v53
    v_max3_u32 v56, v56, v54, v55
    v_max_u32 v56, v56, v57
    v_cmp_eq_u32 vcc, -1, v56
    s_cbranch_vccz L_py_ok
    s_sub_u32 s63, s63, 1
    s_cbranch_scc0 L_py
L_py_ok:
    """)
    a.stamp("Y_ok")
    for i in range(4): a(f"v_add_f32 v{40+i}, v{40+i}, v{44+i}\nv_add_f32 v{48+i}, v{48+i}, v{52+i}")
    for i in (0, 2, 1, 3): a(f"v_add_f32 v{40+i}, v{40+i}, v{48+i}")
    a(f"""
    s_nop 0
    v_permlane32_swap_b32 v40, v42
    v_permlane32_swap_b32 v41, v43
    v_add_f32 v40, v40, v42
    v_add_f32 v41, v41, v43
    s_nop 1
    v_permlane16_swap_b32 v40, v41
    v_add_f32 v40, v40, v41
    s_nop 1
    v_add_f32_dpp v40, v40, v40 row_ror:4 row_mask:0xf bank_mask:0xf
    s_nop 1
    v_add_f32_dpp v40, v40, v40 row_ror:8 row_mask:0xf bank_mask:0xf
    v_lshlrev_b32 v13, 6, v10
    v_lshl_add_u32 v13, v9, 4, v13
    s_lshl_b32 s63, s3, 2
    v_add_u32 v13, s63, v13
    s_mov_b32 exec_lo, 0x000f000f
    s_mov_b32 exec_hi, 0x000f000f
    ds_write_b32 v13, v40 offset:{L_YP}
    s_mov_b64 exec, -1
    v_lshlrev_b32 v13, 4, v9
    v_lshlrev_b32 v60, 16, v60
    s_waitcnt lgkmcnt(0)
    s_barrier
    s_cmp_lg_u32 s3, 0
    s_cbranch_scc1 L_fin
    ds_read_b128 v[40:43], v13 offset:{L_YP}
    s_waitcnt lgkmcnt(0)
    v_add_f32 v40, v40, v41
    v_add_f32 v42, v42, v43
    v_add_f32 v40, v40, v42
    v_add_f32 v40, v40, v60
    v_cvt_pk_bf16_f32 v40, v40, v40
    s_mov_b64 exec, 0xffff
    buffer_store_short v40, v14, {srd(OUT)}, s62 offen
    s_cmp_lg_u32 s2, 0
    s_cbranch_scc1 L_fin
    s_mov_b64 exec, 1
    v_mov_b32 v41, s47
    v_mov_b32 v42, 0
    buffer_store_dword v41, v42, {srd(WS)}, 0 offen
L_fin:
    """)
    if opts.get("stamps"):
        a.stamp("end")
        a(f"""
        s_waitcnt lgkmcnt(0)
        s_lshl_b32 s50, s2, 2
        s_add_u32 s50, s50, s3
        s_lshl_b32 s50, s50, 8
        s_add_u32 s50, s50, {STAMP_OFF}
        s_add_u32 s58, s{WS}, s50
        s_addc_u32 s59, s{WS+1}, 0
        v_mov_b32 v3, 0
        s_mov_b64 exec, 1
        """)
        for i in range(a.nst):
            a(f"v_mov_b32 v4, s{64+2*i}\nv_mov_b32 v5, s{65+2*i}\nglobal_store_dwordx2 v3, v[4:5], s[58:59] offset:{8*i}")
    a("L_end:\ns_endpgm")
    hdr = open("cdna_kernels/" + NAME + ".s.ref").read().split("; Override")[0]
    txt = hdr + f"""; @launch grid=(256,1,1) block=(256,1,1) lds={LDS_BYTES}
.amdgcn_target "amdgcn-amd-amdhsa--gfx950"
.text
.globl {NAME}_kernel
.p2align 8
.type {NAME}_kernel,@function
{NAME}_kernel:
""" + "\n".join(a.L) + f"""
.section .rodata,"a"
.p2align 6
.amdhsa_kernel {NAME}_kernel
  .amdhsa_next_free_vgpr 256
  .amdhsa_next_free_sgpr 102
  .amdhsa_accum_offset 256
  .amdhsa_group_segment_fixed_size 0
  .amdhsa_kernarg_size 96
  .amdhsa_user_sgpr_count 2
  .amdhsa_user_sgpr_kernarg_segment_ptr 1
  .amdhsa_system_sgpr_workgroup_id_x 1
  .amdhsa_float_denorm_mode_32 3
.end_amdhsa_kernel
"""
    return txt

if __name__ == "__main__":
    out = sys.argv[1]
    opts = {}
    for kv in sys.argv[2:]:
        k, v = kv.split("="); opts[k] = int(v)
    open(out, "w").write(build(opts))
    if opts.get("stamps"): print("stamps:", list(enumerate(opts["stamp_names"])))
```

```python
import sys, struct, math
NAME = "parallel_sum__sliding_block_cached__geglu_ffn__decode"
STAMP_OFF = 0x10000000

def f32(x): return struct.unpack("<I", struct.pack("<f", x))[0]
def hx(x): return "0x%08x" % (x & 0xffffffff)

class Gen:
    def __init__(self, opts):
        self.L = []; self.o = opts; self.vm = []; self.nst = 0
    def __call__(self, s):
        for l in s.strip("\n").split("\n"):
            l = l.strip()
            if not l: continue
            self.L.append(l if l.endswith(":") else "    " + l)
    def vmem(self, name, s):
        self(s); self.vm.append(name)
    def wait(self, name):
        idx = max(i for i, n in enumerate(self.vm) if n == name)
        n = len(self.vm) - 1 - idx
        assert n <= 63
        self(f"s_waitcnt vmcnt({n})")
    def stamp(self, label=""):
        if not self.o.get("stamps"): return
        i = self.nst; self.nst += 1
        assert i < 19
        self(f"s_memrealtime s[{64+2*i}:{65+2*i}]")
        self.o.setdefault("stamp_names", []).append(label)

QB = 0x1000; MLB = 0x8000; SB = 0x10000; WS_SIZE = SB + 256*4096
L_WQ = 0x0000; L_GU = 0x4000; GU_W = 4352; UPOFF = 2048+128
L_XN = 0x8800; L_QP = 0x8C00; L_GP = 0x8D00; L_M = 0x8E00; L_L = 0x8E40; L_YP = 0x8F00
L_Q = 0x9000; QSTR = 272
L_O = 0x9800; OSTR = 272
LDS_BYTES = 98304
SPIN = 200000

def build(opts):
    a = Gen(opts)
    NT = " nt" if opts.get("nt", 1) else ""
    NTS = " nt" if opts.get("nt_shared", 1) else ""
    X, K, V, WQ, WO, G, U, D, OUT, WS = 4, 8, 12, 16, 20, 24, 28, 32, 36, 40
    srd = lambda r: f"s[{r}:{r+3}]"
    a.stamp("start")
    if opts.get("stamps"):
        for i in range(1, 19): a(f"s_mov_b64 s[{64+2*i}:{65+2*i}], 0")
    a(f"""
    s_cmp_ge_u32 s2, 256
    s_cbranch_scc1 L_end
    s_load_dwordx2 s[{X}:{X+1}], s[0:1], 0
    s_load_dwordx2 s[{WQ}:{WQ+1}], s[0:1], 24
    s_load_dwordx2 s[{K}:{K+1}], s[0:1], 8
    s_load_dwordx2 s[{WS}:{WS+1}], s[0:1], 88
    s_load_dwordx2 s[{V}:{V+1}], s[0:1], 16
    s_getpc_b64 s[58:59]
L_pc:
    v_lshrrev_b32 v2, 6, v0
    v_and_b32 v1, 63, v0
    v_readfirstlane_b32 s3, v2
    s_and_b32 s44, s2, 7
    s_lshr_b32 s45, s2, 3
    s_mov_b32 s{X+2}, 1024
    s_mov_b32 s{X+3}, 0x20000
    s_mov_b32 s{WQ+2}, {512*4096*2}
    s_mov_b32 s{WQ+3}, 0x20000
    s_mov_b32 s{K+2}, {8*65536*256}
    s_mov_b32 s{K+3}, 0x20000
    s_mov_b32 s{WS+2}, {WS_SIZE}
    s_mov_b32 s{WS+3}, 0x20000
    s_mov_b32 s{V+2}, {8*65536*256}
    s_mov_b32 s{V+3}, 0x20000
    v_lshlrev_b32 v2, 4, v1
    v_and_b32 v3, 0x18, v1
    v_lshrrev_b32 v8, 5, v1
    v_lshl_add_u32 v3, v8, 2, v3
    v_bfe_u32 v8, v1, 1, 2
    v_add_u32 v3, v3, v8
    v_lshlrev_b32 v3, 13, v3
    v_and_b32 v8, 1, v1
    v_lshl_add_u32 v3, v8, 4, v3
    v_and_b32 v9, 15, v1                    ; v9 = lane&15
    v_lshrrev_b32 v10, 4, v1                ; v10 = lane>>4
    v_lshlrev_b32 v4, 8, v9
    v_lshl_add_u32 v4, v10, 4, v4
    v_lshlrev_b32 v5, 4, v9
    v_lshl_add_u32 v5, v10, 10, v5
    ; p = g*32+j in s46
    s_lshl_b32 s46, s44, 5
    s_add_u32 s46, s46, s45
    s_lshl_b32 s48, s3, 20
    s_lshl_b32 s49, s46, 5
    s_add_u32 s48, s48, s49
    ; K soffset s50 = g<<24 + (61440+128j+32w)*256
    s_lshl_b32 s50, s44, 24
    s_lshl_b32 s49, s45, 15
    s_add_u32 s50, s50, s49
    s_lshl_b32 s49, s3, 13
    s_add_u32 s50, s50, s49
    s_add_u32 s50, s50, {61440*256}
    s_add_u32 s51, s50, 4096
    s_lshl_b32 s52, s46, 12
    s_add_u32 s52, s52, {SB}
    s_lshl_b32 s53, s46, 6
    s_add_u32 s53, s53, {MLB}
    v_lshlrev_b32 v11, 4, v0                ; tid*16
    v_lshlrev_b32 v12, 5, v0
    v_min_u32 v12, L_end-L_pc, v12
    v_mov_b32 v36, -1
    v_mov_b32 v37, -1
    v_mov_b32 v38, -1
    v_mov_b32 v39, -1
    v_and_b32 v13, 1, v1
    v_lshlrev_b32 v13, 4, v13
    s_lshl_b32 s49, s3, 12
    s_mov_b32 m0, s49                       ; L_WQ + w*4096
    s_waitcnt lgkmcnt(0)
    """)
    a.stamp("karg")
    a.vmem("x", f"buffer_load_dwordx4 v[16:19], v2, {srd(X)}, 0 offen")
    if opts.get("codepf", 1):
        a.vmem("pf", f"global_load_dword v14, v12, s[58:59]")
    for i in range(4):
        a.vmem(f"wq{i}", f"buffer_load_dwordx4 v3, {srd(WQ)}, s48 offen{NTS} lds")
        if i < 3:
            a(f"s_add_u32 s48, s48, {32*8192}\ns_add_u32 m0, m0, 1024")
    a.vmem("clr", f"buffer_store_dwordx4 v[36:39], v11, {srd(WS)}, s52 offen sc1")
    a("s_mov_b64 exec, 3")
    a.vmem("clr2", f"buffer_store_dwordx4 v[36:39], v13, {srd(WS)}, s53 offen sc1")
    a("s_mov_b64 exec, -1")
    for t in range(2):
        for s in range(4):
            r = 40 + 16*t + 4*s
            a.vmem(f"K{t}{s}", f"buffer_load_dwordx4 v[{r}:{r+3}], v4, {srd(K)}, s{50+t} offen offset:{64*s}{NT}")
    a(f"""
    s_load_dword s47, s[{WS}:{WS+1}], 0      ; epoch
    s_load_dwordx2 s[{WO}:{WO+1}], s[0:1], 32
    s_load_dwordx2 s[{G}:{G+1}], s[0:1], 48
    s_load_dwordx2 s[{U}:{U+1}], s[0:1], 56
    s_load_dwordx2 s[{D}:{D+1}], s[0:1], 64
    s_load_dwordx2 s[{OUT}:{OUT+1}], s[0:1], 72
    s_mov_b32 s{WO+2}, {4096*512*2}
    s_mov_b32 s{WO+3}, 0x20000
    s_mov_b32 s{G+2}, {512*1792*2}
    s_mov_b32 s{G+3}, 0x20000
    s_mov_b32 s{U+2}, {512*1792*2}
    s_mov_b32 s{U+3}, 0x20000
    s_mov_b32 s{D+2}, {512*1792*2}
    s_mov_b32 s{D+3}, 0x20000
    s_mov_b32 s{OUT+2}, 1024
    s_mov_b32 s{OUT+3}, 0x20000
    v_lshlrev_b32 v7, 4, v9
    v_lshl_add_u32 v6, v10, 13, v7
    v_lshl_add_u32 v7, v10, 11, v7
    v_and_b32 v15, 0x23, v1
    v_bfe_u32 v8, v1, 2, 2
    v_lshl_add_u32 v15, v8, 3, v15
    v_bfe_u32 v8, v1, 4, 1
    v_lshl_add_u32 v15, v8, 2, v15
    v_mul_u32_u24 v15, 3584, v15
    s_lshr_b32 s49, s45, 2
    s_and_b32 s49, s49, 3
    s_lshl_b32 s54, s44, 2
    s_add_u32 s54, s54, s49
    s_lshl_b32 s54, s54, 7
    s_lshr_b32 s49, s45, 4
    s_lshl_b32 s49, s49, 2
    s_add_u32 s54, s54, s49
    s_and_b32 s49, s45, 3
    s_add_u32 s54, s54, s49
    s_lshl_b32 s54, s54, 10
    s_lshl_b32 s49, s3, 8
    s_add_u32 s54, s54, s49
    s_lshr_b32 s55, s45, 3
    s_lshl_b32 s55, s55, 3
    s_add_u32 s55, s55, s44
    s_cmp_lt_u32 s55, 28
    s_cselect_b32 s57, -1, 0
    s_cselect_b32 s56, 0, 8
    s_sub_u32 s55, s55, s56
    s_lshl_b32 s55, s55, 6
    s_and_b32 s56, s45, 7
    s_lshl_b32 s56, s56, 3
    s_add_u32 s55, s55, s56                 ; f0
    s_lshl_b32 s56, s55, 10
    s_add_u32 s56, s56, s49
    s_lshl_b32 s55, s55, 1
    s_mul_i32 s49, s3, {128*3584}
    s_add_u32 s55, s55, s49
    """)
    def allred(op, t, t2):
        for r in (1, 2, 4, 8):
            a(f"s_nop 1\nv_{op}_f32_dpp v{t}, v{t}, v{t} row_ror:{r} row_mask:0xf bank_mask:0xf")
        for sw in (16, 32):
            a(f"v_mov_b32 v{t2}, v{t}\ns_nop 1\nv_permlane{sw}_swap_b32 v{t}, v{t2}\nv_{op}_f32 v{t}, v{t}, v{t2}")
    a.wait("x")
    a.stamp("x")
    xs = list(range(20, 28))
    for i in range(4):
        a(f"v_lshlrev_b32 v{xs[2*i]}, 16, v{16+i}\nv_and_b32 v{xs[2*i+1]}, 0xffff0000, v{16+i}")
    a("""
    v_add_f32 v28, v20, v21
    v_add_f32 v29, v22, v23
    v_add_f32 v30, v24, v25
    v_add_f32 v31, v26, v27
    v_add_f32 v28, v28, v29
    v_add_f32 v30, v30, v31
    v_add_f32 v28, v28, v30
    """)
    allred("add", 28, 29)
    a(f"v_mul_f32 v28, {hx(f32(1/512))}, v28")
    a("v_sub_f32 v30, v20, v28\nv_mul_f32 v29, v30, v30")
    for i in range(1, 8):
        a(f"v_sub_f32 v30, v{xs[i]}, v28\nv_fmac_f32 v29, v30, v30")
    allred("add", 29, 30)
    a(f"""
    v_mul_f32 v29, {hx(f32(1/512))}, v29
    v_cvt_pk_bf16_f32 v28, 0, v28
    v_cvt_pk_bf16_f32 v29, 0, v29
    v_add_f32 v29, {hx(f32(1e-5))}, v29
    v_cvt_pk_bf16_f32 v29, 0, v29
    v_sqrt_f32 v29, v29
    s_nop 0
    v_cvt_pk_bf16_f32 v29, 0, v29
    v_rcp_f32 v30, v29
    """)
    for i in range(8):
        a(f"v_sub_f32 v{xs[i]}, v{xs[i]}, v28\nv_cvt_pk_bf16_f32 v{xs[i]}, 0, v{xs[i]}")
    for i in range(8):
        a(f"v_mul_f32 v31, v{xs[i]}, v30\nv_fma_f32 v32, -v31, v29, v{xs[i]}\nv_fma_f32 v{xs[i]}, v32, v30, v31")
    for i in range(4):
        a(f"v_cvt_pk_bf16_f32 v{16+i}, v{xs[2*i]}, v{xs[2*i+1]}")
    a(f"""
    ds_write_b128 v2, v[16:19] offset:{L_XN}
    s_lshl_b32 s49, s3, 8
    v_lshl_add_u32 v8, v10, 4, s49          ; 256w + 16jj
    s_lshl_b32 s49, s3, 12
    v_lshl_add_u32 v12, v1, 3, s49
    s_waitcnt lgkmcnt(0)
    """)
    for i in range(4):
        a(f"ds_read_b128 v[{20+4*i}:{23+4*i}], v8 offset:{L_XN+64*i}")
    a(f"""
    s_mul_i32 s47, s47, 0x9E3779B1
    s_add_u32 s47, s47, 0x7F4A7C15
    s_mul_i32 s60, s47, 0x85EBCA6B
    s_xor_b32 s60, s60, 0x5bd1e995          ; tagB
    """)
    for i in range(4):
        a.wait(f"wq{i}")
        a(f"ds_read_b64_tr_b16 v[{192+4*i}:{193+4*i}], v12 offset:{L_WQ+1024*i}")
        a(f"ds_read_b64_tr_b16 v[{194+4*i}:{195+4*i}], v12 offset:{L_WQ+1024*i+512}")
    a.stamp("wq")
    for i in range(4):
        a(f"s_waitcnt lgkmcnt({0 if opts.get('stamps') else 6-2*i})")
        a(f"v_mfma_f32_16x16x32_bf16 v[208:211], v[{20+4*i}:{23+4*i}], v[{192+4*i}:{195+4*i}], {'0' if i==0 else 'v[208:211]'}")
    a(f"""
    s_lshl_b32 s49, s3, 2
    v_lshl_add_u32 v13, v9, 4, s49          ; col*16 + w*4
    s_nop 6
    ds_write_b32 v13, v208 offset:{L_QP}
    """)
    a.wait("clr2")
    a("s_waitcnt lgkmcnt(0)\ns_barrier")
    a.stamp("B1")
    a(f"""
    s_cmp_lg_u32 s3, 0
    s_cbranch_scc1 L_nopub
    v_lshlrev_b32 v14, 4, v9
    ds_read_b128 v[208:211], v14 offset:{L_QP}
    v_mov_b32 v213, s47
    v_mov_b32 v215, s60
    s_lshl_b32 s49, s46, 6
    s_add_u32 s49, s49, {QB}
    v_lshlrev_b32 v14, 2, v9
    s_waitcnt lgkmcnt(0)
    v_add_f32 v208, v208, v209
    v_add_f32 v210, v210, v211
    v_add_f32 v208, v208, v210
    s_nop 1
    v_mov_b32_dpp v209, v208 quad_perm:[1,1,1,1] row_mask:0xf bank_mask:0xf
    v_mov_b32_dpp v210, v208 quad_perm:[2,2,2,2] row_mask:0xf bank_mask:0xf
    v_mov_b32_dpp v211, v208 quad_perm:[3,3,3,3] row_mask:0xf bank_mask:0xf
    v_cvt_pk_bf16_f32 v212, v208, v209
    v_cvt_pk_bf16_f32 v214, v210, v211
    s_mov_b64 exec, 0x1111
    buffer_store_dwordx4 v[212:215], v14, {srd(WS)}, s49 offen sc1
    s_mov_b64 exec, -1
L_nopub:
    """)
    a.stamp("pubq")
    for t in range(8):
        r = 72 + 4*t
        a.vmem(f"V{t}", f"buffer_load_dwordx4 v[{r}:{r+3}], v5, {srd(V)}, s{50+(t>>2)} offen offset:{256*(t&3)}{NT}")
    a(f"""
    s_lshl_b32 s61, s44, 11
    s_lshl_b32 s49, s3, 9
    s_add_u32 s61, s61, s49
    s_add_u32 s61, s61, {QB}
    s_mov_b64 exec, 0xffffffff
    """)
    a.vmem("pq", f"buffer_load_dwordx4 v[212:215], v2, {srd(WS)}, s61 offen sc1")
    a("s_mov_b64 exec, -1")
    a.stamp("pollq_iss")
    for t in range(4):
        r = 136 + 4*t
        a.vmem(f"wo{t}", f"buffer_load_dwordx4 v[{r}:{r+3}], v6, {srd(WO)}, s54 offen{NT}")
        if t < 3: a("s_add_u32 s54, s54, 32768")
    a(f"s_mul_i32 s49, s3, {GU_W}\ns_add_u32 s62, s49, {L_GU}")
    for i in range(2):
        a(f"s_add_u32 m0, s62, {1024*i}\ns_nop 0")
        a.vmem(f"g{i}", f"buffer_load_dwordx4 v15, {srd(G)}, s55 offen{NTS} lds")
        a(f"s_add_u32 m0, s62, {UPOFF+1024*i}\ns_nop 0")
        a.vmem(f"u{i}", f"buffer_load_dwordx4 v15, {srd(U)}, s55 offen{NTS} lds")
        if i == 0: a(f"s_add_u32 s55, s55, {64*3584}")
    for t in range(2):
        r = 152 + 4*t
        a.vmem(f"wd{t}", f"buffer_load_dwordx4 v[{r}:{r+3}], v7, {srd(D)}, s56 offen offset:{1024*t}{NT}")
    a.stamp("iss_done")
    a(f"""
    s_mov_b32 s48, 0x05040100
    s_mov_b32 s49, 0x07060302
    v_mov_b32 v240, 0x3f803f80
    v_mov_b32 v241, 0x3f803f80
    v_mov_b32 v242, 0x3f803f80
    v_mov_b32 v243, 0x3f803f80
    """)
    for r in range(216, 232): a(f"v_mov_b32 v{r}, 0")
    a(f"""
    s_mul_i32 s63, s3, {QSTR}
    s_add_u32 s63, s63, {L_Q}
    v_lshl_add_u32 v13, v1, 3, s63
    v_and_b32 v14, 3, v1
    v_mul_u32_u24 v14, {QSTR}, v14
    v_lshl_add_u32 v14, v10, 4, v14
    """)
    for tp in range(4):
        a.wait(f"V{2*tp+1}")
        for d in range(4):
            lo = 72 + 8*tp + d; hi = lo + 4
            a(f"v_perm_b32 v{104+4*(2*d)+tp}, v{hi}, v{lo}, s48")
            a(f"v_perm_b32 v{104+4*(2*d+1)+tp}, v{hi}, v{lo}, s49")
    a.stamp("V")
    a.wait("pq")
    a(f"""
    s_mov_b32 s63, {SPIN}
    s_mov_b64 exec, 0xffffffff
L_pq:
    v_cmp_ne_u32 vcc, s47, v213
    v_cmp_ne_u32 s[58:59], s60, v215
    s_or_b64 vcc, vcc, s[58:59]
    s_cbranch_vccz L_pq_ok
    s_sub_u32 s63, s63, 1
    s_cbranch_scc1 L_pq_ok
    buffer_load_dwordx4 v[212:215], v2, {srd(WS)}, s61 offen sc1
    s_waitcnt vmcnt(0)
    s_branch L_pq
L_pq_ok:
    ds_write2_b32 v13, v212, v214 offset0:0 offset1:1
    s_mov_b64 exec, -1
    """)
    a.stamp("q_ok")
    a("s_waitcnt lgkmcnt(0)\ns_barrier")
    for s in range(4):
        a(f"ds_read_b128 v[{192+4*s}:{195+4*s}], v14 offset:{L_Q+64*s}")
    for s in range(4):
        a(f"s_waitcnt lgkmcnt({3-s})")
        for t in range(2):
            a(f"v_mfma_f32_16x16x32_bf16 v[{208+4*t}:{211+4*t}], v[{40+16*t+4*s}:{43+16*t+4*s}], v[{192+4*s}:{195+4*s}], {'0' if s==0 else f'v[{208+4*t}:{211+4*t}]'}")
    LOG2E = 1.4426950408889634
    a(f"s_mov_b32 s58, {hx(f32(128**-0.5))}\ns_mov_b32 s59, {hx(f32(LOG2E))}\ns_nop 5")
    for i in range(8): a(f"v_cvt_pk_bf16_f32 v{208+i}, 0, v{208+i}")
    for i in range(8): a(f"v_mul_f32 v{208+i}, s58, v{208+i}")
    for i in range(8): a(f"v_cvt_pk_bf16_f32 v{208+i}, 0, v{208+i}")
    a("""
    v_max3_f32 v244, v208, v209, v210
    v_max3_f32 v245, v211, v212, v213
    v_max3_f32 v244, v244, v214, v215
    v_max_f32 v244, v244, v245
    """)
    for sw in (16, 32):
        a(f"v_mov_b32 v245, v244\ns_nop 1\nv_permlane{sw}_swap_b32 v244, v245\nv_max_f32 v244, v244, v245")
    a("v_mul_f32 v244, s59, v244")
    for i in range(8): a(f"v_fma_f32 v{208+i}, v{208+i}, s59, -v244")
    for i in range(8): a(f"v_exp_f32 v{208+i}, v{208+i}")
    for e in range(4):
        m = 0xF << (4*e); m = m | (m << 16)
        a(f"s_mov_b32 exec_lo, {hx(m)}\ns_mov_b32 exec_hi, {hx(m)}")
        for i in range(4): a(f"v_cvt_pk_bf16_f32 v{216+4*e+i}, v{208+2*i}, v{209+2*i}")
    a("s_mov_b64 exec, -1\ns_nop 0")
    a("v_mfma_f32_16x16x32_bf16 v[248:251], v[240:243], v[216:219], 0")
    for e in range(4):
        for hf in range(2):
            a(f"v_mfma_f32_16x16x32_bf16 v[{232+4*hf}:{235+4*hf}], v[{104+4*(4*hf+e)}:{107+4*(4*hf+e)}], v[{216+4*e}:{219+4*e}], {'0' if e==0 else f'v[{232+4*hf}:{235+4*hf}]'}")
    a(f"""
    s_mul_i32 s63, s3, {8*OSTR}
    v_mul_u32_u24 v13, {OSTR}, v10
    v_lshl_add_u32 v13, v9, 4, v13
    v_add_u32 v13, s63, v13
    s_lshl_b32 s63, s3, 2
    v_lshl_add_u32 v14, v1, 4, s63           ; h*16 + w*4 (lanes 0..3)
    s_mov_b64 exec, 0xf
    ds_write_b32 v14, v244 offset:{L_M}
    ds_write_b32 v14, v248 offset:{L_L}
    s_mov_b64 exec, -1
    ds_write_b128 v13, v[232:235] offset:{L_O}
    ds_write_b128 v13, v[236:239] offset:{L_O+4*OSTR}
    v_and_b32 v13, 3, v1
    v_mul_u32_u24 v13, {OSTR}, v13
    v_and_b32 v14, 12, v1
    v_add_u32 v14, v14, v10
    v_lshl_add_u32 v13, v14, 4, v13
    s_mul_i32 s63, s3, {4*OSTR}
    v_add_u32 v13, s63, v13
    v_lshlrev_b32 v14, 4, v10                ; h*16
    s_waitcnt lgkmcnt(0)
    s_barrier
    """)
    a.stamp("B4")
    a(f"""
    s_cmp_ge_u32 s3, 2
    s_cbranch_scc1 L_nocomb
    ds_read_b128 v[208:211], v14 offset:{L_M}
    ds_read_b128 v[212:215], v14 offset:{L_L}
    """)
    for w in range(4):
        a(f"ds_read_b128 v[{216+4*w}:{219+4*w}], v13 offset:{L_O+8*OSTR*w}")
    a(f"""
    s_waitcnt lgkmcnt({0 if opts.get('stamps') else 5})
    v_max3_f32 v244, v208, v209, v210
    v_max_f32 v244, v244, v211
    """)
    for w in range(4): a(f"v_sub_f32 v{208+w}, v{208+w}, v244")
    for w in range(4): a(f"v_exp_f32 v{208+w}, v{208+w}")
    a("s_waitcnt lgkmcnt(0)")
    for i in range(4): a(f"v_mul_f32 v{232+i}, v208, v{216+i}")
    a("v_mul_f32 v245, v208, v212")
    for w in range(1, 4):
        for i in range(4): a(f"v_fmac_f32 v{232+i}, v{208+w}, v{216+4*w+i}")
        a(f"v_fmac_f32 v245, v{208+w}, v{212+w}")
    for i in range(4): a(f"v_min_u32 v{232+i}, -2, v{232+i}")
    a(f"""
    buffer_store_dwordx4 v[232:235], v11, {srd(WS)}, s52 offen sc1
    v_min_u32 v244, -2, v244
    v_min_u32 v245, -2, v245
    v_lshlrev_b32 v14, 3, v10                ; h*8
    s_cmp_lg_u32 s3, 0
    s_cbranch_scc1 L_nocomb
    s_mov_b32 exec_lo, 0x00010001
    s_mov_b32 exec_hi, 0x00010001
    buffer_store_dwordx2 v[244:245], v14, {srd(WS)}, s53 offen sc1
    s_mov_b64 exec, -1
L_nocomb:
    """)
    a.stamp("pubO")
    a(f"""
    v_lshrrev_b32 v13, 2, v1
    v_lshlrev_b32 v13, 4, v13                ; (4jj+r)*16
    v_and_b32 v14, 1, v1
    v_lshl_add_u32 v13, v14, 3, v13
    v_bfe_u32 v14, v1, 1, 1
    v_mul_u32_u24 v14, {UPOFF}, v14
    v_add3_u32 v13, v13, v14, s62
    s_waitcnt vmcnt(0)
    """)
    a.stamp("allin")
    for i in range(4):
        a(f"ds_read_b64_tr_b16 v[{192+4*i}:{193+4*i}], v13 offset:{512*i}")
        a(f"ds_read_b64_tr_b16 v[{194+4*i}:{195+4*i}], v13 offset:{512*i+256}")
    a(f"""
    v_lshrrev_b32 v4, 2, v1
    v_lshlrev_b32 v5, 6, v4
    v_lshlrev_b32 v4, 12, v4
    v_and_b32 v14, 3, v1
    v_lshl_add_u32 v4, v14, 4, v4
    s_lshl_b32 s50, s44, 17
    s_lshl_b32 s51, s45, 6
    s_add_u32 s50, s50, s51
    s_add_u32 s50, s50, {SB}
    s_add_u32 s51, s50, {16*4096}
    s_lshl_b32 s61, s44, 11
    s_lshr_b32 s63, s45, 2
    s_and_b32 s63, s63, 3
    s_lshl_b32 s63, s63, 3
    s_add_u32 s61, s61, s63
    s_add_u32 s61, s61, {MLB}
    """)
    def pollO():
        a(f"""
        buffer_load_dwordx2 v[40:41], v5, {srd(WS)}, s61 offen sc1
        buffer_load_dwordx2 v[42:43], v5, {srd(WS)}, s61 offen offset:1024 sc1
        buffer_load_dwordx4 v[44:47], v4, {srd(WS)}, s50 offen sc1
        buffer_load_dwordx4 v[48:51], v4, {srd(WS)}, s51 offen sc1
        """)
    pollO()
    for i in range(4):
        a(f"s_waitcnt lgkmcnt({0 if opts.get('stamps') else 6-2*i})")
        a(f"v_mfma_f32_16x16x32_bf16 v[208:211], v[{20+4*i}:{23+4*i}], v[{192+4*i}:{195+4*i}], {'0' if i==0 else 'v[208:211]'}")
    for d in range(4):
        for k, (lo, hi) in enumerate(((136+d, 140+d), (144+d, 148+d), (152+d, 156+d))):
            a(f"v_perm_b32 v{160+4*(2*d)+k}, v{hi}, v{lo}, s48")
            a(f"v_perm_b32 v{160+4*(2*d+1)+k}, v{hi}, v{lo}, s49")
    a(f"""
    s_lshl_b32 s63, s3, 2
    v_lshl_add_u32 v13, v9, 4, s63
    ds_write_b32 v13, v208 offset:{L_GP}
    """)
    for e in range(8): a(f"v_mov_b32 v{163+4*e}, 0")
    for r in range(216, 232): a(f"v_mov_b32 v{r}, 0")
    a(f"""
    v_lshlrev_b32 v13, 5, v10                ; 2jj*16
    s_waitcnt lgkmcnt(0)
    s_barrier
    ds_read_b128 v[192:195], v13 offset:{L_GP}
    ds_read_b128 v[196:199], v13 offset:{L_GP+16}
    ds_read_b128 v[200:203], v13 offset:{L_GP+128}
    ds_read_b128 v[204:207], v13 offset:{L_GP+144}
    s_waitcnt lgkmcnt(0)
    """)
    for k in range(4):
        b = 192 + 4*k
        a(f"v_add_f32 v{b}, v{b}, v{b+1}\nv_add_f32 v{b+2}, v{b+2}, v{b+3}\nv_add_f32 v{b}, v{b}, v{b+2}\nv_cvt_pk_bf16_f32 v{b}, 0, v{b}")
    c1 = -2*0.7978845608028654*LOG2E
    for k in range(2):
        b = 192 + 4*k; u = 200 + 4*k
        a(f"""
        v_mul_f32 v{b+1}, v{b}, v{b}
        v_mul_f32 v{b+1}, {hx(f32(0.044715))}, v{b+1}
        v_fma_f32 v{b+1}, v{b+1}, v{b}, v{b}
        v_mul_f32 v{b+1}, {hx(f32(c1))}, v{b+1}
        v_exp_f32 v{b+1}, v{b+1}
        s_nop 0
        v_add_f32 v{b+1}, 1.0, v{b+1}
        v_rcp_f32 v{b+1}, v{b+1}
        s_nop 0
        v_mul_f32 v{b}, v{b}, v{b+1}
        v_cvt_pk_bf16_f32 v{b}, 0, v{b}
        v_mul_f32 v{b}, v{b}, v{u}
        """)
    a("v_cvt_pk_bf16_f32 v192, v192, v196\nv_and_b32 v192, s57, v192")
    for e in range(4):
        m = 0x11111111 << e
        a(f"s_mov_b32 exec_lo, {hx(m)}\ns_mov_b32 exec_hi, {hx(m)}\nv_mov_b32 v{218+4*e}, v192")
    a("s_mov_b64 exec, -1")
    a.stamp("ffn")
    a(f"""
    s_mov_b32 s63, {SPIN}
L_po:
    s_waitcnt vmcnt(0)
    v_max3_u32 v52, v40, v41, v42
    v_max3_u32 v53, v43, v44, v45
    v_max3_u32 v52, v52, v46, v47
    v_max3_u32 v53, v53, v48, v49
    v_max3_u32 v52, v52, v50, v51
    v_max_u32 v52, v52, v53
    v_cmp_eq_u32 vcc, -1, v52
    s_cbranch_vccz L_po_ok
    s_sub_u32 s63, s63, 1
    s_cbranch_scc1 L_po_ok
    """)
    pollO()
    a("s_branch L_po\nL_po_ok:")
    a.stamp("O_ok")
    a("v_max_f32 v52, v40, v42")
    for r in (4, 8):
        a(f"s_nop 1\nv_max_f32_dpp v52, v52, v52 row_ror:{r} row_mask:0xf bank_mask:0xf")
    for sw in (16, 32):
        a(f"v_mov_b32 v53, v52\ns_nop 1\nv_permlane{sw}_swap_b32 v52, v53\nv_max_f32 v52, v52, v53")
    a("""
    v_sub_f32 v40, v40, v52
    v_sub_f32 v42, v42, v52
    v_exp_f32 v40, v40
    v_exp_f32 v42, v42
    s_nop 0
    v_mul_f32 v41, v40, v41
    v_mul_f32 v44, v40, v44
    v_mul_f32 v45, v40, v45
    v_mul_f32 v46, v40, v46
    v_mul_f32 v47, v40, v47
    v_fmac_f32 v41, v42, v43
    v_fmac_f32 v44, v42, v48
    v_fmac_f32 v46, v42, v50
    v_fmac_f32 v45, v42, v49
    v_fmac_f32 v47, v42, v51
    v_mov_b32 v53, v41
    v_permlane32_swap_b32 v44, v46
    v_add_f32 v44, v44, v46
    v_permlane32_swap_b32 v45, v47
    v_permlane32_swap_b32 v41, v53
    v_add_f32 v45, v45, v47
    v_add_f32 v41, v41, v53
    v_mov_b32 v53, v41
    s_nop 0
    v_permlane16_swap_b32 v44, v45
    v_permlane16_swap_b32 v41, v53
    v_add_f32 v44, v44, v45
    v_add_f32 v41, v41, v53
    s_nop 0
    v_add_f32_dpp v44, v44, v44 row_ror:4 row_mask:0xf bank_mask:0xf
    v_add_f32_dpp v41, v41, v41 row_ror:4 row_mask:0xf bank_mask:0xf
    s_nop 0
    v_add_f32_dpp v44, v44, v44 row_ror:8 row_mask:0xf bank_mask:0xf
    v_add_f32_dpp v41, v41, v41 row_ror:8 row_mask:0xf bank_mask:0xf
    s_nop 0
    v_rcp_f32 v41, v41
    s_nop 0
    v_mul_f32 v44, v44, v41
    s_nop 1
    v_mov_b32_dpp v48, v44 quad_perm:[0,0,0,0] row_mask:0xf bank_mask:0xf
    v_mov_b32_dpp v49, v44 quad_perm:[1,1,1,1] row_mask:0xf bank_mask:0xf
    v_mov_b32_dpp v50, v44 quad_perm:[2,2,2,2] row_mask:0xf bank_mask:0xf
    v_mov_b32_dpp v51, v44 quad_perm:[3,3,3,3] row_mask:0xf bank_mask:0xf
    """)
    for e in range(4):
        m = 0x11111111 << e
        a(f"s_mov_b32 exec_lo, {hx(m)}\ns_mov_b32 exec_hi, {hx(m)}")
        a(f"v_cvt_pk_bf16_f32 v{216+4*e}, v48, v49\nv_cvt_pk_bf16_f32 v{217+4*e}, v50, v51")
    a("s_mov_b64 exec, -1\ns_nop 0")
    for e in range(4):
        for hf in range(2):
            a(f"v_mfma_f32_16x16x32_bf16 v[{232+4*hf}:{235+4*hf}], v[{160+4*(4*hf+e)}:{163+4*(4*hf+e)}], v[{216+4*e}:{219+4*e}], {'0' if e==0 else f'v[{232+4*hf}:{235+4*hf}]'}")
    a(f"""
    s_lshl_b32 s63, s3, 9
    v_lshlrev_b32 v13, 6, v10
    v_lshl_add_u32 v13, v9, 4, v13
    v_add_u32 v13, s63, v13                  ; w*512 + j'*64 + col*16
    s_mov_b32 exec_lo, 0x000f000f
    s_mov_b32 exec_hi, 0x000f000f
    s_nop 1
    """)
    for i in range(8): a(f"v_min_u32 v{232+i}, -2, v{232+i}")
    a(f"""
    buffer_store_dwordx4 v[232:235], v13, {srd(WS)}, s52 offen offset:2048 sc1
    buffer_store_dwordx4 v[236:239], v13, {srd(WS)}, s52 offen offset:2304 sc1
    s_mov_b64 exec, -1
    """)
    a.stamp("pubY")
    a(f"""
    s_cmp_ge_u32 s2, 32
    s_cbranch_scc1 L_fin
    v_lshlrev_b32 v13, 6, v0
    s_mov_b32 s63, {SPIN}
    s_mov_b32 s61, {QB}
    s_lshr_b32 s50, s2, 3
    s_lshl_b32 s50, s50, 7
    s_and_b32 s51, s2, 3
    s_lshl_b32 s51, s51, 5
    s_add_u32 s50, s50, s51
    s_and_b32 s51, s2, 4
    s_add_u32 s50, s50, s51
    s_lshl_b32 s62, s50, 1
    v_and_b32 v14, 12, v1
    v_add_u32 v14, v14, v9
    v_lshlrev_b32 v14, 1, v14
    buffer_load_ushort v60, v14, {srd(X)}, s62 offen
L_pc2:
    buffer_load_dwordx4 v[40:43], v13, {srd(WS)}, s61 offen sc1
    s_waitcnt vmcnt(0)
    v_cmp_ne_u32 vcc, s47, v41
    v_cmp_ne_u32 s[58:59], s60, v43
    s_or_b64 vcc, vcc, s[58:59]
    s_cbranch_vccz L_pc2_ok
    s_sub_u32 s63, s63, 1
    s_cbranch_scc0 L_pc2
L_pc2_ok:
    s_barrier
    s_lshl_b32 s50, s3, 16
    s_lshl_b32 s51, s2, 6
    s_add_u32 s50, s50, s51
    s_add_u32 s50, s50, {SB+2048}
    s_add_u32 s51, s50, {64*4096}
    s_add_u32 s54, s50, {128*4096}
    s_add_u32 s55, s50, {192*4096}
    s_mov_b32 s63, {SPIN}
L_py:
    buffer_load_dwordx4 v[40:43], v4, {srd(WS)}, s50 offen sc1
    buffer_load_dwordx4 v[44:47], v4, {srd(WS)}, s51 offen sc1
    buffer_load_dwordx4 v[48:51], v4, {srd(WS)}, s54 offen sc1
    buffer_load_dwordx4 v[52:55], v4, {srd(WS)}, s55 offen sc1
    s_waitcnt vmcnt(0)
    v_max3_u32 v56, v40, v41, v42
    v_max3_u32 v57, v43, v44, v45
    v_max3_u32 v56, v56, v46, v47
    v_max3_u32 v57, v57, v48, v49
    v_max3_u32 v56, v56, v50, v51
    v_max3_u32 v57, v57, v52, v53
    v_max3_u32 v56, v56, v54, v55
    v_max_u32 v56, v56, v57
    v_cmp_eq_u32 vcc, -1, v56
    s_cbranch_vccz L_py_ok
    s_sub_u32 s63, s63, 1
    s_cbranch_scc0 L_py
L_py_ok:
    """)
    a.stamp("Y_ok")
    for i in range(4): a(f"v_add_f32 v{40+i}, v{40+i}, v{44+i}\nv_add_f32 v{48+i}, v{48+i}, v{52+i}")
    for i in (0, 2, 1, 3): a(f"v_add_f32 v{40+i}, v{40+i}, v{48+i}")
    a(f"""
    s_nop 0
    v_permlane32_swap_b32 v40, v42
    v_permlane32_swap_b32 v41, v43
    v_add_f32 v40, v40, v42
    v_add_f32 v41, v41, v43
    s_nop 1
    v_permlane16_swap_b32 v40, v41
    v_add_f32 v40, v40, v41
    s_nop 1
    v_add_f32_dpp v40, v40, v40 row_ror:4 row_mask:0xf bank_mask:0xf
    s_nop 1
    v_add_f32_dpp v40, v40, v40 row_ror:8 row_mask:0xf bank_mask:0xf
    v_lshlrev_b32 v13, 6, v10
    v_lshl_add_u32 v13, v9, 4, v13
    s_lshl_b32 s63, s3, 2
    v_add_u32 v13, s63, v13
    s_mov_b32 exec_lo, 0x000f000f
    s_mov_b32 exec_hi, 0x000f000f
    ds_write_b32 v13, v40 offset:{L_YP}
    s_mov_b64 exec, -1
    v_lshlrev_b32 v13, 4, v9
    v_lshlrev_b32 v60, 16, v60
    s_waitcnt lgkmcnt(0)
    s_barrier
    s_cmp_lg_u32 s3, 0
    s_cbranch_scc1 L_fin
    ds_read_b128 v[40:43], v13 offset:{L_YP}
    s_waitcnt lgkmcnt(0)
    v_add_f32 v40, v40, v41
    v_add_f32 v42, v42, v43
    v_add_f32 v40, v40, v42
    v_add_f32 v40, v40, v60
    v_cvt_pk_bf16_f32 v40, v40, v40
    s_mov_b64 exec, 0xffff
    buffer_store_short v40, v14, {srd(OUT)}, s62 offen
    s_cmp_lg_u32 s2, 0
    s_cbranch_scc1 L_fin
    s_mov_b64 exec, 1
    v_mov_b32 v41, s47
    v_mov_b32 v42, 0
    buffer_store_dword v41, v42, {srd(WS)}, 0 offen
L_fin:
    """)
    if opts.get("dbg"):
        a.stamp("end")
        sel = [0,0,1,2,3,4,7,9,10,11,12,13,14,15,16,17]
        a("s_load_dwordx2 s[58:59], s[0:1], 80\ns_waitcnt lgkmcnt(0)\nv_mov_b32 v3, 0\ns_mov_b64 exec, 1")
        for k, i in enumerate(sel):
            neg = (k == 0) or opts["dbg"] == 2
            if neg:
                a(f"s_not_b32 s63, s{64+2*i}\ns_cmp_eq_u32 s{64+2*i}, 0\ns_cselect_b32 s63, 0, s63\nv_mov_b32 v4, s63")
            else:
                a(f"v_mov_b32 v4, s{64+2*i}")
            a(f"global_atomic_umax v3, v4, s[58:59] offset:{4*k}")
    elif opts.get("stamps"):
        a.stamp("end")
        a(f"""
        s_waitcnt lgkmcnt(0)
        s_lshl_b32 s50, s2, 2
        s_add_u32 s50, s50, s3
        s_lshl_b32 s50, s50, 8
        s_add_u32 s50, s50, {STAMP_OFF}
        s_add_u32 s58, s{WS}, s50
        s_addc_u32 s59, s{WS+1}, 0
        v_mov_b32 v3, 0
        s_mov_b64 exec, 1
        """)
        for i in range(a.nst):
            a(f"v_mov_b32 v4, s{64+2*i}\nv_mov_b32 v5, s{65+2*i}\nglobal_store_dwordx2 v3, v[4:5], s[58:59] offset:{8*i}")
    a("L_end:\ns_endpgm")
    hdr = open("cdna_kernels/" + NAME + ".s.ref").read().split("; Override")[0]
    txt = hdr + f"""; @launch grid=(256,1,1) block=(256,1,1) lds={opts.get("lds", LDS_BYTES)}
.amdgcn_target "amdgcn-amd-amdhsa--gfx950"
.text
.globl {NAME}_kernel
.p2align 8
.type {NAME}_kernel,@function
{NAME}_kernel:
""" + "\n".join(a.L) + f"""
.section .rodata,"a"
.p2align 6
.amdhsa_kernel {NAME}_kernel
  .amdhsa_next_free_vgpr 256
  .amdhsa_next_free_sgpr 102
  .amdhsa_accum_offset 256
  .amdhsa_group_segment_fixed_size 0
  .amdhsa_kernarg_size 96
  .amdhsa_user_sgpr_count 2
  .amdhsa_user_sgpr_kernarg_segment_ptr 1
  .amdhsa_system_sgpr_workgroup_id_x 1
  .amdhsa_float_denorm_mode_32 3
.end_amdhsa_kernel
"""
    return txt

if __name__ == "__main__":
    out = sys.argv[1]
    opts = {}
    for kv in sys.argv[2:]:
        k, v = kv.split("="); opts[k] = int(v)
    open(out, "w").write(build(opts))
    if opts.get("stamps"): print("stamps:", list(enumerate(opts["stamp_names"])))
```

```python
import sys, struct, math
NAME = "parallel_sum__sliding_block_cached__geglu_ffn__decode"
STAMP_OFF = 0x10000000

def f32(x): return struct.unpack("<I", struct.pack("<f", x))[0]
def hx(x): return "0x%08x" % (x & 0xffffffff)

class Gen:
    def __init__(self, opts):
        self.L = []; self.o = opts; self.vm = []; self.nst = 0
    def __call__(self, s):
        for l in s.strip("\n").split("\n"):
            l = l.strip()
            if not l: continue
            self.L.append(l if l.endswith(":") else "    " + l)
    def vmem(self, name, s):
        self(s); self.vm.append(name)
    def wait(self, name):
        idx = max(i for i, n in enumerate(self.vm) if n == name)
        n = len(self.vm) - 1 - idx
        assert n <= 63
        self(f"s_waitcnt vmcnt({n})")
    def stamp(self, label=""):
        if not self.o.get("stamps"): return
        i = self.nst; self.nst += 1
        assert i < 19
        self(f"s_memrealtime s[{64+2*i}:{65+2*i}]   ; stamp {i} {label}")
        self.o.setdefault("stamp_names", []).append(label)

QB = 0x1000; MLB = 0x8000; SB = 0x10000; WS_SIZE = SB + 256*4096
L_WQ = 0x0000; L_GU = 0x4000; GU_W = 4352; UPOFF = 2048+128
L_XN = 0x8800; L_QP = 0x8C00; L_GP = 0x8D00; L_M = 0x8E00; L_L = 0x8E40; L_YP = 0x8F00
L_Q = 0x9000; QSTR = 272
L_O = 0x9800; OSTR = 272
LDS_BYTES = 98304
SPIN = 200000

def build(opts):
    a = Gen(opts)
    NT = " nt" if opts.get("nt", 1) else ""
    NTS = " nt" if opts.get("nt_shared", 1) else ""
    X, K, V, WQ, WO, G, U, D, OUT, WS = 4, 8, 12, 16, 20, 24, 28, 32, 36, 40
    srd = lambda r: f"s[{r}:{r+3}]"
    a.stamp("start")
    if opts.get("stamps"):
        for i in range(1, 19): a(f"s_mov_b64 s[{64+2*i}:{65+2*i}], 0")
    a(f"""
    s_cmp_ge_u32 s2, 256
    s_cbranch_scc1 L_end
    s_load_dwordx2 s[{X}:{X+1}], s[0:1], 0
    s_load_dwordx2 s[{WQ}:{WQ+1}], s[0:1], 24
    s_load_dwordx2 s[{K}:{K+1}], s[0:1], 8
    s_load_dwordx2 s[{WS}:{WS+1}], s[0:1], 88
    s_load_dwordx2 s[{V}:{V+1}], s[0:1], 16
    s_getpc_b64 s[58:59]
L_pc:
    v_lshrrev_b32 v2, 6, v0
    v_and_b32 v1, 63, v0
    v_readfirstlane_b32 s3, v2
    s_and_b32 s44, s2, 7
    s_lshr_b32 s45, s2, 3
    s_mov_b32 s{X+2}, 1024
    s_mov_b32 s{X+3}, 0x20000
    s_mov_b32 s{WQ+2}, {512*4096*2}
    s_mov_b32 s{WQ+3}, 0x20000
    s_mov_b32 s{K+2}, {8*65536*256}
    s_mov_b32 s{K+3}, 0x20000
    s_mov_b32 s{WS+2}, {WS_SIZE}
    s_mov_b32 s{WS+3}, 0x20000
    s_mov_b32 s{V+2}, {8*65536*256}
    s_mov_b32 s{V+3}, 0x20000
    v_lshlrev_b32 v2, 4, v1
    v_and_b32 v3, 0x18, v1
    v_lshrrev_b32 v8, 5, v1
    v_lshl_add_u32 v3, v8, 2, v3
    v_bfe_u32 v8, v1, 1, 2
    v_add_u32 v3, v3, v8
    v_lshlrev_b32 v3, 13, v3
    v_and_b32 v8, 1, v1
    v_lshl_add_u32 v3, v8, 4, v3
    v_and_b32 v9, 15, v1                    ; v9 = lane&15
    v_lshrrev_b32 v10, 4, v1                ; v10 = lane>>4
    v_lshlrev_b32 v4, 8, v9
    v_lshl_add_u32 v4, v10, 4, v4
    v_lshlrev_b32 v5, 4, v9
    v_lshl_add_u32 v5, v10, 10, v5
    ; p = g*32+j in s46
    s_lshl_b32 s46, s44, 5
    s_add_u32 s46, s46, s45
    s_lshl_b32 s48, s3, 20
    s_lshl_b32 s49, s46, 5
    s_add_u32 s48, s48, s49
    ; K soffset s50 = g<<24 + (61440+128j+32w)*256
    s_lshl_b32 s50, s44, 24
    s_lshl_b32 s49, s45, 15
    s_add_u32 s50, s50, s49
    s_lshl_b32 s49, s3, 13
    s_add_u32 s50, s50, s49
    s_add_u32 s50, s50, {61440*256}
    s_add_u32 s51, s50, 4096
    s_lshl_b32 s52, s46, 12
    s_add_u32 s52, s52, {SB}
    s_lshl_b32 s53, s46, 6
    s_add_u32 s53, s53, {MLB}
    v_lshlrev_b32 v11, 4, v0                ; tid*16
    v_lshlrev_b32 v12, 5, v0
    v_min_u32 v12, L_end-L_pc, v12
    v_mov_b32 v36, -1
    v_mov_b32 v37, -1
    v_mov_b32 v38, -1
    v_mov_b32 v39, -1
    v_and_b32 v13, 1, v1
    v_lshlrev_b32 v13, 4, v13
    s_lshl_b32 s49, s3, 12
    s_mov_b32 m0, s49                       ; L_WQ + w*4096
    s_waitcnt lgkmcnt(0)
    """)
    a.stamp("karg")
    a.vmem("x", f"buffer_load_dwordx4 v[16:19], v2, {srd(X)}, 0 offen")
    if opts.get("codepf", 1):
        a.vmem("pf", f"global_load_dword v14, v12, s[58:59]")
    for i in range(4):
        a.vmem(f"wq{i}", f"buffer_load_dwordx4 v3, {srd(WQ)}, s48 offen{NTS} lds")
        if i < 3:
            a(f"s_add_u32 s48, s48, {32*8192}\ns_add_u32 m0, m0, 1024")
    a.vmem("clr", f"buffer_store_dwordx4 v[36:39], v11, {srd(WS)}, s52 offen sc1")
    a("s_mov_b64 exec, 3")
    a.vmem("clr2", f"buffer_store_dwordx4 v[36:39], v13, {srd(WS)}, s53 offen sc1")
    a("s_mov_b64 exec, -1")
    for t in range(2):
        for s in range(4):
            r = 40 + 16*t + 4*s
            a.vmem(f"K{t}{s}", f"buffer_load_dwordx4 v[{r}:{r+3}], v4, {srd(K)}, s{50+t} offen offset:{64*s}{NT}")
    a(f"""
    s_load_dword s47, s[{WS}:{WS+1}], 0      ; epoch
    s_load_dwordx2 s[{WO}:{WO+1}], s[0:1], 32
    s_load_dwordx2 s[{G}:{G+1}], s[0:1], 48
    s_load_dwordx2 s[{U}:{U+1}], s[0:1], 56
    s_load_dwordx2 s[{D}:{D+1}], s[0:1], 64
    s_load_dwordx2 s[{OUT}:{OUT+1}], s[0:1], 72
    s_mov_b32 s{WO+2}, {4096*512*2}
    s_mov_b32 s{WO+3}, 0x20000
    s_mov_b32 s{G+2}, {512*1792*2}
    s_mov_b32 s{G+3}, 0x20000
    s_mov_b32 s{U+2}, {512*1792*2}
    s_mov_b32 s{U+3}, 0x20000
    s_mov_b32 s{D+2}, {512*1792*2}
    s_mov_b32 s{D+3}, 0x20000
    s_mov_b32 s{OUT+2}, 1024
    s_mov_b32 s{OUT+3}, 0x20000
    v_lshlrev_b32 v7, 4, v9
    v_lshl_add_u32 v6, v10, 13, v7
    v_lshl_add_u32 v7, v10, 11, v7
    v_and_b32 v15, 0x23, v1
    v_bfe_u32 v8, v1, 2, 2
    v_lshl_add_u32 v15, v8, 3, v15
    v_bfe_u32 v8, v1, 4, 1
    v_lshl_add_u32 v15, v8, 2, v15
    v_mul_u32_u24 v15, 3584, v15
    s_lshr_b32 s49, s45, 2
    s_and_b32 s49, s49, 3
    s_lshl_b32 s54, s44, 2
    s_add_u32 s54, s54, s49
    s_lshl_b32 s54, s54, 7
    s_lshr_b32 s49, s45, 4
    s_lshl_b32 s49, s49, 2
    s_add_u32 s54, s54, s49
    s_and_b32 s49, s45, 3
    s_add_u32 s54, s54, s49
    s_lshl_b32 s54, s54, 10
    s_lshl_b32 s49, s3, 8
    s_add_u32 s54, s54, s49
    s_lshr_b32 s55, s45, 3
    s_lshl_b32 s55, s55, 3
    s_add_u32 s55, s55, s44
    s_cmp_lt_u32 s55, 28
    s_cselect_b32 s57, -1, 0
    s_cselect_b32 s56, 0, 8
    s_sub_u32 s55, s55, s56
    s_lshl_b32 s55, s55, 6
    s_and_b32 s56, s45, 7
    s_lshl_b32 s56, s56, 3
    s_add_u32 s55, s55, s56                 ; f0
    s_lshl_b32 s56, s55, 10
    s_add_u32 s56, s56, s49
    s_lshl_b32 s55, s55, 1
    s_mul_i32 s49, s3, {128*3584}
    s_add_u32 s55, s55, s49
    """)
    def allred(op, t, t2):
        for r in (1, 2, 4, 8):
            a(f"s_nop 1\nv_{op}_f32_dpp v{t}, v{t}, v{t} row_ror:{r} row_mask:0xf bank_mask:0xf")
        for sw in (16, 32):
            a(f"v_mov_b32 v{t2}, v{t}\ns_nop 1\nv_permlane{sw}_swap_b32 v{t}, v{t2}\nv_{op}_f32 v{t}, v{t}, v{t2}")
    a.wait("x")
    a.stamp("x")
    xs = list(range(20, 28))
    for i in range(4):
        a(f"v_lshlrev_b32 v{xs[2*i]}, 16, v{16+i}\nv_and_b32 v{xs[2*i+1]}, 0xffff0000, v{16+i}")
    a("""
    v_add_f32 v28, v20, v21
    v_add_f32 v29, v22, v23
    v_add_f32 v30, v24, v25
    v_add_f32 v31, v26, v27
    v_add_f32 v28, v28, v29
    v_add_f32 v30, v30, v31
    v_add_f32 v28, v28, v30
    """)
    allred("add", 28, 29)
    a(f"v_mul_f32 v28, {hx(f32(1/512))}, v28")
    a("v_sub_f32 v30, v20, v28\nv_mul_f32 v29, v30, v30")
    for i in range(1, 8):
        a(f"v_sub_f32 v30, v{xs[i]}, v28\nv_fmac_f32 v29, v30, v30")
    allred("add", 29, 30)
    a(f"""
    v_mul_f32 v29, {hx(f32(1/512))}, v29
    v_cvt_pk_bf16_f32 v28, 0, v28
    v_cvt_pk_bf16_f32 v29, 0, v29
    v_add_f32 v29, {hx(f32(1e-5))}, v29
    v_cvt_pk_bf16_f32 v29, 0, v29
    v_sqrt_f32 v29, v29
    s_nop 0
    v_cvt_pk_bf16_f32 v29, 0, v29
    v_rcp_f32 v30, v29
    """)
    for i in range(8):
        a(f"v_sub_f32 v{xs[i]}, v{xs[i]}, v28\nv_cvt_pk_bf16_f32 v{xs[i]}, 0, v{xs[i]}")
    for i in range(8):
        a(f"v_mul_f32 v31, v{xs[i]}, v30\nv_fma_f32 v32, -v31, v29, v{xs[i]}\nv_fma_f32 v{xs[i]}, v32, v30, v31")
    for i in range(4):
        a(f"v_cvt_pk_bf16_f32 v{16+i}, v{xs[2*i]}, v{xs[2*i+1]}")
    a(f"""
    ds_write_b128 v2, v[16:19] offset:{L_XN}
    s_lshl_b32 s49, s3, 8
    v_lshl_add_u32 v8, v10, 4, s49          ; 256w + 16jj
    s_lshl_b32 s49, s3, 12
    v_lshl_add_u32 v12, v1, 3, s49
    s_waitcnt lgkmcnt(0)
    """)
    for i in range(4):
        a(f"ds_read_b128 v[{20+4*i}:{23+4*i}], v8 offset:{L_XN+64*i}")
    a(f"""
    s_mul_i32 s47, s47, 0x9E3779B1
    s_add_u32 s47, s47, 0x7F4A7C15
    s_mul_i32 s60, s47, 0x85EBCA6B
    s_xor_b32 s60, s60, 0x5bd1e995          ; tagB
    """)
    for i in range(4):
        a.wait(f"wq{i}")
        a(f"ds_read_b64_tr_b16 v[{192+4*i}:{193+4*i}], v12 offset:{L_WQ+1024*i}")
        a(f"ds_read_b64_tr_b16 v[{194+4*i}:{195+4*i}], v12 offset:{L_WQ+1024*i+512}")
    a.stamp("wq")
    for i in range(4):
        a(f"s_waitcnt lgkmcnt({0 if opts.get('stamps') else 6-2*i})")
        a(f"v_mfma_f32_16x16x32_bf16 v[208:211], v[{20+4*i}:{23+4*i}], v[{192+4*i}:{195+4*i}], {'0' if i==0 else 'v[208:211]'}")
    a(f"""
    s_lshl_b32 s49, s3, 2
    v_lshl_add_u32 v13, v9, 4, s49          ; col*16 + w*4
    s_nop 6
    ds_write_b32 v13, v208 offset:{L_QP}
    """)
    a.wait("clr2")
    a("s_waitcnt lgkmcnt(0)\ns_barrier")
    a.stamp("B1")
    a(f"""
    s_cmp_lg_u32 s3, 0
    s_cbranch_scc1 L_nopub
    v_lshlrev_b32 v14, 4, v9
    ds_read_b128 v[208:211], v14 offset:{L_QP}
    v_mov_b32 v213, s47
    v_mov_b32 v215, s60
    s_lshl_b32 s49, s46, 6
    s_add_u32 s49, s49, {QB}
    v_lshlrev_b32 v14, 2, v9
    s_waitcnt lgkmcnt(0)
    v_add_f32 v208, v208, v209
    v_add_f32 v210, v210, v211
    v_add_f32 v208, v208, v210
    s_nop 1
    v_mov_b32_dpp v209, v208 quad_perm:[1,1,1,1] row_mask:0xf bank_mask:0xf
    v_mov_b32_dpp v210, v208 quad_perm:[2,2,2,2] row_mask:0xf bank_mask:0xf
    v_mov_b32_dpp v211, v208 quad_perm:[3,3,3,3] row_mask:0xf bank_mask:0xf
    v_cvt_pk_bf16_f32 v212, v208, v209
    v_cvt_pk_bf16_f32 v214, v210, v211
    s_mov_b64 exec, 0x1111
    buffer_store_dwordx4 v[212:215], v14, {srd(WS)}, s49 offen sc1
    s_mov_b64 exec, -1
L_nopub:
    """)
    a.stamp("pubq")
    for t in range(8):
        r = 72 + 4*t
        a.vmem(f"V{t}", f"buffer_load_dwordx4 v[{r}:{r+3}], v5, {srd(V)}, s{50+(t>>2)} offen offset:{256*(t&3)}{NT}")
    a(f"""
    s_lshl_b32 s61, s44, 11
    s_lshl_b32 s49, s3, 9
    s_add_u32 s61, s61, s49
    s_add_u32 s61, s61, {QB}
    s_mov_b64 exec, 0xffffffff
    """)
    a.vmem("pq", f"buffer_load_dwordx4 v[212:215], v2, {srd(WS)}, s61 offen sc1")
    a("s_mov_b64 exec, -1")
    a.stamp("pollq_iss")
    for t in range(4):
        r = 136 + 4*t
        a.vmem(f"wo{t}", f"buffer_load_dwordx4 v[{r}:{r+3}], v6, {srd(WO)}, s54 offen{NT}")
        if t < 3: a("s_add_u32 s54, s54, 32768")
    a(f"s_mul_i32 s49, s3, {GU_W}\ns_add_u32 s62, s49, {L_GU}")
    for i in range(2):
        a(f"s_add_u32 m0, s62, {1024*i}\ns_nop 0")
        a.vmem(f"g{i}", f"buffer_load_dwordx4 v15, {srd(G)}, s55 offen{NTS} lds")
        a(f"s_add_u32 m0, s62, {UPOFF+1024*i}\ns_nop 0")
        a.vmem(f"u{i}", f"buffer_load_dwordx4 v15, {srd(U)}, s55 offen{NTS} lds")
        if i == 0: a(f"s_add_u32 s55, s55, {64*3584}")
    for t in range(2):
        r = 152 + 4*t
        a.vmem(f"wd{t}", f"buffer_load_dwordx4 v[{r}:{r+3}], v7, {srd(D)}, s56 offen offset:{1024*t}{NT}")
    a.stamp("iss_done")
    a(f"""
    s_mov_b32 s48, 0x05040100
    s_mov_b32 s49, 0x07060302
    v_mov_b32 v240, 0x3f803f80
    v_mov_b32 v241, 0x3f803f80
    v_mov_b32 v242, 0x3f803f80
    v_mov_b32 v243, 0x3f803f80
    """)
    for r in range(216, 232): a(f"v_mov_b32 v{r}, 0")
    a(f"""
    s_mul_i32 s63, s3, {QSTR}
    s_add_u32 s63, s63, {L_Q}
    v_lshl_add_u32 v13, v1, 3, s63
    v_and_b32 v14, 3, v1
    v_mul_u32_u24 v14, {QSTR}, v14
    v_lshl_add_u32 v14, v10, 4, v14
    """)
    for tp in range(4):
        a.wait(f"V{2*tp+1}")
        for d in range(4):
            lo = 72 + 8*tp + d; hi = lo + 4
            a(f"v_perm_b32 v{104+4*(2*d)+tp}, v{hi}, v{lo}, s48")
            a(f"v_perm_b32 v{104+4*(2*d+1)+tp}, v{hi}, v{lo}, s49")
    a.stamp("V")
    a.wait("pq")
    a(f"""
    s_mov_b32 s63, {SPIN}
    s_mov_b64 exec, 0xffffffff
L_pq:
    v_cmp_ne_u32 vcc, s47, v213
    v_cmp_ne_u32 s[58:59], s60, v215
    s_or_b64 vcc, vcc, s[58:59]
    s_cbranch_vccz L_pq_ok
    s_sub_u32 s63, s63, 1
    s_cbranch_scc1 L_pq_ok
    buffer_load_dwordx4 v[212:215], v2, {srd(WS)}, s61 offen sc1
    s_waitcnt vmcnt(0)
    s_branch L_pq
L_pq_ok:
    ds_write2_b32 v13, v212, v214 offset0:0 offset1:1
    s_mov_b64 exec, -1
    """)
    a.stamp("q_ok")
    a("s_waitcnt lgkmcnt(0)\ns_barrier")
    for s in range(4):
        a(f"ds_read_b128 v[{192+4*s}:{195+4*s}], v14 offset:{L_Q+64*s}")
    for s in range(4):
        a(f"s_waitcnt lgkmcnt({3-s})")
        for t in range(2):
            a(f"v_mfma_f32_16x16x32_bf16 v[{208+4*t}:{211+4*t}], v[{40+16*t+4*s}:{43+16*t+4*s}], v[{192+4*s}:{195+4*s}], {'0' if s==0 else f'v[{208+4*t}:{211+4*t}]'}")
    LOG2E = 1.4426950408889634
    a(f"s_mov_b32 s58, {hx(f32(128**-0.5))}\ns_mov_b32 s59, {hx(f32(LOG2E))}\ns_nop 5")
    for i in range(8): a(f"v_cvt_pk_bf16_f32 v{208+i}, 0, v{208+i}")
    for i in range(8): a(f"v_mul_f32 v{208+i}, s58, v{208+i}")
    for i in range(8): a(f"v_cvt_pk_bf16_f32 v{208+i}, 0, v{208+i}")
    a("""
    v_max3_f32 v244, v208, v209, v210
    v_max3_f32 v245, v211, v212, v213
    v_max3_f32 v244, v244, v214, v215
    v_max_f32 v244, v244, v245
    """)
    for sw in (16, 32):
        a(f"v_mov_b32 v245, v244\ns_nop 1\nv_permlane{sw}_swap_b32 v244, v245\nv_max_f32 v244, v244, v245")
    a("v_mul_f32 v244, s59, v244")
    for i in range(8): a(f"v_fma_f32 v{208+i}, v{208+i}, s59, -v244")
    for i in range(8): a(f"v_exp_f32 v{208+i}, v{208+i}")
    for e in range(4):
        m = 0xF << (4*e); m = m | (m << 16)
        a(f"s_mov_b32 exec_lo, {hx(m)}\ns_mov_b32 exec_hi, {hx(m)}")
        for i in range(4): a(f"v_cvt_pk_bf16_f32 v{216+4*e+i}, v{208+2*i}, v{209+2*i}")
    a("s_mov_b64 exec, -1\ns_nop 0")
    a("v_mfma_f32_16x16x32_bf16 v[248:251], v[240:243], v[216:219], 0")
    for e in range(4):
        for hf in range(2):
            a(f"v_mfma_f32_16x16x32_bf16 v[{232+4*hf}:{235+4*hf}], v[{104+4*(4*hf+e)}:{107+4*(4*hf+e)}], v[{216+4*e}:{219+4*e}], {'0' if e==0 else f'v[{232+4*hf}:{235+4*hf}]'}")
    a(f"""
    s_mul_i32 s63, s3, {8*OSTR}
    v_mul_u32_u24 v13, {OSTR}, v10
    v_lshl_add_u32 v13, v9, 4, v13
    v_add_u32 v13, s63, v13
    s_lshl_b32 s63, s3, 2
    v_lshl_add_u32 v14, v1, 4, s63           ; h*16 + w*4 (lanes 0..3)
    s_mov_b64 exec, 0xf
    ds_write_b32 v14, v244 offset:{L_M}
    ds_write_b32 v14, v248 offset:{L_L}
    s_mov_b64 exec, -1
    ds_write_b128 v13, v[232:235] offset:{L_O}
    ds_write_b128 v13, v[236:239] offset:{L_O+4*OSTR}
    v_and_b32 v13, 3, v1
    v_mul_u32_u24 v13, {OSTR}, v13
    v_and_b32 v14, 12, v1
    v_add_u32 v14, v14, v10
    v_lshl_add_u32 v13, v14, 4, v13
    s_mul_i32 s63, s3, {4*OSTR}
    v_add_u32 v13, s63, v13
    v_lshlrev_b32 v14, 4, v10                ; h*16
    s_waitcnt lgkmcnt(0)
    s_barrier
    """)
    a.stamp("B4")
    a(f"""
    s_cmp_ge_u32 s3, 2
    s_cbranch_scc1 L_nocomb
    ds_read_b128 v[208:211], v14 offset:{L_M}
    ds_read_b128 v[212:215], v14 offset:{L_L}
    """)
    for w in range(4):
        a(f"ds_read_b128 v[{216+4*w}:{219+4*w}], v13 offset:{L_O+8*OSTR*w}")
    a(f"""
    s_waitcnt lgkmcnt({0 if opts.get('stamps') else 5})
    v_max3_f32 v244, v208, v209, v210
    v_max_f32 v244, v244, v211
    """)
    for w in range(4): a(f"v_sub_f32 v{208+w}, v{208+w}, v244")
    for w in range(4): a(f"v_exp_f32 v{208+w}, v{208+w}")
    a("s_waitcnt lgkmcnt(0)")
    for i in range(4): a(f"v_mul_f32 v{232+i}, v208, v{216+i}")
    a("v_mul_f32 v245, v208, v212")
    for w in range(1, 4):
        for i in range(4): a(f"v_fmac_f32 v{232+i}, v{208+w}, v{216+4*w+i}")
        a(f"v_fmac_f32 v245, v{208+w}, v{212+w}")
    for i in range(4): a(f"v_min_u32 v{232+i}, -2, v{232+i}")
    a(f"""
    buffer_store_dwordx4 v[232:235], v11, {srd(WS)}, s52 offen sc1
    v_min_u32 v244, -2, v244
    v_min_u32 v245, -2, v245
    v_lshlrev_b32 v14, 3, v10                ; h*8
    s_cmp_lg_u32 s3, 0
    s_cbranch_scc1 L_nocomb
    s_mov_b32 exec_lo, 0x00010001
    s_mov_b32 exec_hi, 0x00010001
    buffer_store_dwordx2 v[244:245], v14, {srd(WS)}, s53 offen sc1
    s_mov_b64 exec, -1
L_nocomb:
    """)
    a.stamp("pubO")
    a(f"""
    v_lshrrev_b32 v13, 2, v1
    v_lshlrev_b32 v13, 4, v13                ; (4jj+r)*16
    v_and_b32 v14, 1, v1
    v_lshl_add_u32 v13, v14, 3, v13
    v_bfe_u32 v14, v1, 1, 1
    v_mul_u32_u24 v14, {UPOFF}, v14
    v_add3_u32 v13, v13, v14, s62
    s_waitcnt vmcnt(0)
    """)
    a.stamp("allin")
    for i in range(4):
        a(f"ds_read_b64_tr_b16 v[{192+4*i}:{193+4*i}], v13 offset:{512*i}")
        a(f"ds_read_b64_tr_b16 v[{194+4*i}:{195+4*i}], v13 offset:{512*i+256}")
    a(f"""
    v_lshrrev_b32 v4, 2, v1
    v_lshlrev_b32 v5, 6, v4
    v_lshlrev_b32 v4, 12, v4
    v_and_b32 v14, 3, v1
    v_lshl_add_u32 v4, v14, 4, v4
    s_lshl_b32 s50, s44, 17
    s_lshl_b32 s51, s45, 6
    s_add_u32 s50, s50, s51
    s_add_u32 s50, s50, {SB}
    s_add_u32 s51, s50, {16*4096}
    s_lshl_b32 s61, s44, 11
    s_lshr_b32 s63, s45, 2
    s_and_b32 s63, s63, 3
    s_lshl_b32 s63, s63, 3
    s_add_u32 s61, s61, s63
    s_add_u32 s61, s61, {MLB}
    """)
    def pollO():
        a(f"""
        buffer_load_dwordx2 v[40:41], v5, {srd(WS)}, s61 offen sc1
        buffer_load_dwordx2 v[42:43], v5, {srd(WS)}, s61 offen offset:1024 sc1
        buffer_load_dwordx4 v[44:47], v4, {srd(WS)}, s50 offen sc1
        buffer_load_dwordx4 v[48:51], v4, {srd(WS)}, s51 offen sc1
        """)
    pollO()
    for i in range(4):
        a(f"s_waitcnt lgkmcnt({0 if opts.get('stamps') else 6-2*i})")
        a(f"v_mfma_f32_16x16x32_bf16 v[208:211], v[{20+4*i}:{23+4*i}], v[{192+4*i}:{195+4*i}], {'0' if i==0 else 'v[208:211]'}")
    for d in range(4):
        for k, (lo, hi) in enumerate(((136+d, 140+d), (144+d, 148+d), (152+d, 156+d))):
            a(f"v_perm_b32 v{160+4*(2*d)+k}, v{hi}, v{lo}, s48")
            a(f"v_perm_b32 v{160+4*(2*d+1)+k}, v{hi}, v{lo}, s49")
    a(f"""
    s_lshl_b32 s63, s3, 2
    v_lshl_add_u32 v13, v9, 4, s63
    ds_write_b32 v13, v208 offset:{L_GP}
    """)
    for e in range(8): a(f"v_mov_b32 v{163+4*e}, 0")
    for r in range(216, 232): a(f"v_mov_b32 v{r}, 0")
    a(f"""
    v_lshlrev_b32 v13, 5, v10                ; 2jj*16
    s_waitcnt lgkmcnt(0)
    s_barrier
    ds_read_b128 v[192:195], v13 offset:{L_GP}
    ds_read_b128 v[196:199], v13 offset:{L_GP+16}
    ds_read_b128 v[200:203], v13 offset:{L_GP+128}
    ds_read_b128 v[204:207], v13 offset:{L_GP+144}
    s_waitcnt lgkmcnt(0)
    """)
    for k in range(4):
        b = 192 + 4*k
        a(f"v_add_f32 v{b}, v{b}, v{b+1}\nv_add_f32 v{b+2}, v{b+2}, v{b+3}\nv_add_f32 v{b}, v{b}, v{b+2}\nv_cvt_pk_bf16_f32 v{b}, 0, v{b}")
    c1 = -2*0.7978845608028654*LOG2E
    for k in range(2):
        b = 192 + 4*k; u = 200 + 4*k
        a(f"""
        v_mul_f32 v{b+1}, v{b}, v{b}
        v_mul_f32 v{b+1}, {hx(f32(0.044715))}, v{b+1}
        v_fma_f32 v{b+1}, v{b+1}, v{b}, v{b}
        v_mul_f32 v{b+1}, {hx(f32(c1))}, v{b+1}
        v_exp_f32 v{b+1}, v{b+1}
        s_nop 0
        v_add_f32 v{b+1}, 1.0, v{b+1}
        v_rcp_f32 v{b+1}, v{b+1}
        s_nop 0
        v_mul_f32 v{b}, v{b}, v{b+1}
        v_cvt_pk_bf16_f32 v{b}, 0, v{b}
        v_mul_f32 v{b}, v{b}, v{u}
        """)
    a("v_cvt_pk_bf16_f32 v192, v192, v196\nv_and_b32 v192, s57, v192")
    for e in range(4):
        m = 0x11111111 << e
        a(f"s_mov_b32 exec_lo, {hx(m)}\ns_mov_b32 exec_hi, {hx(m)}\nv_mov_b32 v{218+4*e}, v192")
    a("s_mov_b64 exec, -1")
    a.stamp("ffn")
    a(f"""
    s_mov_b32 s63, {SPIN}
L_po:
    s_waitcnt vmcnt(0)
    v_max3_u32 v52, v40, v41, v42
    v_max3_u32 v53, v43, v44, v45
    v_max3_u32 v52, v52, v46, v47
    v_max3_u32 v53, v53, v48, v49
    v_max3_u32 v52, v52, v50, v51
    v_max_u32 v52, v52, v53
    v_cmp_eq_u32 vcc, -1, v52
    s_cbranch_vccz L_po_ok
    s_sub_u32 s63, s63, 1
    s_cbranch_scc1 L_po_ok
    """)
    pollO()
    a("s_branch L_po\nL_po_ok:")
    a.stamp("O_ok")
    a("v_max_f32 v52, v40, v42")
    for r in (4, 8):
        a(f"s_nop 1\nv_max_f32_dpp v52, v52, v52 row_ror:{r} row_mask:0xf bank_mask:0xf")
    for sw in (16, 32):
        a(f"v_mov_b32 v53, v52\ns_nop 1\nv_permlane{sw}_swap_b32 v52, v53\nv_max_f32 v52, v52, v53")
    a("""
    v_sub_f32 v40, v40, v52
    v_sub_f32 v42, v42, v52
    v_exp_f32 v40, v40
    v_exp_f32 v42, v42
    s_nop 0
    v_mul_f32 v41, v40, v41
    v_mul_f32 v44, v40, v44
    v_mul_f32 v45, v40, v45
    v_mul_f32 v46, v40, v46
    v_mul_f32 v47, v40, v47
    v_fmac_f32 v41, v42, v43
    v_fmac_f32 v44, v42, v48
    v_fmac_f32 v46, v42, v50
    v_fmac_f32 v45, v42, v49
    v_fmac_f32 v47, v42, v51
    v_mov_b32 v53, v41
    v_permlane32_swap_b32 v44, v46
    v_add_f32 v44, v44, v46
    v_permlane32_swap_b32 v45, v47
    v_permlane32_swap_b32 v41, v53
    v_add_f32 v45, v45, v47
    v_add_f32 v41, v41, v53
    v_mov_b32 v53, v41
    s_nop 0
    v_permlane16_swap_b32 v44, v45
    v_permlane16_swap_b32 v41, v53
    v_add_f32 v44, v44, v45
    v_add_f32 v41, v41, v53
    s_nop 0
    v_add_f32_dpp v44, v44, v44 row_ror:4 row_mask:0xf bank_mask:0xf
    v_add_f32_dpp v41, v41, v41 row_ror:4 row_mask:0xf bank_mask:0xf
    s_nop 0
    v_add_f32_dpp v44, v44, v44 row_ror:8 row_mask:0xf bank_mask:0xf
    v_add_f32_dpp v41, v41, v41 row_ror:8 row_mask:0xf bank_mask:0xf
    s_nop 0
    v_rcp_f32 v41, v41
    s_nop 0
    v_mul_f32 v44, v44, v41
    s_nop 1
    v_mov_b32_dpp v48, v44 quad_perm:[0,0,0,0] row_mask:0xf bank_mask:0xf
    v_mov_b32_dpp v49, v44 quad_perm:[1,1,1,1] row_mask:0xf bank_mask:0xf
    v_mov_b32_dpp v50, v44 quad_perm:[2,2,2,2] row_mask:0xf bank_mask:0xf
    v_mov_b32_dpp v51, v44 quad_perm:[3,3,3,3] row_mask:0xf bank_mask:0xf
    """)
    for e in range(4):
        m = 0x11111111 << e
        a(f"s_mov_b32 exec_lo, {hx(m)}\ns_mov_b32 exec_hi, {hx(m)}")
        a(f"v_cvt_pk_bf16_f32 v{216+4*e}, v48, v49\nv_cvt_pk_bf16_f32 v{217+4*e}, v50, v51")
    a("s_mov_b64 exec, -1\ns_nop 0")
    for e in range(4):
        for hf in range(2):
            a(f"v_mfma_f32_16x16x32_bf16 v[{232+4*hf}:{235+4*hf}], v[{160+4*(4*hf+e)}:{163+4*(4*hf+e)}], v[{216+4*e}:{219+4*e}], {'0' if e==0 else f'v[{232+4*hf}:{235+4*hf}]'}")
    a(f"""
    s_lshl_b32 s63, s3, 9
    v_lshlrev_b32 v13, 6, v10
    v_lshl_add_u32 v13, v9, 4, v13
    v_add_u32 v13, s63, v13                  ; w*512 + j'*64 + col*16
    s_mov_b32 exec_lo, 0x000f000f
    s_mov_b32 exec_hi, 0x000f000f
    s_nop 1
    """)
    for i in range(8): a(f"v_min_u32 v{232+i}, -2, v{232+i}")
    a(f"""
    buffer_store_dwordx4 v[232:235], v13, {srd(WS)}, s52 offen offset:2048 sc1
    buffer_store_dwordx4 v[236:239], v13, {srd(WS)}, s52 offen offset:2304 sc1
    s_mov_b64 exec, -1
    """)
    a.stamp("pubY")
    a(f"""
    s_cmp_ge_u32 s2, 32
    s_cbranch_scc1 L_fin
    v_lshlrev_b32 v13, 6, v0
    s_mov_b32 s63, {SPIN}
    s_mov_b32 s61, {QB}
    s_lshr_b32 s50, s2, 3
    s_lshl_b32 s50, s50, 7
    s_and_b32 s51, s2, 3
    s_lshl_b32 s51, s51, 5
    s_add_u32 s50, s50, s51
    s_and_b32 s51, s2, 4
    s_add_u32 s50, s50, s51
    s_lshl_b32 s62, s50, 1
    v_and_b32 v14, 12, v1
    v_add_u32 v14, v14, v9
    v_lshlrev_b32 v14, 1, v14
    buffer_load_ushort v60, v14, {srd(X)}, s62 offen
L_pc2:
    buffer_load_dwordx4 v[40:43], v13, {srd(WS)}, s61 offen sc1
    s_waitcnt vmcnt(0)
    v_cmp_ne_u32 vcc, s47, v41
    v_cmp_ne_u32 s[58:59], s60, v43
    s_or_b64 vcc, vcc, s[58:59]
    s_cbranch_vccz L_pc2_ok
    s_sub_u32 s63, s63, 1
    s_cbranch_scc0 L_pc2
L_pc2_ok:
    s_barrier
    s_lshl_b32 s50, s3, 16
    s_lshl_b32 s51, s2, 6
    s_add_u32 s50, s50, s51
    s_add_u32 s50, s50, {SB+2048}
    s_add_u32 s51, s50, {64*4096}
    s_add_u32 s54, s50, {128*4096}
    s_add_u32 s55, s50, {192*4096}
    s_mov_b32 s63, {SPIN}
L_py:
    buffer_load_dwordx4 v[40:43], v4, {srd(WS)}, s50 offen sc1
    buffer_load_dwordx4 v[44:47], v4, {srd(WS)}, s51 offen sc1
    buffer_load_dwordx4 v[48:51], v4, {srd(WS)}, s54 offen sc1
    buffer_load_dwordx4 v[52:55], v4, {srd(WS)}, s55 offen sc1
    s_waitcnt vmcnt(0)
    v_max3_u32 v56, v40, v41, v42
    v_max3_u32 v57, v43, v44, v45
    v_max3_u32 v56, v56, v46, v47
    v_max3_u32 v57, v57, v48, v49
    v_max3_u32 v56, v56, v50, v51
    v_max3_u32 v57, v57, v52, v53
    v_max3_u32 v56, v56, v54, v55
    v_max_u32 v56, v56, v57
    v_cmp_eq_u32 vcc, -1, v56
    s_cbranch_vccz L_py_ok
    s_sub_u32 s63, s63, 1
    s_cbranch_scc0 L_py
L_py_ok:
    """)
    a.stamp("Y_ok")
    for i in range(4): a(f"v_add_f32 v{40+i}, v{40+i}, v{44+i}\nv_add_f32 v{48+i}, v{48+i}, v{52+i}")
    for i in (0, 2, 1, 3): a(f"v_add_f32 v{40+i}, v{40+i}, v{48+i}")
    a(f"""
    s_nop 0
    v_permlane32_swap_b32 v40, v42
    v_permlane32_swap_b32 v41, v43
    v_add_f32 v40, v40, v42
    v_add_f32 v41, v41, v43
    s_nop 1
    v_permlane16_swap_b32 v40, v41
    v_add_f32 v40, v40, v41
    s_nop 1
    v_add_f32_dpp v40, v40, v40 row_ror:4 row_mask:0xf bank_mask:0xf
    s_nop 1
    v_add_f32_dpp v40, v40, v40 row_ror:8 row_mask:0xf bank_mask:0xf
    v_lshlrev_b32 v13, 6, v10
    v_lshl_add_u32 v13, v9, 4, v13
    s_lshl_b32 s63, s3, 2
    v_add_u32 v13, s63, v13
    s_mov_b32 exec_lo, 0x000f000f
    s_mov_b32 exec_hi, 0x000f000f
    ds_write_b32 v13, v40 offset:{L_YP}
    s_mov_b64 exec, -1
    v_lshlrev_b32 v13, 4, v9
    v_lshlrev_b32 v60, 16, v60
    s_waitcnt lgkmcnt(0)
    s_barrier
    s_cmp_lg_u32 s3, 0
    s_cbranch_scc1 L_fin
    ds_read_b128 v[40:43], v13 offset:{L_YP}
    s_waitcnt lgkmcnt(0)
    v_add_f32 v40, v40, v41
    v_add_f32 v42, v42, v43
    v_add_f32 v40, v40, v42
    v_add_f32 v40, v40, v60
    v_cvt_pk_bf16_f32 v40, v40, v40
    s_mov_b64 exec, 0xffff
    buffer_store_short v40, v14, {srd(OUT)}, s62 offen
    s_cmp_lg_u32 s2, 0
    s_cbranch_scc1 L_fin
    s_mov_b64 exec, 1
    v_mov_b32 v41, s47
    v_mov_b32 v42, 0
    buffer_store_dword v41, v42, {srd(WS)}, 0 offen
L_fin:
    """)
    if "amp" in opts:
        a.stamp("end")
        i = opts["amp"]
        a(f"""
        s_waitcnt lgkmcnt(0)
        s_cmp_lg_u32 s2, {opts.get("ampwg", 0)}
        s_cbranch_scc1 L_end
        s_cmp_lg_u32 s3, 0
        s_cbranch_scc1 L_end
        s_sub_u32 s63, s{64+2*i}, s64
        s_mul_i32 s63, s63, 10
        s_min_u32 s63, s63, 100000
        s_add_u32 s63, s63, s{64+2*(a.nst-1)}
L_amp:
        s_memrealtime s[58:59]
        s_waitcnt lgkmcnt(0)
        s_sub_u32 s62, s58, s63
        s_cmp_lt_i32 s62, 0
        s_cbranch_scc1 L_amp
        """)
    elif opts.get("dbg"):
        a.stamp("end")
        sel = [0,0,1,2,3,4,7,9,10,11,12,13,14,15,16,17]
        a("s_load_dwordx2 s[58:59], s[0:1], 80\ns_waitcnt lgkmcnt(0)\nv_mov_b32 v3, 0\ns_mov_b64 exec, 1")
        for k, i in enumerate(sel):
            neg = (k == 0) or opts["dbg"] == 2
            if neg:
                a(f"s_not_b32 s63, s{64+2*i}\ns_cmp_eq_u32 s{64+2*i}, 0\ns_cselect_b32 s63, 0, s63\nv_mov_b32 v4, s63")
            else:
                a(f"v_mov_b32 v4, s{64+2*i}")
            a(f"global_atomic_umax v3, v4, s[58:59] offset:{4*k}")
    elif opts.get("stamps"):
        a.stamp("end")
        a(f"""
        s_waitcnt lgkmcnt(0)
        s_lshl_b32 s50, s2, 2
        s_add_u32 s50, s50, s3
        s_lshl_b32 s50, s50, 8
        s_add_u32 s50, s50, {STAMP_OFF}
        s_add_u32 s58, s{WS}, s50
        s_addc_u32 s59, s{WS+1}, 0
        v_mov_b32 v3, 0
        s_mov_b64 exec, 1
        """)
        for i in range(a.nst):
            a(f"v_mov_b32 v4, s{64+2*i}\nv_mov_b32 v5, s{65+2*i}\nglobal_store_dwordx2 v3, v[4:5], s[58:59] offset:{8*i}")
    a("L_end:\ns_endpgm")
    hdr = open("cdna_kernels/" + NAME + ".s.ref").read().split("; Override")[0]
    txt = hdr + f"""; @launch grid=(256,1,1) block=(256,1,1) lds={opts.get("lds", LDS_BYTES)}
.amdgcn_target "amdgcn-amd-amdhsa--gfx950"
.text
.globl {NAME}_kernel
.p2align 8
.type {NAME}_kernel,@function
{NAME}_kernel:
""" + "\n".join(a.L) + f"""
.section .rodata,"a"
.p2align 6
.amdhsa_kernel {NAME}_kernel
  .amdhsa_next_free_vgpr 256
  .amdhsa_next_free_sgpr 102
  .amdhsa_accum_offset 256
  .amdhsa_group_segment_fixed_size 0
  .amdhsa_kernarg_size 96
  .amdhsa_user_sgpr_count 2
  .amdhsa_user_sgpr_kernarg_segment_ptr 1
  .amdhsa_system_sgpr_workgroup_id_x 1
  .amdhsa_float_denorm_mode_32 3
.end_amdhsa_kernel
"""
    return txt

if __name__ == "__main__":
    out = sys.argv[1]
    opts = {}
    for kv in sys.argv[2:]:
        k, v = kv.split("="); opts[k] = int(v)
    open(out, "w").write(build(opts))
    if opts.get("stamps"): print("stamps:", list(enumerate(opts["stamp_names"])))
```

```python
import sys, struct, math
NAME = "parallel_sum__sliding_block_cached__geglu_ffn__decode"
STAMP_OFF = 0x10000000
def f32(x): return struct.unpack("<I", struct.pack("<f", x))[0]
def hx(x): return "0x%08x" % (x & 0xffffffff)
DPP = "row_mask:0xf bank_mask:0xf"
NSTAMP = 17

class Gen:
    def __init__(self, opts, tag=""):
        self.L = []; self.o = opts; self.vm = []; self.nst = 1; self.names = ["start"]
    def __call__(self, s):
        for l in s.strip("\n").split("\n"):
            l = l.strip()
            if not l: continue
            self.L.append(l if l.endswith(":") else "    " + l)
    def vmem(self, name, s):
        self(s); self.vm.append(name)
    def wait(self, name):
        idx = max(i for i, n in enumerate(self.vm) if n == name)
        n = len(self.vm) - 1 - idx
        assert n <= 63
        self(f"s_waitcnt vmcnt({n})")
    def lg(self, n):
        self(f"s_waitcnt lgkmcnt({n})")
    def stamp(self, label=""):
        if not self.o.get("stamps"): return
        i = self.nst; self.nst += 1
        assert i < NSTAMP - 1
        self(f"s_memrealtime s[{64+2*i}:{65+2*i}]   ; stamp {i} {label}")
        self.names.append(label)
    def cnt(self, label):
        if not self.o.get("stamps"): return
        i = self.nst; self.nst += 1
        self(f"s_sub_u32 s31, {SPIN}, s47\ns_mul_i32 s31, s31, 100\ns_add_u32 s{64+2*i}, s64, s31\ns_addc_u32 s{65+2*i}, s65, 0")
        self.names.append(label)
    def setexec(self, m32):
        self(f"s_mov_b32 exec_lo, {hx(m32)}\ns_mov_b32 exec_hi, {hx(m32)}")
    def tag(self, r, tv=252):
        for i in range(4): self(f"v_perm_b32 v{r+i}, v{r+i}, v{tv}, s{38+i}")
    def chk(self, units, t0, t1, acc, ts="s60"):
        for n, r in enumerate(units):
            d = acc if n == 0 else t0
            self(f"v_perm_b32 v{t0}, v{r+1}, v{r}, s44\nv_perm_b32 v{t1}, v{r+3}, v{r+2}, s45")
            self(f"v_bitop3_b32 v{d}, v{t0}, v{t1}, {ts} bitop3:0x56")
            if n: self(f"v_or_b32 v{acc}, v{acc}, v{t0}")
    def toggle(self):
        self(f"s_and_b32 s31, s47, s54\ns_cselect_b64 {PB}, {WG}, {WS}\ns_cselect_b32 s60, s36, s55")

HB = 0x800; QB = 0x1000; GB = 0x11000; MLB = 0x31000; YB = 0x38000; OB = 0x50000; GOFF = 0x100000
L_WQ = 0x0000; L_G = 0x4000; L_WO = 0x8000; L_XN = 0xE000; L_M = 0xE400; L_L = 0xE440; L_MODE = 0xE480; L_F = 0xE4A0; L_OV = 0xE500
L_Q = 0xE800; QSTR = 272; L_O = 0x0000; OSTR = 272
LDS_BYTES = 98304
SPIN = 200000; TFALL = 256
LOG2E = 1.4426950408889634
X, K, V, WQ, WO, G, U, D, OUT, WS = "s[4:5]", "s[6:7]", "s[8:9]", "s[10:11]", "s[12:13]", "s[16:17]", "s[18:19]", "s[20:21]", "s[22:23]", "s[26:27]"
WG, PB = "s[56:57]", "s[58:59]"
MF = "v_mfma_f32_16x16x32_bf16"
def R4(r): return f"v[{r}:{r+3}]"

def build(opts):
    c = Gen(opts); p = Gen(opts); a = Gen(opts); cold = Gen(opts)
    NT = " nt" if opts.get("nt", 1) else ""
    hold = opts.get("hold", 2)
    pq_at = opts.get("pq_at", 8)
    npub = [0]
    def pub(g, name, voff, r, nreg=4):
        n = npub[0]; npub[0] += 1
        if nreg == 4:
            g.tag(r); s = f"global_store_dwordx4 v{voff}, {R4(r)}, "
        else:
            s = f"global_store_dwordx2 v{voff}, v[{r}:{r+1}], "
        if name: g.vmem(name, s + WS)
        else: g(s + WS)
        g(f"s_cmp_lg_u32 s54, 0\ns_cbranch_scc1 L_fb{n}\nL_fr{n}:")
        cold(f"L_fb{n}:")
        if nreg == 4: cold.tag(r, 253)
        else: cold(f"v_mov_b32 v{r+1}, v253")
        cold(s + WG + f" sc1\ns_branch L_fr{n}")
    nsync = [0]
    def psync(g):
        n = nsync[0]; nsync[0] += 1
        g(f"""
        ds_write_b32 v42, v252 offset:{L_F+16*n}
L_ps{n}:
        ds_read_b128 v[44:47], v40 offset:{L_F+16*n}
        s_waitcnt lgkmcnt(0)
        v_xor_b32 v44, v44, v252
        v_xor_b32 v45, v45, v252
        v_xor_b32 v46, v46, v252
        v_xor_b32 v47, v47, v252
        v_or3_b32 v44, v44, v45, v46
        v_or_b32 v44, v44, v47
        v_cmp_ne_u32 vcc, 0, v44
        s_cbranch_vccnz L_ps{n}
        """)
    def tags(g):
        g(f"""
        s_mul_i32 s36, s36, 0x9E3779B1
        s_add_u32 s36, s36, 0x7F4A7C15
        s_add_u32 s55, s55, 1
        s_mul_i32 s55, s55, 0x85EBCA6B
        s_xor_b32 s55, s55, s36
        s_mov_b32 s60, s55
        v_mov_b32 v252, s55
        v_mov_b32 v253, s36
        """)
    def consts(g):
        g(f"""
        s_getreg_b32 s55, hwreg(HW_REG_XCC_ID, 0, 4)
        s_add_u32 s56, s26, {GOFF}
        s_addc_u32 s57, s27, 0
        s_mov_b64 {PB}, {WS}
        s_mov_b32 s54, 0
        s_lshr_b32 s31, s29, 3
        s_lshl_b32 s52, s28, 2
        s_add_u32 s52, s52, s31                 ; 4g+hh
        s_mov_b32 s38, 0x07060500
        s_mov_b32 s39, 0x07060501
        s_mov_b32 s40, 0x07060502
        s_mov_b32 s41, 0x07060503
        s_mov_b32 s44, 0x0c0c0400
        s_mov_b32 s45, 0x04000c0c
        """)
    if opts.get("stamps"): c("s_memrealtime s[64:65]")
    c(f"""
    s_load_dwordx16 s[4:19], s[0:1], 0
    s_load_dwordx8 s[20:27], s[0:1], 64
    s_cmp_ge_u32 s2, 256
    s_cbranch_scc1 L_end
    s_getpc_b64 s[34:35]
L_pc:
    v_lshlrev_b32 v14, 4, v0
    v_min_u32 v14, L_end-L_pc, v14
    global_load_dword v254, v14, s[34:35]
    """)
    if opts.get("stamps"):
        for i in range(1, NSTAMP): c(f"s_mov_b64 s[{64+2*i}:{65+2*i}], 0")
    c(f"""
    v_lshrrev_b32 v2, 6, v0
    v_and_b32 v1, 63, v0
    v_readfirstlane_b32 s62, v2
    s_and_b32 s28, s2, 7
    s_lshr_b32 s29, s2, 3
    s_lshl_b32 s30, s28, 5
    s_add_u32 s30, s30, s29                 ; p
    v_lshlrev_b32 v2, 4, v1                 ; lane*16
    v_lshrrev_b32 v12, 3, v1                ; lane>>3
    v_and_b32 v13, 0x70, v2                 ; (lane&7)*16
    v_and_b32 v9, 15, v1
    v_lshrrev_b32 v10, 4, v1
    s_and_b32 s3, s62, 3
    s_cmp_ge_u32 s62, 4
    s_cbranch_scc0 L_P
    """)
    a(f"""
    s_lshl_b32 s31, s28, 24
    s_lshl_b32 s32, s29, 15
    s_add_u32 s31, s31, s32
    s_lshl_b32 s32, s3, 13
    s_add_u32 s31, s31, s32
    s_add_u32 s31, s31, {61440*256+4096}
    v_lshlrev_b32 v7, 8, v9
    v_lshl_add_u32 v7, v10, 4, v7
    v_add_u32 v7, s31, v7                   ; K voff (+4096)
    v_lshlrev_b32 v8, 4, v9
    v_lshl_add_u32 v8, v10, 10, v8
    v_add_u32 v8, s31, v8                   ; V voff (+4096)
    s_setprio 1
    s_waitcnt lgkmcnt(0)
    """)
    a.stamp("karg")
    if opts.get("b0", 1): a("s_barrier   ; B0")
    if opts.get("kdelay"): a(f"s_sleep {opts['kdelay']}")
    for t in range(2):
        for s in range(4):
            a.vmem(f"K{t}{s}", f"global_load_dwordx4 {R4(40+16*t+4*s)}, v7, {K} offset:{4096*t-4096+64*s}{NT}")
    a(f"s_load_dword s36, {WS}, 0")
    a.stamp("K_iss")
    a("; HEAD_END")
    for t in range(9):
        if t == pq_at: a("s_barrier")
        if t < 8:
            a.vmem(f"V{t}", f"global_load_dwordx4 {R4(72+4*t)}, v8, {V} offset:{4096*(t>>2)-4096+256*(t&3)}{NT}")
    a.stamp("V_iss")
    consts(a)
    for r in range(240, 244): a(f"v_mov_b32 v{r}, 0x3f803f80")
    for r in range(216, 232): a(f"v_mov_b32 v{r}, 0")
    a(f"""
    s_mov_b32 s42, 0x05040100
    s_mov_b32 s43, 0x07060302
    v_and_b32 v14, 3, v1
    v_mul_u32_u24 v14, {QSTR}, v14
    v_lshl_add_u32 v14, v10, 4, v14
    s_mov_b32 s48, {hx(f32(128**-0.5))}
    s_mov_b32 s49, {hx(f32(LOG2E))}
    s_mul_i32 s31, s3, {8*OSTR}
    v_mul_u32_u24 v15, {OSTR}, v10
    v_lshl_add_u32 v15, v9, 4, v15
    v_add_u32 v15, s31, v15
    s_lshl_b32 s31, s3, 2
    v_add_u32 v16, s31, v2
    v_and_b32 v17, 3, v1
    v_mul_u32_u24 v17, {OSTR}, v17
    v_and_b32 v18, 12, v1
    v_add_u32 v18, v18, v10
    v_lshl_add_u32 v17, v18, 4, v17
    s_mul_i32 s31, s3, {4*OSTR}
    v_add_u32 v17, s31, v17
    v_lshlrev_b32 v18, 4, v10
    s_lshl_b32 s31, s30, 3
    s_add_u32 s31, s31, s3
    s_lshl_b32 s31, s31, 8
    s_add_u32 s31, s31, {OB}
    v_lshlrev_b32 v19, 9, v10
    v_lshl_add_u32 v19, v9, 4, v19
    v_add_u32 v19, s31, v19
    s_lshl_b32 s31, s28, 10
    s_lshl_b32 s32, s29, 3
    s_add_u32 s31, s31, s32
    s_add_u32 s31, s31, {MLB}
    v_lshl_add_u32 v20, v10, 8, s31
    s_lshl_b32 s31, s28, 16
    s_and_b32 s32, s29, 24
    s_lshl_b32 s32, s32, 6
    s_add_u32 s31, s31, s32
    s_lshl_b32 s32, s3, 7
    s_add_u32 s31, s31, s32
    s_add_u32 s31, s31, {OB+4096}
    v_lshl_add_u32 v7, v12, 13, v13
    v_add_u32 v7, s31, v7
    s_lshl_b32 s31, s52, 8
    s_add_u32 s31, s31, {MLB}
    v_lshl_add_u32 v21, v12, 5, s31
    v_and_b32 v22, 3, v1
    v_lshlrev_b32 v22, 6, v22
    v_lshl_add_u32 v22, v10, 4, v22
    v_bfe_u32 v23, v1, 2, 1
    v_lshl_add_u32 v22, v23, 1, v22
    s_lshl_b32 s31, s3, 2
    v_add_u32 v22, s31, v22
    v_mov_b32 v23, 0
    s_mov_b32 s47, {SPIN}
    s_waitcnt lgkmcnt(0)
    """)
    tags(a)
    def vperm(tp):
        a.wait(f"V{2*tp+1}")
        for d in range(4):
            lo = 72 + 8*tp + d; hi = lo + 4
            a(f"v_perm_b32 v{104+4*(2*d)+tp}, v{hi}, v{lo}, s42")
            a(f"v_perm_b32 v{104+4*(2*d+1)+tp}, v{hi}, v{lo}, s43")
    npre = min(4, pq_at // 2)
    for tp in range(npre): vperm(tp)
    if npre == 0: a.wait("K13")
    a.stamp("Vpre")
    a("s_barrier")
    a.stamp("B3")
    for s in range(4):
        a(f"ds_read_b128 {R4(192+4*s)}, v14 offset:{L_Q+64*s}")
    a(f"ds_read_b32 v24, v23 offset:{L_MODE}")
    for s in range(4):
        a.lg(4-s)
        for t in range(2):
            a(f"{MF} {R4(208+4*t)}, {R4(40+16*t+4*s)}, {R4(192+4*s)}, {'0' if s==0 else R4(208+4*t)}")
    a("s_waitcnt lgkmcnt(0)\nv_readfirstlane_b32 s54, v24\ns_nop 5")
    for i in range(8): a(f"v_cvt_pk_bf16_f32 v{208+i}, 0, v{208+i}")
    for i in range(8): a(f"v_mul_f32 v{208+i}, s48, v{208+i}")
    for i in range(8): a(f"v_cvt_pk_bf16_f32 v{208+i}, 0, v{208+i}")
    a("""
    v_max3_f32 v244, v208, v209, v210
    v_max3_f32 v245, v211, v212, v213
    v_max3_f32 v244, v244, v214, v215
    v_max_f32 v244, v244, v245
    """)
    for sw in (16, 32):
        a(f"v_mov_b32 v245, v244\ns_nop 1\nv_permlane{sw}_swap_b32 v244, v245\nv_max_f32 v244, v244, v245")
    a("v_mul_f32 v244, s49, v244")
    for i in range(8): a(f"v_fma_f32 v{208+i}, v{208+i}, s49, -v244")
    for i in range(8): a(f"v_exp_f32 v{208+i}, v{208+i}")
    for e in range(4):
        m = 0xF << (4*e); a.setexec(m | (m << 16))
        for i in range(4): a(f"v_cvt_pk_bf16_f32 v{216+4*e+i}, v{208+2*i}, v{209+2*i}")
    a("s_mov_b64 exec, -1")
    a(f"{MF} v[248:251], v[240:243], v[216:219], 0")
    if npre < 4:
        for tp in range(npre, 4): vperm(tp)
        a("s_nop 1")
    for e in range(4):
        for hf in range(2):
            a(f"{MF} {R4(232+4*hf)}, {R4(104+4*(4*hf+e))}, {R4(216+4*e)}, {'0' if e==0 else R4(232+4*hf)}")
    a(f"""
    s_mov_b64 exec, 0xf
    ds_write_b32 v16, v244 offset:{L_M}
    ds_write_b32 v16, v248 offset:{L_L}
    s_mov_b64 exec, -1
    s_nop 2
    ds_write_b128 v15, v[232:235] offset:{L_O}
    ds_write_b128 v15, v[236:239] offset:{L_O+4*OSTR}
    s_waitcnt lgkmcnt(0)
    """)
    a.stamp("PV")
    a("s_barrier")
    a.stamp("B4")
    a(f"""
    s_cmp_ge_u32 s3, 2
    s_cbranch_scc1 L_nocomb
    ds_read_b128 v[208:211], v18 offset:{L_M}
    ds_read_b128 v[212:215], v18 offset:{L_L}
    """)
    for w in range(4):
        a(f"ds_read_b128 {R4(216+4*w)}, v17 offset:{L_O+8*OSTR*w}")
    a.lg(5)
    a("v_max3_f32 v244, v208, v209, v210\nv_max_f32 v244, v244, v211")
    for w in range(4): a(f"v_sub_f32 v{208+w}, v{208+w}, v244")
    for w in range(4): a(f"v_exp_f32 v{208+w}, v{208+w}")
    a.lg(4)
    a("v_mul_f32 v246, v208, v212")
    for w in range(1, 4): a(f"v_fmac_f32 v246, v{208+w}, v{212+w}")
    a("v_rcp_f32 v247, v246\nv_log_f32 v246, v246\ns_waitcnt lgkmcnt(0)")
    for i in range(4): a(f"v_mul_f32 v{232+i}, v208, v{216+i}")
    a("v_add_f32 v244, v244, v246\nv_mov_b32 v245, v252")
    for w in range(1, 4):
        for i in range(4): a(f"v_fmac_f32 v{232+i}, v{208+w}, v{216+4*w+i}")
    for i in range(4): a(f"v_mul_f32 v{232+i}, v247, v{232+i}")
    pub(a, None, 19, 232)
    a.setexec(0x00010001)
    pub(a, None, 20, 244, nreg=2)
    a("s_mov_b64 exec, -1\nL_nocomb:")
    a.stamp("pubO")
    if opts.get("b4b"): a("s_barrier")
    if opts.get("odelay"): a(f"s_sleep {opts['odelay']}")
    a("L_po:")
    a.toggle()
    for k in range(2): a(f"global_load_dwordx4 {R4(40+4*k)}, v21, {PB} offset:{16*k} sc1")
    for k in range(4): a(f"global_load_dwordx4 {R4(56+4*k)}, v7, {PB} offset:{2048*k-4096} sc1")
    a("s_waitcnt vmcnt(0)")
    a.chk([56, 60, 64, 68], 76, 77, 78)
    a(f"""
    v_xor_b32 v76, s60, v41
    v_xor_b32 v77, s60, v43
    v_or3_b32 v78, v78, v76, v77
    v_xor_b32 v76, s60, v45
    v_xor_b32 v77, s60, v47
    v_or3_b32 v78, v78, v76, v77
    v_cmp_ne_u32 vcc, 0, v78
    s_cbranch_vccz L_po_ok
    s_mov_b64 exec, vcc
    s_sub_u32 s47, s47, 1
    s_cbranch_scc0 L_po
L_po_ok:
    s_mov_b64 exec, -1
    """)
    a.stamp("O_ok")
    a(f"""
    v_max3_f32 v76, v40, v42, v44
    v_max_f32 v76, v76, v46
    s_nop 1
    v_max_f32_dpp v76, v76, v76 row_ror:8 {DPP}
    v_mov_b32 v77, v76
    s_nop 1
    v_permlane16_swap_b32 v76, v77
    v_max_f32 v76, v76, v77
    v_mov_b32 v77, v76
    s_nop 1
    v_permlane32_swap_b32 v76, v77
    v_max_f32 v76, v76, v77
    v_sub_f32 v40, v40, v76
    v_sub_f32 v42, v42, v76
    v_sub_f32 v44, v44, v76
    v_sub_f32 v46, v46, v76
    v_exp_f32 v40, v40
    v_exp_f32 v42, v42
    v_exp_f32 v44, v44
    v_exp_f32 v46, v46
    v_mul_f32 v56, v40, v56
    v_mul_f32 v57, v40, v57
    v_mul_f32 v58, v40, v58
    v_mul_f32 v59, v40, v59
    v_add_f32 v41, v40, v42
    v_add_f32 v43, v44, v46
    v_add_f32 v41, v41, v43
    v_mov_b32 v77, v41
    """)
    for k in range(1, 4):
        for i in (0, 2, 1, 3): a(f"v_fmac_f32 v{56+i}, v{40+2*k}, v{56+4*k+i}")
        if k == 1: a("v_permlane32_swap_b32 v41, v77\nv_add_f32 v41, v41, v77\nv_mov_b32 v77, v41")
        if k == 2: a("v_permlane16_swap_b32 v41, v77\nv_add_f32 v41, v41, v77")
    a(f"""
    v_add_f32_dpp v41, v41, v41 row_ror:8 {DPP}
    v_permlane32_swap_b32 v56, v58
    v_permlane32_swap_b32 v57, v59
    v_rcp_f32 v41, v41
    v_add_f32 v56, v56, v58
    v_add_f32 v57, v57, v59
    s_nop 1
    v_permlane16_swap_b32 v56, v57
    v_add_f32 v56, v56, v57
    s_nop 1
    v_add_f32_dpp v56, v56, v56 row_ror:8 {DPP}
    v_mul_f32 v56, v56, v41
    v_cvt_pk_bf16_f32 v56, v56, v56
    ds_write_b16 v22, v56 offset:{L_OV}
    s_waitcnt lgkmcnt(0)
    """)
    a.stamp("o_wr")
    a.cnt("#po")
    a("s_barrier")
    a("s_branch L_fin" if opts.get("stamps") else "s_endpgm")

    p(f"""
L_P:
    s_and_b32 s31, s29, 3
    s_lshl_b32 s31, s31, 2
    s_add_u32 s31, s31, s3
    s_lshl_b32 s31, s31, 18
    s_lshr_b32 s32, s30, 2
    s_lshl_b32 s32, s32, 7
    s_add_u32 s31, s31, s32
    v_and_b32 v43, 16, v1
    v_lshlrev_b32 v43, 1, v43
    v_xor_b32 v43, v43, v13
    v_lshl_add_u32 v3, v12, 13, v43
    v_add_u32 v3, s31, v3
    v_xor_b32 v4, 0x10040, v3
    v_add_u32 v5, 0x20000, v3
    v_xor_b32 v6, 0x30040, v3
    s_lshl_b32 m0, s3, 12
    s_setprio 2
    s_waitcnt lgkmcnt(0)
    """)
    p.stamp("karg")
    p.vmem("x", f"global_load_dwordx4 v[16:19], v2, {X}")
    for i in range(4):
        p.vmem(f"wq{i}", f"global_load_lds_dwordx4 v{3+i}, {WQ}{NT}")
        if i < 3: p("s_add_u32 m0, m0, 1024\ns_nop 0")
    p(f"s_load_dword s36, {WS}, 0")
    if opts.get("b0", 1): p("s_barrier   ; B0")
    consts(p)
    p("s_lshl_b32 s31, s3, 2\nv_mov_b32 v42, s31")
    p(f"""
    s_and_b32 s33, s29, 7
    s_and_b32 s53, s29, 24
    s_add_u32 s53, s53, s28
    s_cmp_lt_u32 s53, 28
    s_cselect_b32 s46, -1, 0
    s_cselect_b32 s32, 0, 8
    s_sub_u32 s53, s53, s32                 ; line
    s_lshl_b32 s32, s33, 2
    s_add_u32 s32, s32, s3
    s_mul_i32 s32, s32, {16*3584}
    s_lshl_b32 s31, s53, 7
    s_add_u32 s32, s32, s31
    v_mul_u32_u24 v11, 3584, v12
    v_add3_u32 v11, v11, v43, s32
    v_lshl_add_u32 v37, v12, 10, v43
    s_lshl_b32 s31, s52, 2
    s_add_u32 s31, s31, s3
    s_lshl_b32 s31, s31, 15
    s_lshl_b32 s32, s33, 7
    s_add_u32 s31, s31, s32
    v_add_u32 v36, s31, v37
    s_lshl_b32 s31, s53, 2
    s_add_u32 s31, s31, s3
    s_lshl_b32 s31, s31, 14
    s_add_u32 s31, s31, s32
    v_add_u32 v37, s31, v37
    v_bfe_u32 v3, v1, 2, 2
    v_lshl_add_u32 v3, v10, 3, v3
    v_lshlrev_b32 v3, 7, v3
    v_and_b32 v4, 3, v1
    v_lshl_add_u32 v3, v4, 3, v3
    s_lshl_b32 s31, s3, 5
    v_add_u32 v3, s31, v3
    v_bfe_u32 v4, v1, 3, 2
    v_lshlrev_b32 v4, 5, v4
    v_xor_b32 v3, v3, v4
    s_and_b32 s31, s29, 3
    s_lshl_b32 s31, s31, 8
    v_lshl_add_u32 v4, v10, 4, s31
    s_lshl_b32 s31, s31, 3
    s_lshl_b32 s61, s28, 13
    s_add_u32 s61, s61, {QB}
    s_add_u32 s31, s31, s61
    s_and_b32 s32, s29, 28
    s_add_u32 s32, s32, s3
    s_lshl_b32 s32, s32, 6
    s_add_u32 s31, s31, s32
    v_lshl_add_u32 v5, v10, 4, s31
    s_lshl_b32 s31, s30, 2
    s_add_u32 s31, s31, {HB}
    v_mov_b32 v38, s31
    """)
    if opts.get("pre", 1):
        p(f"""
        s_lshl_b32 s31, s30, 11
        s_add_u32 s31, s31, {OB}                ; w0: O lines
        s_mov_b32 s32, 15
        s_lshl_b32 s48, s30, 9
        s_add_u32 s48, s48, {GB}
        s_cmp_eq_u32 s3, 1
        s_cselect_b32 s31, s48, s31
        s_cselect_b32 s32, 3, s32
        s_lshl_b32 s48, s30, 8
        s_add_u32 s48, s48, {QB}
        s_cmp_eq_u32 s3, 2
        s_cselect_b32 s31, s48, s31
        s_cselect_b32 s32, 1, s32
        s_lshl_b32 s48, s30, 5
        s_add_u32 s48, s48, {MLB}
        s_cmp_eq_u32 s3, 3
        s_cselect_b32 s31, s48, s31
        s_cselect_b32 s32, 0, s32
        v_and_b32 v44, s32, v1
        v_lshl_add_u32 v44, v44, 7, s31
        v_cmp_gt_u32 vcc, 32, v1
        s_nop 1
        v_cndmask_b32 v44, v38, v44, vcc
        """)
        p.vmem("pre", f"global_load_dword v254, v44, {WS}{' nt' if opts.get('pre') == 2 else ''}")
    p.wait("x")
    p.stamp("x")
    xs = list(range(20, 28))
    for i in range(4):
        p(f"v_lshlrev_b32 v{xs[2*i]}, 16, v{16+i}\nv_and_b32 v{xs[2*i+1]}, 0xffff0000, v{16+i}")
    p("v_readfirstlane_b32 s31, v20\ns_nop 1")
    p("v_subrev_f32 v28, s31, v20\nv_mul_f32 v29, v28, v28")
    for i in range(1, 8):
        p(f"v_subrev_f32 v30, s31, v{xs[i]}\nv_add_f32 v28, v28, v30\nv_fmac_f32 v29, v30, v30")
    p("s_nop 0")
    for r in (1, 2, 4, 8):
        p(f"v_add_f32_dpp v28, v28, v28 row_ror:{r} {DPP}\nv_add_f32_dpp v29, v29, v29 row_ror:{r} {DPP}\ns_nop 0")
    p(f"""
    s_nop 0
    v_permlane32_swap_b32 v28, v29
    v_add_f32 v28, v28, v29
    v_mov_b32 v29, v28
    s_nop 1
    v_permlane16_swap_b32 v28, v29
    v_add_f32 v28, v28, v29
    v_mul_f32 v28, {hx(f32(1/512))}, v28
    s_nop 0
    v_readlane_b32 s32, v28, 0
    v_readlane_b32 s48, v28, 32
    s_nop 0
    v_mov_b32 v28, s32
    v_fma_f32 v29, -v28, v28, s48
    v_add_f32 v28, s31, v28
    v_max_f32 v29, 0, v29
    v_cvt_pk_bf16_f32 v28, 0, v28
    v_cvt_pk_bf16_f32 v29, 0, v29
    v_add_f32 v29, {hx(f32(1e-5))}, v29
    v_cvt_pk_bf16_f32 v29, 0, v29
    v_sqrt_f32 v29, v29
    """)
    for i in range(8): p(f"v_sub_f32 v{xs[i]}, v{xs[i]}, v28")
    p("v_cvt_pk_bf16_f32 v29, 0, v29\nv_rcp_f32 v30, v29")
    for i in range(8): p(f"v_cvt_pk_bf16_f32 v{xs[i]}, 0, v{xs[i]}")
    for i in range(8):
        p(f"v_mul_f32 v31, v{xs[i]}, v30\nv_fma_f32 v32, -v31, v29, v{xs[i]}\nv_fma_f32 v{xs[i]}, v32, v30, v31")
    for i in range(4):
        p(f"v_cvt_pk_bf16_f32 v{16+i}, v{xs[2*i]}, v{xs[2*i+1]}")
    p(f"ds_write_b128 v2, v[16:19] offset:{L_XN}\nv_mov_b32 v40, 0\nds_write_b32 v40, v40 offset:{L_MODE}\ns_waitcnt lgkmcnt(0)")
    for i in range(4):
        p(f"ds_read_b128 {R4(20+4*i)}, v4 offset:{L_XN+64*i}")
    tags(p)
    p.wait("wq3")
    p.stamp("wq")
    psync(p)
    p.stamp("B1")
    for s in range(4):
        p(f"ds_read_b64_tr_b16 v[{192+4*s}:{193+4*s}], v3 offset:{L_WQ+4096*s}")
        p(f"ds_read_b64_tr_b16 v[{194+4*s}:{195+4*s}], v3 offset:{L_WQ+4096*s+512}")
    for s in range(4):
        p.lg(6-2*s)
        p(f"{MF} v[208:211], {R4(192+4*s)}, {R4(20+4*s)}, {'0' if s==0 else 'v[208:211]'}")
    p(f"""
    s_lshl_b32 s31, s33, 7
    v_lshl_add_u32 v4, v10, 4, s31
    s_lshl_b32 s31, s3, 9
    s_add_u32 s31, s31, s61
    s_add_u32 s31, s31, 4096
    """)
    p.setexec(0x00010001)
    p.vmem("hello", f"global_store_dword v38, v252, {WS}")
    p.tag(208)
    p.vmem("pubq", f"global_store_dwordx4 v5, v[208:211], {WS}")
    p("s_mov_b64 exec, -1")
    p.stamp("pubq")
    p(f"""
    ds_read_b128 v[20:23], v4 offset:{L_XN}
    ds_read_b128 v[24:27], v4 offset:{L_XN+64}
    v_and_b32 v14, 0x1f0, v2
    v_lshrrev_b32 v6, 5, v1
    v_lshl_add_u32 v6, v6, 11, v14
    v_add_u32 v6, s31, v6
    s_lshl_b32 s31, s28, 7
    s_add_u32 s31, s31, {HB}
    v_lshrrev_b32 v14, 2, v14
    v_add_u32 v39, s31, v14
    s_mul_i32 s31, s3, {QSTR}
    s_add_u32 s31, s31, {L_Q}
    v_and_b32 v15, 31, v1
    v_lshl_add_u32 v15, v15, 3, s31
    v_lshrrev_b32 v14, 5, v1
    v_lshl_add_u32 v15, v14, 2, v15
    s_mov_b32 s47, {SPIN}
    s_lshl_b32 s49, s3, 11
    v_add_u32 v14, {8*3584}, v11
    v_xor_b32 v14, 64, v14
    s_barrier
    """)
    def pollq(g):
        g(f"global_load_dwordx4 v[28:31], v6, {PB} offset:-4096 sc1\nglobal_load_dwordx4 v[32:35], v6, {PB} sc1\nglobal_load_dword v16, v39, {PB} sc1")
    pollq(p); p.vm += ["pq0", "pq1", "pq"]
    p.stamp("pq_iss")
    p("s_setprio 0")
    if opts.get("gdelay"): p(f"s_sleep {opts['gdelay']}")
    for i in range(2):
        for m, (nm, P) in enumerate((("g", G), ("u", U))):
            p(f"s_add_u32 m0, s49, {L_G + 1024*i + 8192*m}\ns_nop 0")
            p.vmem(f"{nm}{i}", f"global_load_lds_dwordx4 v{11 if i==0 else 14}, {P}{NT}")
    def w_issue(lst):
        for n in lst:
            if n < 4:
                p(f"s_lshl_b32 s31, s3, 12\ns_add_u32 m0, s31, {L_WO + 1024*n}\ns_nop 0")
                p.vmem(f"w{n}", f"global_load_lds_dwordx4 v36, {WO}{NT}")
                if n < 3: p(f"v_xor_b32 v36, {hx((0x2040, 0x6040, 0x2040)[n])}, v36")
            else:
                p(f"s_lshl_b32 s31, s3, 11\ns_add_u32 m0, s31, {L_WO + 16384 + 1024*(n-4)}\ns_nop 0")
                p.vmem(f"w{n}", f"global_load_lds_dwordx4 v37, {D}{NT}")
                if n < 5: p("v_xor_b32 v37, 0x2040, v37")
    early = opts.get("early", 6-hold)
    early = min(early, 6-hold)
    w_issue(range(0, early))
    p.stamp("iss")
    p.wait("pq")
    p.stamp("pq_ret")
    p("L_pq:")
    p.chk([28, 32], 17, 18, 19)
    p(f"""
    v_xor_b32 v17, s60, v16
    v_or_b32 v19, v19, v17
    v_cmp_ne_u32 vcc, 0, v19
    s_cbranch_vccnz L_pq_retry
L_pq_ok:
    s_mov_b64 exec, -1
    """)
    cold(f"""
L_pq_retry:
    s_sub_u32 s47, s47, 1
    s_cbranch_scc1 L_pq_ok
    s_cmp_lg_u32 s47, {SPIN-TFALL}
    s_cbranch_scc1 L_pq_nf
    s_mov_b32 s54, 1
    """)
    cold.setexec(0x00010001)
    cold.tag(208, 253)
    cold(f"""
    global_store_dword v38, v253, {WG} sc1
    global_store_dwordx4 v5, v[208:211], {WG} sc1
    v_mov_b32 v41, 1
    ds_write_b32 v40, v41 offset:{L_MODE}
L_pq_nf:
    s_mov_b64 exec, vcc
    """)
    cold.toggle(); pollq(cold)
    cold("s_waitcnt vmcnt(0)\ns_branch L_pq")
    p(f"""
    v_add_f32 v28, v28, v32
    v_add_f32 v30, v30, v34
    v_add_f32 v29, v29, v33
    v_add_f32 v31, v31, v35
    s_nop 0
    v_permlane32_swap_b32 v28, v30
    v_permlane32_swap_b32 v29, v31
    v_add_f32 v28, v28, v30
    v_add_f32 v29, v29, v31
    v_cvt_pk_bf16_f32 v28, v28, v29
    ds_write_b32 v15, v28
    s_waitcnt lgkmcnt(0)
    """)
    p.stamp("q_ok")
    p.cnt("#pq")
    p("s_barrier")
    w_issue(range(early, 6-hold))
    p(f"""
    s_lshl_b32 s31, s30, 2
    s_add_u32 s31, s31, s3
    s_lshl_b32 s31, s31, 7
    s_add_u32 s31, s31, {GB}
    v_and_b32 v14, 1, v1
    v_lshlrev_b32 v14, 6, v14
    v_lshl_add_u32 v14, v10, 4, v14
    v_add_u32 v14, s31, v14
    s_and_b32 s31, s31, 0xfffff1ff
    v_lshl_add_u32 v5, v12, 9, v13
    v_add_u32 v5, s31, v5
    s_mov_b32 s50, 0x00020002
    s_mov_b32 s51, 0x00020002
    v_and_b32 v15, 3, v1
    v_lshlrev_b32 v15, 3, v15
    v_lshl_add_u32 v15, v10, 1, v15
    s_lshl_b32 s31, s2, 5
    v_add_u32 v17, s31, v15
    s_lshl_b32 s31, s3, 5
    v_add_u32 v15, s31, v15
    v_lshlrev_b32 v4, 4, v10
    s_lshl_b32 s31, s33, 2
    s_add_u32 s31, s31, s3
    s_lshl_b32 s31, s31, 11
    s_lshl_b32 s32, s52, 6
    s_add_u32 s31, s31, s32
    s_add_u32 s31, s31, {YB}
    v_add_u32 v16, s31, v4                   ; Y voff
    s_lshl_b32 s31, s2, 11
    s_add_u32 s31, s31, {YB}
    v_add_u32 v13, s31, v2
    s_mov_b32 s47, {SPIN}
    """)
    p.wait("u1")
    p.stamp("gu")
    p("s_barrier")
    for m in range(2):
        for s in range(2):
            b = 192 + 8*m + 4*s
            p(f"ds_read_b64_tr_b16 v[{b}:{b+1}], v3 offset:{L_G+8192*m+4096*s}")
            p(f"ds_read_b64_tr_b16 v[{b+2}:{b+3}], v3 offset:{L_G+8192*m+4096*s+512}")
    for m in range(2):
        for s in range(2):
            p.lg(6-2*(2*m+s))
            p(f"{MF} {R4(208+4*m)}, {R4(192+8*m+4*s)}, {R4(20+4*s)}, {'0' if s==0 else R4(208+4*m)}")
    p.setexec(0x00030003)
    p("s_nop 5")
    for i in range(4): p(f"v_cndmask_b32 v{208+i}, v{208+i}, v{212+i}, s[50:51]")
    pub(p, "pubg", 14, 208)
    p("s_mov_b64 exec, -1")
    p.stamp("pubg")
    if opts.get("b4b"):
        p.wait(opts["b4b"]); p("s_barrier")
    if opts.get("hdelay"): p(f"s_sleep {opts['hdelay']}")
    p.vmem("pg", f"global_load_dwordx4 v[72:75], v5, {PB} sc1")
    w_issue(range(6-hold, 6))
    p.wait("pg")
    p("L_pg:")
    p.chk([72], 76, 77, 78)
    p(f"""
    v_cmp_ne_u32 vcc, 0, v78
    s_cbranch_vccnz L_pg_retry
L_pg_ok:
    s_mov_b64 exec, -1
    """)
    cold(f"""
L_pg_retry:
    s_sub_u32 s47, s47, 1
    s_cbranch_scc1 L_pg_ok
    s_mov_b64 exec, vcc
    """)
    cold.toggle()
    cold(f"global_load_dwordx4 v[72:75], v5, {PB} sc1\ns_waitcnt vmcnt(0)\ns_branch L_pg")
    c1 = -2*0.7978845608028654*LOG2E
    p(f"""
    v_permlane32_swap_b32 v72, v74
    v_permlane32_swap_b32 v73, v75
    v_add_f32 v72, v72, v74
    v_add_f32 v73, v73, v75
    s_nop 1
    v_permlane16_swap_b32 v72, v73
    v_add_f32 v72, v72, v73
    s_nop 1
    v_add_f32_dpp v72, v72, v72 row_ror:8 {DPP}
    v_cvt_pk_bf16_f32 v72, 0, v72
    v_mul_f32 v73, v72, v72
    v_mul_f32 v73, {hx(f32(0.044715))}, v73
    v_mov_b32_dpp v74, v72 row_ror:4 {DPP}
    v_fma_f32 v73, v73, v72, v72
    v_mul_f32 v73, {hx(f32(c1))}, v73
    v_exp_f32 v73, v73
    s_nop 0
    v_add_f32 v73, 1.0, v73
    v_rcp_f32 v73, v73
    s_nop 0
    v_mul_f32 v72, v72, v73
    v_cvt_pk_bf16_f32 v72, 0, v72
    v_mul_f32 v72, v72, v74
    v_cvt_pk_bf16_f32 v72, v72, v72
    v_and_b32 v72, s46, v72
    """)
    p.setexec(0x000f000f)
    p(f"""
    ds_write_b16 v15, v72 offset:{L_OV+256}
    s_mov_b64 exec, -1
    s_waitcnt vmcnt(0) lgkmcnt(0)
    """)
    p.stamp("allin")
    p("s_barrier")
    def frd(s):
        p(f"ds_read_b128 {R4(40+4*s)}, v4 offset:{L_OV+64*s}")
        p(f"ds_read_b64_tr_b16 v[{192+4*s}:{193+4*s}], v3 offset:{L_WO+4096*s}")
        p(f"ds_read_b64_tr_b16 v[{194+4*s}:{195+4*s}], v3 offset:{L_WO+4096*s+512}")
    for s in range(4): frd(s)
    for s in range(6):
        p(f"s_waitcnt lgkmcnt({min(9, 15-3*s)})")
        p(f"{MF} v[232:235], {R4(192+4*s)}, {R4(40+4*s)}, {'0' if s==0 else 'v[232:235]'}")
        if s < 2: frd(s+4)
    p.setexec(0x00010001)
    p("s_nop 5")
    p.tag(232, 253)
    p(f"global_store_dwordx4 v16, v[232:235], {WS} sc1")
    p("s_mov_b64 exec, -1")
    p.stamp("pubY")
    p(f"""
    s_cmp_ge_u32 s2, 32
    s_cbranch_scc1 L_fin
    s_cmp_lg_u32 s3, {opts.get("rw", 0)}
    s_cbranch_scc1 L_fin
    global_load_ushort v60, v17, {X}
    s_mov_b32 s47, {SPIN}
L_py:
    global_load_dwordx4 v[40:43], v13, {WS} sc1
    global_load_dwordx4 v[44:47], v13, {WS} offset:1024 sc1
    s_waitcnt vmcnt(0)
    """)
    p.chk([40, 44], 48, 49, 50, "s36")
    p(f"""
    v_cmp_ne_u32 vcc, 0, v50
    s_cbranch_vccz L_py_ok
    s_mov_b64 exec, vcc
    s_sub_u32 s47, s47, 1
    s_cbranch_scc0 L_py
L_py_ok:
    s_mov_b64 exec, -1
    v_add_f32 v40, v40, v44
    v_add_f32 v42, v42, v46
    v_add_f32 v41, v41, v45
    v_add_f32 v43, v43, v47
    v_lshlrev_b32 v60, 16, v60
    v_permlane32_swap_b32 v40, v42
    v_permlane32_swap_b32 v41, v43
    v_add_f32 v40, v40, v42
    v_add_f32 v41, v41, v43
    s_nop 1
    v_permlane16_swap_b32 v40, v41
    v_add_f32 v40, v40, v41
    s_nop 1
    v_add_f32_dpp v40, v40, v40 row_ror:4 {DPP}
    s_nop 1
    v_add_f32_dpp v40, v40, v40 row_ror:8 {DPP}
    """)
    p.setexec(0x000f000f)
    p(f"""
    v_add_f32 v40, v40, v60
    v_cvt_pk_bf16_f32 v40, v40, v40
    global_store_short v17, v40, {OUT}
    s_cmp_lg_u32 s2, 0
    s_cbranch_scc1 L_fin
    s_mov_b64 exec, 1
    v_mov_b32 v42, 0
    global_store_dword v42, v253, {WS}
L_fin:
    """)
    E = NSTAMP - 1
    if "amp" in opts:
        i = opts["amp"]
        p(f"""
        s_memrealtime s[{64+2*E}:{65+2*E}]
        s_waitcnt lgkmcnt(0)
        s_cmp_lg_u32 s2, {opts.get("ampwg", 0)}
        s_cbranch_scc1 L_end
        s_cmp_lg_u32 s62, {opts.get("ampw", 0)}
        s_cbranch_scc1 L_end
        s_sub_u32 s63, s{64+2*i}, s64
        s_mul_i32 s63, s63, 10
        s_min_u32 s63, s63, 100000
        s_add_u32 s63, s63, s{64+2*E}
L_amp:
        s_memrealtime s[50:51]
        s_waitcnt lgkmcnt(0)
        s_sub_u32 s61, s50, s63
        s_cmp_lt_i32 s61, 0
        s_cbranch_scc1 L_amp
        """)
    elif opts.get("stamps"):
        p(f"""
        s_memrealtime s[{64+2*E}:{65+2*E}]
        s_sleep 127
        s_waitcnt lgkmcnt(0)
        s_lshl_b32 s50, s2, 3
        s_add_u32 s50, s50, s62
        s_lshl_b32 s50, s50, 8
        s_add_u32 s50, s50, {STAMP_OFF}
        s_mov_b64 exec, 1
        v_mov_b32 v3, s50
        """)
        for i in range(NSTAMP):
            p(f"v_mov_b32 v4, s{64+2*i}\nv_mov_b32 v5, s{65+2*i}\nglobal_store_dwordx2 v3, v[4:5], {WS} offset:{8*i}")
    p("s_endpgm")
    al = a.L; pl = p.L
    if opts.get("heads", 1):
        ia = next(i for i, l in enumerate(al) if "HEAD_END" in l)
        body = c.L + al[:ia] + ["    s_branch L_A2"] + pl + ["L_A2:"] + al[ia:] + cold.L
    else:
        body = c.L + al + pl + cold.L
    body += ["L_end:", "    s_endpgm"]
    opts["names"] = [f"{p.names[i] if i < len(p.names) else '-'}|{a.names[i] if i < len(a.names) else '-'}" for i in range(E)] + ["end"]
    hdr = open("cdna_kernels/" + NAME + ".s.ref").read().split("; Override")[0]
    return hdr + f"""; @launch grid=(256,1,1) block=(512,1,1) lds={opts.get("lds", LDS_BYTES)}
.amdgcn_target "amdgcn-amd-amdhsa--gfx950"
.text
.globl {NAME}_kernel
.p2align 8
.type {NAME}_kernel,@function
{NAME}_kernel:
""" + "\n".join(body) + f"""
.section .rodata,"a"
.p2align 6
.amdhsa_kernel {NAME}_kernel
  .amdhsa_next_free_vgpr 256
  .amdhsa_next_free_sgpr 102
  .amdhsa_accum_offset 256
  .amdhsa_group_segment_fixed_size 0
  .amdhsa_kernarg_size 96
  .amdhsa_user_sgpr_count 2
  .amdhsa_user_sgpr_kernarg_segment_ptr 1
  .amdhsa_system_sgpr_workgroup_id_x 1
  .amdhsa_float_denorm_mode_32 3
.end_amdhsa_kernel
"""

if __name__ == "__main__":
    out = sys.argv[1]
    opts = {}
    for kv in sys.argv[2:]:
        k, v = kv.split("=")
        try: v = int(v)
        except ValueError: pass
        opts[k] = v
    open(out, "w").write(build(opts))
    if opts.get("stamps"): print(",".join(opts["names"]))
```

```python
import sys, struct, math
NAME = "parallel_sum__sliding_block_cached__geglu_ffn__decode"
STAMP_OFF = 0x10000000
def f32(x): return struct.unpack("<I", struct.pack("<f", x))[0]
def hx(x): return "0x%08x" % (x & 0xffffffff)
DPP = "row_mask:0xf bank_mask:0xf"
NSTAMP = 17

class Gen:
    def __init__(self, opts, tag=""):
        self.L = []; self.o = opts; self.vm = []; self.nst = 1; self.names = ["start"]
    def __call__(self, s):
        for l in s.strip("\n").split("\n"):
            l = l.strip()
            if not l: continue
            self.L.append(l if l.endswith(":") else "    " + l)
    def vmem(self, name, s):
        self(s); self.vm.append(name)
    def wait(self, name):
        idx = max(i for i, n in enumerate(self.vm) if n == name)
        n = len(self.vm) - 1 - idx
        assert n <= 63
        self(f"s_waitcnt vmcnt({n})")
    def lg(self, n):
        self(f"s_waitcnt lgkmcnt({n})")
    def stamp(self, label=""):
        if not self.o.get("stamps"): return
        i = self.nst; self.nst += 1
        assert i < NSTAMP - 1
        self(f"s_memrealtime s[{64+2*i}:{65+2*i}]   ; stamp {i} {label}")
        self.names.append(label)
    def cnt(self, label):
        if not self.o.get("stamps"): return
        i = self.nst; self.nst += 1
        self(f"s_sub_u32 s31, {SPIN}, s47\ns_mul_i32 s31, s31, 100\ns_add_u32 s{64+2*i}, s64, s31\ns_addc_u32 s{65+2*i}, s65, 0")
        self.names.append(label)
    def setexec(self, m32):
        self(f"s_mov_b32 exec_lo, {hx(m32)}\ns_mov_b32 exec_hi, {hx(m32)}")
    def tag(self, r, tv=252):
        for i in range(4): self(f"v_perm_b32 v{r+i}, v{r+i}, v{tv}, s{38+i}")
    def chk(self, units, t0, t1, acc, ts="s60"):
        for n, r in enumerate(units):
            d = acc if n == 0 else t0
            self(f"v_perm_b32 v{t0}, v{r+1}, v{r}, s44\nv_perm_b32 v{t1}, v{r+3}, v{r+2}, s45")
            self(f"v_bitop3_b32 v{d}, v{t0}, v{t1}, {ts} bitop3:0x56")
            if n: self(f"v_or_b32 v{acc}, v{acc}, v{t0}")
    def toggle(self):
        self(f"s_and_b32 s31, s47, s54\ns_cselect_b64 {PB}, {WG}, {WS}\ns_cselect_b32 s60, s36, s55")

HB = 0x800; QB = 0x1000; GB = 0x11000; MLB = 0x31000; YB = 0x38000; OB = 0x50000; GOFF = 0x100000
L_WQ = 0x0000; L_G = 0x4000; L_WO = 0x8000; L_XN = 0xE000; L_M = 0xE400; L_L = 0xE440; L_F = 0xE480; L_QT = 0xE700; L_OV = 0xE500
L_Q = 0xE800; QSTR = 272; L_O = 0x0000; OSTR = 272
LDS_BYTES = 98304
SPIN = 200000; TFALL = 256
LOG2E = 1.4426950408889634
X, K, V, WQ, WO, G, U, D, OUT, WS = "s[4:5]", "s[6:7]", "s[8:9]", "s[10:11]", "s[12:13]", "s[16:17]", "s[18:19]", "s[20:21]", "s[22:23]", "s[26:27]"
WG, PB = "s[56:57]", "s[58:59]"
MF = "v_mfma_f32_16x16x32_bf16"
def R4(r): return f"v[{r}:{r+3}]"

def build(opts):
    c = Gen(opts); p = Gen(opts); a = Gen(opts); cold = Gen(opts)
    NT = " nt" if opts.get("nt", 1) else ""
    pq_at = opts.get("pq_at", 6)
    pq2 = opts.get("pq2", 0)
    F1, FG, FQ, FW, FP, FV = L_F, L_F+16, L_F+32, L_F+48, L_F+64, L_F+80
    npub = [0]
    def pub(g, name, voff, r, nreg=4):
        n = npub[0]; npub[0] += 1
        if nreg == 4:
            g.tag(r); s = f"global_store_dwordx4 v{voff}, {R4(r)}, "
        else:
            s = f"global_store_dwordx2 v{voff}, v[{r}:{r+1}], "
        if name: g.vmem(name, s + WS)
        else: g(s + WS)
        g(f"s_cmp_lg_u32 s54, 0\ns_cbranch_scc1 L_fb{n}\nL_fr{n}:")
        cold(f"L_fb{n}:")
        if nreg == 4: cold.tag(r, 253)
        else: cold(f"v_mov_b32 v{r+1}, v253")
        cold(s + WG + f" sc1\ns_branch L_fr{n}")
    nsync = [0]
    def setflag(g, F): g(f"ds_write_b32 v42, v40 offset:{F}")
    def waitflag(g, F, reads, nreads):
        n = nsync[0]; nsync[0] += 1
        g(f"L_ps{n}:\nds_read_b128 v[44:47], v40 offset:{F}")
        reads()
        g(f"""
        s_waitcnt lgkmcnt({nreads})
        v_or3_b32 v44, v44, v45, v46
        v_or_b32 v44, v44, v47
        v_cmp_ne_u32 vcc, 0, v44
        s_cbranch_vccnz L_ps{n}
        """)
    def tags(g):
        g(f"""
        s_mul_i32 s36, s36, 0x9E3779B1
        s_add_u32 s36, s36, 0x7F4A7C15
        s_add_u32 s55, s55, 1
        s_mul_i32 s55, s55, 0x85EBCA6B
        s_xor_b32 s55, s55, s36
        s_mov_b32 s60, s55
        v_mov_b32 v252, s55
        v_mov_b32 v253, s36
        """)
    def consts(g):
        g(f"""
        s_getreg_b32 s55, hwreg(HW_REG_XCC_ID, 0, 4)
        s_add_u32 s56, s26, {GOFF}
        s_addc_u32 s57, s27, 0
        s_mov_b64 {PB}, {WS}
        s_mov_b32 s54, 0
        s_lshr_b32 s31, s29, 3
        s_lshl_b32 s52, s28, 2
        s_add_u32 s52, s52, s31                 ; 4g+hh
        s_mov_b32 s38, 0x07060500
        s_mov_b32 s39, 0x07060501
        s_mov_b32 s40, 0x07060502
        s_mov_b32 s41, 0x07060503
        s_mov_b32 s44, 0x0c0c0400
        s_mov_b32 s45, 0x04000c0c
        s_lshl_b32 s31, s3, 2
        v_mov_b32 v42, s31
        v_mov_b32 v40, 0
        s_lshl_b32 s61, s28, 13
        s_add_u32 s61, s61, {QB}
        s_and_b32 s31, s29, 3
        s_lshl_b32 s31, s31, 11
        s_add_u32 s31, s31, s61
        s_and_b32 s32, s29, 28
        s_add_u32 s32, s32, s3
        s_lshl_b32 s32, s32, 6
        s_add_u32 s31, s31, s32
        v_lshl_add_u32 v5, v10, 4, s31
        s_lshl_b32 s31, s30, 2
        s_add_u32 s31, s31, {HB}
        v_mov_b32 v38, s31
        s_lshl_b32 s31, s3, 6
        v_lshl_add_u32 v41, v10, 4, s31
        """)
    if opts.get("stamps"): c("s_memrealtime s[64:65]")
    c(f"""
    s_load_dwordx16 s[4:19], s[0:1], 0
    s_load_dwordx8 s[20:27], s[0:1], 64
    s_cmp_ge_u32 s2, 256
    s_cbranch_scc1 L_end
    s_getpc_b64 s[34:35]
L_pc:
    v_lshlrev_b32 v14, 4, v0
    v_min_u32 v14, L_end-L_pc, v14
    global_load_dword v254, v14, s[34:35]
    """)
    if opts.get("stamps"):
        for i in range(1, NSTAMP): c(f"s_mov_b64 s[{64+2*i}:{65+2*i}], 0")
    c(f"""
    v_lshrrev_b32 v2, 6, v0
    v_and_b32 v1, 63, v0
    v_readfirstlane_b32 s62, v2
    s_and_b32 s28, s2, 7
    s_lshr_b32 s29, s2, 3
    s_lshl_b32 s30, s28, 5
    s_add_u32 s30, s30, s29                 ; p
    v_lshlrev_b32 v2, 4, v1                 ; lane*16
    v_lshrrev_b32 v12, 3, v1                ; lane>>3
    v_and_b32 v13, 0x70, v2                 ; (lane&7)*16
    v_and_b32 v9, 15, v1
    v_lshrrev_b32 v10, 4, v1
    s_and_b32 s3, s62, 3
    s_cmp_ge_u32 s62, 4
    s_cbranch_scc0 L_P
    """)
    KR, VR, VT = 48, 80, 112
    a(f"""
    v_lshlrev_b32 v14, 2, v1
    v_mov_b32 v15, -1
    ds_write_b32 v14, v15 offset:{L_M}
    s_lshl_b32 s31, s28, 24
    s_lshl_b32 s32, s29, 15
    s_add_u32 s31, s31, s32
    s_lshl_b32 s32, s3, 13
    s_add_u32 s31, s31, s32
    s_add_u32 s31, s31, {61440*256+4096}
    v_lshlrev_b32 v7, 8, v9
    v_lshl_add_u32 v7, v10, 4, v7
    v_add_u32 v7, s31, v7                   ; K voff (+4096)
    v_lshlrev_b32 v8, 4, v9
    v_lshl_add_u32 v8, v10, 10, v8
    v_add_u32 v8, s31, v8                   ; V voff (+4096)
    s_setprio 1
    s_waitcnt lgkmcnt(0)
    """)
    a.stamp("karg")
    a(f"s_load_dword s36, {WS}, 0")
    a("s_barrier   ; B0")
    if opts.get("kdelay"): a(f"s_sleep {opts['kdelay']}")
    for t in range(2):
        for s in range(4):
            if opts.get("klin"): a.vmem(f"K{t}{s}", f"global_load_dwordx4 {R4(KR+16*t+4*s)}, v8, {K} offset:{4096*t-4096+256*s}{NT}")
            else: a.vmem(f"K{t}{s}", f"global_load_dwordx4 {R4(KR+16*t+4*s)}, v7, {K} offset:{4096*t-4096+64*s}{NT}")
    a.stamp("K_iss")
    a("; HEAD_END")
    consts(a)
    a(f"""
    s_lshl_b32 s31, s3, 9
    s_add_u32 s31, s31, s61
    s_add_u32 s31, s31, 4096
    v_and_b32 v14, 0x1f0, v2
    v_lshrrev_b32 v6, 5, v1
    v_lshl_add_u32 v6, v6, 11, v14
    v_add_u32 v6, s31, v6
    s_lshl_b32 s31, s28, 7
    s_add_u32 s31, s31, {HB}
    v_lshrrev_b32 v14, 2, v14
    v_add_u32 v39, s31, v14
    """)
    def pollq(g, r=28, h=36):
        g(f"global_load_dwordx4 {R4(r)}, v6, {PB} offset:-4096 sc1\nglobal_load_dwordx4 {R4(r+4)}, v6, {PB} sc1\nglobal_load_dword v{h}, v39, {PB} sc1")
    for t in range(9):
        if t == opts.get("gate_v", 0): waitflag(a, FP, lambda: None, 0)
        if t == opts.get("gate_g", 8): setflag(a, FV)
        if t == pq_at:
            pollq(a); a.vm += ["pq0", "pq1", "pq"]
            a.stamp("pq_iss")
        if t < 8:
            a.vmem(f"V{t}", f"global_load_dwordx4 {R4(VR+4*t)}, v8, {V} offset:{4096*(t>>2)-4096+256*(t&3)}{NT}")
    if pq2:
        pollq(a, 144, 152); a.vm += ["pr0", "pr1", "pr"]
    a.stamp("V_iss")
    for r in range(240, 244): a(f"v_mov_b32 v{r}, 0x3f803f80")
    for r in range(216, 232): a(f"v_mov_b32 v{r}, 0")
    a(f"""
    s_mov_b32 s42, 0x05040100
    s_mov_b32 s43, 0x07060302
    s_mul_i32 s31, s3, {QSTR}
    s_add_u32 s31, s31, {L_Q}
    v_and_b32 v24, 31, v1
    v_lshl_add_u32 v24, v24, 3, s31
    v_lshrrev_b32 v14, 5, v1
    v_lshl_add_u32 v24, v14, 2, v24
    v_and_b32 v14, 3, v1
    v_mul_u32_u24 v14, {QSTR}, v14
    v_lshl_add_u32 v14, v10, 4, v14
    s_mov_b32 s48, {hx(f32(128**-0.5))}
    s_mov_b32 s49, {hx(f32(LOG2E))}
    s_mul_i32 s31, s3, {8*OSTR}
    v_mul_u32_u24 v15, {OSTR}, v10
    v_lshl_add_u32 v15, v9, 4, v15
    v_add_u32 v15, s31, v15
    v_add_u32 v16, v42, v2
    v_and_b32 v17, 3, v1
    v_mul_u32_u24 v17, {OSTR}, v17
    v_and_b32 v18, 12, v1
    v_add_u32 v18, v18, v10
    v_lshl_add_u32 v17, v18, 4, v17
    s_mul_i32 s31, s3, {4*OSTR}
    v_add_u32 v17, s31, v17
    v_lshlrev_b32 v18, 4, v10
    s_lshl_b32 s31, s30, 3
    s_add_u32 s31, s31, s3
    s_lshl_b32 s31, s31, 8
    s_add_u32 s31, s31, {OB}
    v_lshlrev_b32 v19, 9, v10
    v_lshl_add_u32 v19, v9, 4, v19
    v_add_u32 v19, s31, v19                  ; O voff
    s_lshl_b32 s31, s28, 10
    s_lshl_b32 s32, s29, 3
    s_add_u32 s31, s31, s32
    s_add_u32 s31, s31, {MLB}
    v_lshl_add_u32 v20, v10, 8, s31
    s_lshl_b32 s31, s28, 16
    s_and_b32 s32, s29, 24
    s_lshl_b32 s32, s32, 6
    s_add_u32 s31, s31, s32
    s_lshl_b32 s32, s3, 7
    s_add_u32 s31, s31, s32
    s_add_u32 s31, s31, {OB+4096}
    v_lshl_add_u32 v7, v12, 13, v13
    v_add_u32 v7, s31, v7
    s_lshl_b32 s31, s52, 8
    s_add_u32 s31, s31, {MLB}
    v_lshl_add_u32 v21, v12, 5, s31
    v_and_b32 v22, 3, v1
    v_lshlrev_b32 v22, 6, v22
    v_lshl_add_u32 v22, v10, 4, v22
    v_bfe_u32 v23, v1, 2, 1
    v_lshl_add_u32 v22, v23, 1, v22
    v_add_u32 v22, v42, v22
    s_mov_b32 s47, {SPIN}
    s_waitcnt lgkmcnt(0)
    """)
    tags(a)
    def vperm(tp):
        a.wait(f"V{2*tp+1}")
        for d in range(4):
            lo = VR + 8*tp + d; hi = lo + 4
            a(f"v_perm_b32 v{VT+4*(2*d)+tp}, v{hi}, v{lo}, s42")
            a(f"v_perm_b32 v{VT+4*(2*d+1)+tp}, v{hi}, v{lo}, s43")
    npre = min(4, pq_at // 2)
    for tp in range(npre): vperm(tp)
    a.wait("pq")
    a.stamp("pq_ret")
    a("L_pq:")
    a.chk([28, 32], 25, 26, 27)
    a(f"""
    v_xor_b32 v25, s60, v36
    v_or_b32 v27, v27, v25
    v_cmp_ne_u32 vcc, 0, v27
    s_cbranch_vccnz L_pq_retry
L_pq_ok:
    s_mov_b64 exec, -1
    """)
    cold("L_pq_retry:")
    if pq2:
        cold(f"s_cmp_lg_u32 s47, {SPIN}\ns_cbranch_scc1 L_pq_r2\ns_sub_u32 s47, s47, 1\ns_waitcnt vmcnt(0)")
        for i in range(9): cold(f"v_mov_b32 v{28+i}, v{144+i}")
        cold("s_branch L_pq\nL_pq_r2:")
    cold(f"""
    s_sub_u32 s47, s47, 1
    s_cbranch_scc1 L_pq_ok
    s_cmp_lg_u32 s47, {SPIN-TFALL}
    s_cbranch_scc1 L_pq_nf
    s_mov_b32 s54, 1
    s_mov_b64 exec, -1
    s_mov_b64 s[50:51], vcc
    """)
    waitflag(cold, FP, lambda: cold(f"ds_read_b128 v[208:211], v41 offset:{L_QT}"), 0)
    cold("s_mov_b64 vcc, s[50:51]")
    cold.setexec(0x00010001)
    cold.tag(208, 253)
    cold(f"""
    global_store_dword v38, v253, {WG} sc1
    global_store_dwordx4 v5, v[208:211], {WG} sc1
L_pq_nf:
    s_mov_b64 exec, vcc
    """)
    cold.toggle(); pollq(cold)
    cold("s_waitcnt vmcnt(0)\ns_branch L_pq")
    a(f"""
    v_add_f32 v28, v28, v32
    v_add_f32 v30, v30, v34
    v_add_f32 v29, v29, v33
    v_add_f32 v31, v31, v35
    s_nop 0
    v_permlane32_swap_b32 v28, v30
    v_permlane32_swap_b32 v29, v31
    v_add_f32 v28, v28, v30
    v_add_f32 v29, v29, v31
    v_cvt_pk_bf16_f32 v28, v28, v29
    ds_write_b32 v24, v28
    """)
    setflag(a, FQ)
    a.cnt("#pq")
    def qreads():
        for s in range(4): a(f"ds_read_b128 {R4(192+4*s)}, v14 offset:{L_Q+64*s}")
    waitflag(a, FQ, qreads, 4)
    a.stamp("q_ok")
    for s in range(4):
        a.lg(3-s)
        for t in range(2):
            a(f"{MF} {R4(208+4*t)}, {R4(KR+16*t+4*s)}, {R4(192+4*s)}, {'0' if s==0 else R4(208+4*t)}")
    a(f"s_mov_b32 s47, {SPIN}\ns_nop 6")
    for i in range(8): a(f"v_cvt_pk_bf16_f32 v{208+i}, 0, v{208+i}")
    for i in range(8): a(f"v_mul_f32 v{208+i}, s48, v{208+i}")
    for i in range(8): a(f"v_cvt_pk_bf16_f32 v{208+i}, 0, v{208+i}")
    a("""
    v_max3_f32 v244, v208, v209, v210
    v_max3_f32 v245, v211, v212, v213
    v_max3_f32 v244, v244, v214, v215
    v_max_f32 v244, v244, v245
    """)
    for sw in (16, 32):
        a(f"v_mov_b32 v245, v244\ns_nop 1\nv_permlane{sw}_swap_b32 v244, v245\nv_max_f32 v244, v244, v245")
    a("v_mul_f32 v244, s49, v244")
    for i in range(8): a(f"v_fma_f32 v{208+i}, v{208+i}, s49, -v244")
    for i in range(8): a(f"v_exp_f32 v{208+i}, v{208+i}")
    for e in range(4):
        m = 0xF << (4*e); a.setexec(m | (m << 16))
        for i in range(4): a(f"v_cvt_pk_bf16_f32 v{216+4*e+i}, v{208+2*i}, v{209+2*i}")
    a("s_mov_b64 exec, -1\nv_min_u32 v244, -2, v244")
    a(f"{MF} v[248:251], v[240:243], v[216:219], 0")
    a.stamp("sm")
    if npre < 4:
        for tp in range(npre, 4): vperm(tp)
        a("s_nop 1")
    a.stamp("V")
    for e in range(4):
        for hf in range(2):
            a(f"{MF} {R4(232+4*hf)}, {R4(VT+4*(4*hf+e))}, {R4(216+4*e)}, {'0' if e==0 else R4(232+4*hf)}")
    a(f"""
    s_mov_b64 exec, 0xf
    ds_write_b32 v16, v248 offset:{L_L}
    s_mov_b64 exec, -1
    s_nop 3
    ds_write_b128 v15, v[232:235] offset:{L_O}
    ds_write_b128 v15, v[236:239] offset:{L_O+4*OSTR}
    s_mov_b64 exec, 0xf
    ds_write_b32 v16, v244 offset:{L_M}
    s_mov_b64 exec, -1
    s_cmp_ge_u32 s3, 2
    s_cbranch_scc1 L_nocomb
L_cmb:
    ds_read_b128 v[208:211], v18 offset:{L_M}
    ds_read_b128 v[212:215], v18 offset:{L_L}
    """)
    for w in range(4):
        a(f"ds_read_b128 {R4(216+4*w)}, v17 offset:{L_O+8*OSTR*w}")
    a.lg(5)
    a("""
    v_max3_u32 v246, v208, v209, v210
    v_max3_f32 v244, v208, v209, v210
    v_max_u32 v246, v246, v211
    v_max_f32 v244, v244, v211
    v_cmp_eq_u32 vcc, -1, v246
    s_cbranch_vccnz L_cmb
    """)
    for w in range(4): a(f"v_sub_f32 v{208+w}, v{208+w}, v244")
    for w in range(4): a(f"v_exp_f32 v{208+w}, v{208+w}")
    a.lg(4)
    a("v_mul_f32 v246, v208, v212")
    for w in range(1, 4): a(f"v_fmac_f32 v246, v{208+w}, v{212+w}")
    a("v_rcp_f32 v247, v246\nv_log_f32 v246, v246\ns_waitcnt lgkmcnt(0)")
    for i in range(4): a(f"v_mul_f32 v{232+i}, v208, v{216+i}")
    a("v_add_f32 v244, v244, v246\nv_mov_b32 v245, v252")
    for w in range(1, 4):
        for i in range(4): a(f"v_fmac_f32 v{232+i}, v{208+w}, v{216+4*w+i}")
    for i in range(4): a(f"v_mul_f32 v{232+i}, v247, v{232+i}")
    pub(a, None, 19, 232)
    a.setexec(0x00010001)
    pub(a, None, 20, 244, nreg=2)
    a("s_mov_b64 exec, -1\nL_nocomb:")
    a.stamp("pubO")
    if opts.get("fw", "w3") != "none" and opts.get("usefw", 1): waitflag(a, FW, lambda: None, 0)
    a("L_po:")
    a.toggle()
    for k in range(2): a(f"global_load_dwordx4 {R4(48+4*k)}, v21, {PB} offset:{16*k} sc1")
    for k in range(4): a(f"global_load_dwordx4 {R4(56+4*k)}, v7, {PB} offset:{2048*k-4096} sc1")
    a("s_waitcnt vmcnt(0)")
    a.chk([56, 60, 64, 68], 76, 77, 78)
    a(f"""
    v_xor_b32 v76, s60, v49
    v_xor_b32 v77, s60, v51
    v_or3_b32 v78, v78, v76, v77
    v_xor_b32 v76, s60, v53
    v_xor_b32 v77, s60, v55
    v_or3_b32 v78, v78, v76, v77
    v_cmp_ne_u32 vcc, 0, v78
    s_cbranch_vccz L_po_ok
    s_mov_b64 exec, vcc
    s_sub_u32 s47, s47, 1
    s_cbranch_scc0 L_po
L_po_ok:
    s_mov_b64 exec, -1
    """)
    a.stamp("O_ok")
    a(f"""
    v_max3_f32 v76, v48, v50, v52
    v_max_f32 v76, v76, v54
    s_nop 1
    v_max_f32_dpp v76, v76, v76 row_ror:8 {DPP}
    v_mov_b32 v77, v76
    s_nop 1
    v_permlane16_swap_b32 v76, v77
    v_max_f32 v76, v76, v77
    v_mov_b32 v77, v76
    s_nop 1
    v_permlane32_swap_b32 v76, v77
    v_max_f32 v76, v76, v77
    v_sub_f32 v48, v48, v76
    v_sub_f32 v50, v50, v76
    v_sub_f32 v52, v52, v76
    v_sub_f32 v54, v54, v76
    v_exp_f32 v48, v48
    v_exp_f32 v50, v50
    v_exp_f32 v52, v52
    v_exp_f32 v54, v54
    v_mul_f32 v56, v48, v56
    v_mul_f32 v57, v48, v57
    v_mul_f32 v58, v48, v58
    v_mul_f32 v59, v48, v59
    v_add_f32 v49, v48, v50
    v_add_f32 v51, v52, v54
    v_add_f32 v49, v49, v51
    v_mov_b32 v77, v49
    """)
    for k in range(1, 4):
        for i in (0, 2, 1, 3): a(f"v_fmac_f32 v{56+i}, v{48+2*k}, v{56+4*k+i}")
        if k == 1: a("v_permlane32_swap_b32 v49, v77\nv_add_f32 v49, v49, v77\nv_mov_b32 v77, v49")
        if k == 2: a("v_permlane16_swap_b32 v49, v77\nv_add_f32 v49, v49, v77")
    a(f"""
    v_add_f32_dpp v49, v49, v49 row_ror:8 {DPP}
    v_permlane32_swap_b32 v56, v58
    v_permlane32_swap_b32 v57, v59
    v_rcp_f32 v49, v49
    v_add_f32 v56, v56, v58
    v_add_f32 v57, v57, v59
    s_nop 1
    v_permlane16_swap_b32 v56, v57
    v_add_f32 v56, v56, v57
    s_nop 1
    v_add_f32_dpp v56, v56, v56 row_ror:8 {DPP}
    v_mul_f32 v56, v56, v49
    v_cvt_pk_bf16_f32 v56, v56, v56
    ds_write_b16 v22, v56 offset:{L_OV}
    s_waitcnt lgkmcnt(0)
    """)
    a.stamp("o_wr")
    a.cnt("#po")
    a("s_barrier")
    if opts.get("dirty"):
        a(f"s_lshl_b32 s31, s2, 2\ns_add_u32 s31, s31, s3\ns_lshl_b32 s31, s31, 12\ns_add_u32 s31, s31, 0x400000\nv_add_u32 v3, s31, v2")
        for i in range(opts["dirty"]): a(f"global_store_dwordx4 v3, v[48:51], {WS} offset:{1024*i}")
    a("s_branch L_fin" if opts.get("stamps") else "s_endpgm")

    p(f"""
L_P:
    s_and_b32 s31, s29, 3
    s_lshl_b32 s31, s31, 2
    s_add_u32 s31, s31, s3
    s_lshl_b32 s31, s31, 18
    s_lshr_b32 s32, s30, 2
    s_lshl_b32 s32, s32, 7
    s_add_u32 s31, s31, s32
    v_and_b32 v43, 16, v1
    v_lshlrev_b32 v43, 1, v43
    v_xor_b32 v43, v43, v13
    v_lshl_add_u32 v3, v12, 13, v43
    v_add_u32 v3, s31, v3
    v_xor_b32 v4, 0x10040, v3
    v_add_u32 v7, 0x20000, v3
    v_xor_b32 v6, 0x30040, v3
    s_lshl_b32 m0, s3, 12
    s_setprio 2
    s_waitcnt lgkmcnt(0)
    """)
    p.stamp("karg")
    p.vmem("x", f"global_load_dwordx4 v[16:19], v2, {X}")
    for i in range(4):
        p.vmem(f"wq{i}", f"global_load_lds_dwordx4 v{(3,4,7,6)[i]}, {WQ}{NT}")
        if i < 3: p("s_add_u32 m0, m0, 1024\ns_nop 0")
    p(f"s_load_dword s36, {WS}, 0")
    p("s_barrier   ; B0")
    consts(p)
    if opts.get("pre", 2):
        p(f"""
        s_lshl_b32 s31, s30, 11
        s_add_u32 s31, s31, {OB}                ; w0: O lines
        s_mov_b32 s32, 15
        s_lshl_b32 s48, s30, 9
        s_add_u32 s48, s48, {GB}
        s_cmp_eq_u32 s3, 1
        s_cselect_b32 s31, s48, s31
        s_cselect_b32 s32, 3, s32
        s_lshl_b32 s48, s30, 8
        s_add_u32 s48, s48, {QB}
        s_cmp_eq_u32 s3, 2
        s_cselect_b32 s31, s48, s31
        s_cselect_b32 s32, 1, s32
        s_lshl_b32 s48, s30, 5
        s_add_u32 s48, s48, {MLB}
        s_cmp_eq_u32 s3, 3
        s_cselect_b32 s31, s48, s31
        s_cselect_b32 s32, 0, s32
        v_and_b32 v44, s32, v1
        v_lshl_add_u32 v44, v44, 7, s31
        v_cmp_gt_u32 vcc, 32, v1
        s_nop 1
        v_cndmask_b32 v44, v38, v44, vcc
        """)
        p.vmem("pre", f"global_load_dword v254, v44, {WS}{' nt' if opts.get('pre', 2) == 2 else ''}")
    p(f"""
    s_and_b32 s33, s29, 7
    s_and_b32 s53, s29, 24
    s_add_u32 s53, s53, s28
    s_cmp_lt_u32 s53, 28
    s_cselect_b32 s46, -1, 0
    s_cselect_b32 s32, 0, 8
    s_sub_u32 s53, s53, s32                 ; line
    s_lshl_b32 s32, s33, 2
    s_add_u32 s32, s32, s3
    s_mul_i32 s32, s32, {16*3584}
    s_lshl_b32 s31, s53, 7
    s_add_u32 s32, s32, s31
    v_mul_u32_u24 v11, 3584, v12
    v_add3_u32 v11, v11, v43, s32
    v_add_u32 v14, {8*3584}, v11
    v_xor_b32 v14, 64, v14
    v_lshl_add_u32 v37, v12, 10, v43
    s_lshl_b32 s31, s52, 2
    s_add_u32 s31, s31, s3
    s_lshl_b32 s31, s31, 15
    s_lshl_b32 s32, s33, 7
    s_add_u32 s31, s31, s32
    v_add_u32 v36, s31, v37
    s_lshl_b32 s31, s53, 2
    s_add_u32 s31, s31, s3
    s_lshl_b32 s31, s31, 14
    s_add_u32 s31, s31, s32
    v_add_u32 v37, s31, v37
    v_bfe_u32 v3, v1, 2, 2
    v_lshl_add_u32 v3, v10, 3, v3
    v_lshlrev_b32 v3, 7, v3
    v_and_b32 v4, 3, v1
    v_lshl_add_u32 v3, v4, 3, v3
    s_lshl_b32 s31, s3, 5
    v_add_u32 v3, s31, v3
    v_bfe_u32 v4, v1, 3, 2
    v_lshlrev_b32 v4, 5, v4
    v_xor_b32 v3, v3, v4
    s_and_b32 s31, s29, 3
    s_lshl_b32 s31, s31, 8
    v_lshl_add_u32 v4, v10, 4, s31
    s_lshl_b32 s31, s33, 7
    v_lshl_add_u32 v6, v10, 4, s31
    """)
    p.wait("x")
    p.stamp("x")
    xs = list(range(20, 28))
    for i in range(4):
        p(f"v_lshlrev_b32 v{xs[2*i]}, 16, v{16+i}\nv_and_b32 v{xs[2*i+1]}, 0xffff0000, v{16+i}")
    p("v_readfirstlane_b32 s31, v20\ns_nop 1")
    p("v_subrev_f32 v28, s31, v20\nv_mul_f32 v29, v28, v28")
    for i in range(1, 8):
        p(f"v_subrev_f32 v30, s31, v{xs[i]}\nv_add_f32 v28, v28, v30\nv_fmac_f32 v29, v30, v30")
    p("s_nop 0")
    for r in (1, 2, 4, 8):
        p(f"v_add_f32_dpp v28, v28, v28 row_ror:{r} {DPP}\nv_add_f32_dpp v29, v29, v29 row_ror:{r} {DPP}\ns_nop 0")
    p(f"""
    s_nop 0
    v_permlane32_swap_b32 v28, v29
    v_add_f32 v28, v28, v29
    v_mov_b32 v29, v28
    s_nop 1
    v_permlane16_swap_b32 v28, v29
    v_add_f32 v28, v28, v29
    v_mul_f32 v28, {hx(f32(1/512))}, v28
    s_nop 0
    v_readlane_b32 s32, v28, 0
    v_readlane_b32 s48, v28, 32
    s_nop 0
    v_mov_b32 v28, s32
    v_fma_f32 v29, -v28, v28, s48
    v_add_f32 v28, s31, v28
    v_max_f32 v29, 0, v29
    v_cvt_pk_bf16_f32 v28, 0, v28
    v_cvt_pk_bf16_f32 v29, 0, v29
    v_add_f32 v29, {hx(f32(1e-5))}, v29
    v_cvt_pk_bf16_f32 v29, 0, v29
    v_sqrt_f32 v29, v29
    """)
    for i in range(8): p(f"v_sub_f32 v{xs[i]}, v{xs[i]}, v28")
    p("v_cvt_pk_bf16_f32 v29, 0, v29\nv_rcp_f32 v30, v29")
    for i in range(8): p(f"v_cvt_pk_bf16_f32 v{xs[i]}, 0, v{xs[i]}")
    if opts.get("refine", 0):
        for i in range(8):
            p(f"v_mul_f32 v31, v{xs[i]}, v30\nv_fma_f32 v32, -v31, v29, v{xs[i]}\nv_fma_f32 v{xs[i]}, v32, v30, v31")
    else:
        for i in range(8): p(f"v_mul_f32 v{xs[i]}, v{xs[i]}, v30")
    for i in range(4):
        p(f"v_cvt_pk_bf16_f32 v{16+i}, v{xs[2*i]}, v{xs[2*i+1]}")
    p(f"ds_write_b128 v2, v[16:19] offset:{L_XN}")
    for i in range(4):
        p(f"ds_read_b128 {R4(20+4*i)}, v4 offset:{L_XN+64*i}")
    p(f"ds_read_b128 v[48:51], v6 offset:{L_XN}\nds_read_b128 v[52:55], v6 offset:{L_XN+64}")
    p.stamp("ln")
    p.wait("wq3")
    setflag(p, F1)
    p("s_waitcnt lgkmcnt(0)")
    tags(p)
    def trq():
        for s in range(4):
            p(f"ds_read_b64_tr_b16 v[{192+4*s}:{193+4*s}], v3 offset:{L_WQ+4096*s}")
            p(f"ds_read_b64_tr_b16 v[{194+4*s}:{195+4*s}], v3 offset:{L_WQ+4096*s+512}")
    waitflag(p, F1, trq, 8)
    p.stamp("S1")
    for s in range(4):
        p.lg(6-2*s)
        p(f"{MF} v[208:211], {R4(192+4*s)}, {R4(20+4*s)}, {'0' if s==0 else 'v[208:211]'}")
    p.setexec(0x00010001)
    p.vmem("hello", f"global_store_dword v38, v252, {WS}")
    p("s_lshl_b32 s49, s3, 11\ns_nop 3")
    p(f"ds_write_b128 v41, v[208:211] offset:{L_QT}")
    p.tag(208)
    p.vmem("pubq", f"global_store_dwordx4 v5, v[208:211], {WS}")
    p("s_mov_b64 exec, -1\ns_setprio 0")
    setflag(p, FP)
    p.stamp("pubq")
    if opts.get("gate_g", 8) <= 8: waitflag(p, FV, lambda: None, 0)
    if opts.get("gdelay"): p(f"s_sleep {opts['gdelay']}")
    for i in range(2):
        for m, (nm, P) in enumerate((("g", G), ("u", U))):
            p(f"s_add_u32 m0, s49, {L_G + 1024*i + 8192*m}\ns_nop 0")
            p.vmem(f"{nm}{i}", f"global_load_lds_dwordx4 v{11 if i==0 else 14}, {P}{NT}")
    for n in range(6):
        if n == opts.get("gate_w", 0): waitflag(p, FQ, lambda: None, 0)
        if n < 4:
            p(f"s_lshl_b32 s31, s3, 12\ns_add_u32 m0, s31, {L_WO + 1024*n}\ns_nop 0")
            p.vmem(f"w{n}", f"global_load_lds_dwordx4 v36, {WO}{NT}")
            if n < 3: p(f"v_xor_b32 v36, {hx((0x2040, 0x6040, 0x2040)[n])}, v36")
        else:
            p(f"s_add_u32 m0, s49, {L_WO + 16384 + 1024*(n-4)}\ns_nop 0")
            p.vmem(f"w{n}", f"global_load_lds_dwordx4 v37, {D}{NT}")
            if n < 5: p("v_xor_b32 v37, 0x2040, v37")
    p.stamp("iss")
    p(f"""
    s_lshl_b32 s31, s30, 2
    s_add_u32 s31, s31, s3
    s_lshl_b32 s31, s31, 7
    s_add_u32 s31, s31, {GB}
    v_and_b32 v14, 1, v1
    v_lshlrev_b32 v14, 6, v14
    v_lshl_add_u32 v14, v10, 4, v14
    v_add_u32 v14, s31, v14
    s_and_b32 s31, s31, 0xfffff1ff
    v_lshl_add_u32 v5, v12, 9, v13
    v_add_u32 v5, s31, v5
    s_mov_b32 s50, 0x00020002
    s_mov_b32 s51, 0x00020002
    v_and_b32 v15, 3, v1
    v_lshlrev_b32 v15, 3, v15
    v_lshl_add_u32 v15, v10, 1, v15
    s_lshl_b32 s31, s2, 5
    v_add_u32 v17, s31, v15
    s_lshl_b32 s31, s3, 5
    v_add_u32 v15, s31, v15
    v_lshlrev_b32 v4, 4, v10
    s_lshl_b32 s31, s33, 2
    s_add_u32 s31, s31, s3
    s_lshl_b32 s31, s31, 11
    s_lshl_b32 s32, s52, 6
    s_add_u32 s31, s31, s32
    s_add_u32 s31, s31, {YB}
    v_add_u32 v16, s31, v4                   ; Y voff
    s_lshl_b32 s31, s2, 11
    s_add_u32 s31, s31, {YB}
    v_add_u32 v13, s31, v2
    s_mov_b32 s47, {SPIN}
    """)
    p.wait("u1")
    setflag(p, FG)
    p.stamp("gu")
    def trg():
        for m in range(2):
            for s in range(2):
                b = 192 + 8*m + 4*s
                p(f"ds_read_b64_tr_b16 v[{b}:{b+1}], v3 offset:{L_G+8192*m+4096*s}")
                p(f"ds_read_b64_tr_b16 v[{b+2}:{b+3}], v3 offset:{L_G+8192*m+4096*s+512}")
    waitflag(p, FG, trg, 8)
    for m in range(2):
        for s in range(2):
            p.lg(6-2*(2*m+s))
            p(f"{MF} {R4(208+4*m)}, {R4(192+8*m+4*s)}, {R4(48+4*s)}, {'0' if s==0 else R4(208+4*m)}")
    p.setexec(0x00030003)
    p("s_nop 5")
    for i in range(4): p(f"v_cndmask_b32 v{208+i}, v{208+i}, v{212+i}, s[50:51]")
    p.tag(208)
    p.vmem("pubg", f"global_store_dwordx4 v14, v[208:211], {WS}")
    p("s_mov_b64 exec, -1")
    p.stamp("pubg")
    fw = opts.get("fw", "w3")
    if fw != "none": p.wait(fw)
    setflag(p, FW)
    p.stamp("fw")
    p(f"""
L_pg:
    global_load_dwordx4 v[72:75], v5, {PB} sc1
    s_waitcnt vmcnt(0)
    """)
    p.chk([72], 76, 77, 78)
    p(f"""
    v_cmp_ne_u32 vcc, 0, v78
    s_cbranch_vccnz L_pg_retry
L_pg_ok:
    s_mov_b64 exec, -1
    """)
    cold(f"""
L_pg_retry:
    s_sub_u32 s47, s47, 1
    s_cbranch_scc1 L_pg_ok
    s_cmp_lg_u32 s47, {SPIN-TFALL}
    s_cbranch_scc1 L_pg_nf
    s_mov_b32 s54, 1
    """)
    cold.setexec(0x00030003)
    cold.tag(208, 253)
    cold(f"global_store_dwordx4 v14, v[208:211], {WG} sc1\nL_pg_nf:\ns_mov_b64 exec, vcc")
    cold.toggle()
    cold("s_branch L_pg")
    c1 = -2*0.7978845608028654*LOG2E
    p(f"""
    v_permlane32_swap_b32 v72, v74
    v_permlane32_swap_b32 v73, v75
    v_add_f32 v72, v72, v74
    v_add_f32 v73, v73, v75
    s_nop 1
    v_permlane16_swap_b32 v72, v73
    v_add_f32 v72, v72, v73
    s_nop 1
    v_add_f32_dpp v72, v72, v72 row_ror:8 {DPP}
    v_cvt_pk_bf16_f32 v72, 0, v72
    v_mul_f32 v73, v72, v72
    v_mul_f32 v73, {hx(f32(0.044715))}, v73
    v_mov_b32_dpp v74, v72 row_ror:4 {DPP}
    v_fma_f32 v73, v73, v72, v72
    v_mul_f32 v73, {hx(f32(c1))}, v73
    v_exp_f32 v73, v73
    s_nop 0
    v_add_f32 v73, 1.0, v73
    v_rcp_f32 v73, v73
    s_nop 0
    v_mul_f32 v72, v72, v73
    v_cvt_pk_bf16_f32 v72, 0, v72
    v_mul_f32 v72, v72, v74
    v_cvt_pk_bf16_f32 v72, v72, v72
    v_and_b32 v72, s46, v72
    """)
    p.setexec(0x000f000f)
    p(f"""
    ds_write_b16 v15, v72 offset:{L_OV+256}
    s_mov_b64 exec, -1
    s_waitcnt vmcnt(0) lgkmcnt(0)
    """)
    p.stamp("allin")
    p("s_barrier")
    def frd(s):
        p(f"ds_read_b128 {R4(48+4*s)}, v4 offset:{L_OV+64*s}")
        p(f"ds_read_b64_tr_b16 v[{192+4*s}:{193+4*s}], v3 offset:{L_WO+4096*s}")
        p(f"ds_read_b64_tr_b16 v[{194+4*s}:{195+4*s}], v3 offset:{L_WO+4096*s+512}")
    for s in range(4): frd(s)
    for s in range(6):
        p(f"s_waitcnt lgkmcnt({min(9, 15-3*s)})")
        p(f"{MF} v[232:235], {R4(192+4*s)}, {R4(48+4*s)}, {'0' if s==0 else 'v[232:235]'}")
        if s < 2: frd(s+4)
    p.setexec(0x00010001)
    p("s_nop 5")
    p.tag(232, 253)
    p(f"global_store_dwordx4 v16, v[232:235], {WS} sc1")
    p("s_mov_b64 exec, -1")
    p.stamp("pubY")
    p(f"""
    s_cmp_ge_u32 s2, 32
    s_cbranch_scc1 L_fin
    s_cmp_lg_u32 s3, {opts.get("rw", 0)}
    s_cbranch_scc1 L_fin
    global_load_ushort v60, v17, {X}
    s_mov_b32 s47, {SPIN}
L_py:
    global_load_dwordx4 v[40:43], v13, {WS} sc1
    global_load_dwordx4 v[44:47], v13, {WS} offset:1024 sc1
    s_waitcnt vmcnt(0)
    """)
    p.chk([40, 44], 48, 49, 50, "s36")
    p(f"""
    v_cmp_ne_u32 vcc, 0, v50
    s_cbranch_vccz L_py_ok
    s_mov_b64 exec, vcc
    s_sub_u32 s47, s47, 1
    s_cbranch_scc0 L_py
L_py_ok:
    s_mov_b64 exec, -1
    v_add_f32 v40, v40, v44
    v_add_f32 v42, v42, v46
    v_add_f32 v41, v41, v45
    v_add_f32 v43, v43, v47
    v_lshlrev_b32 v60, 16, v60
    v_permlane32_swap_b32 v40, v42
    v_permlane32_swap_b32 v41, v43
    v_add_f32 v40, v40, v42
    v_add_f32 v41, v41, v43
    s_nop 1
    v_permlane16_swap_b32 v40, v41
    v_add_f32 v40, v40, v41
    s_nop 1
    v_add_f32_dpp v40, v40, v40 row_ror:4 {DPP}
    s_nop 1
    v_add_f32_dpp v40, v40, v40 row_ror:8 {DPP}
    """)
    p.setexec(0x000f000f)
    p(f"""
    v_add_f32 v40, v40, v60
    v_cvt_pk_bf16_f32 v40, v40, v40
    global_store_short v17, v40, {OUT}
    s_cmp_lg_u32 s2, 0
    s_cbranch_scc1 L_fin
    s_mov_b64 exec, 1
    v_mov_b32 v42, 0
    global_store_dword v42, v253, {WS}
L_fin:
    """)
    E = NSTAMP - 1
    if "amp" in opts:
        i = opts["amp"]
        p(f"""
        s_memrealtime s[{64+2*E}:{65+2*E}]
        s_waitcnt lgkmcnt(0)
        s_cmp_lg_u32 s2, {opts.get("ampwg", 0)}
        s_cbranch_scc1 L_end
        s_cmp_lg_u32 s62, {opts.get("ampw", 0)}
        s_cbranch_scc1 L_end
        s_sub_u32 s63, s{64+2*i}, s64
        s_mul_i32 s63, s63, 10
        s_min_u32 s63, s63, 100000
        s_add_u32 s63, s63, s{64+2*E}
L_amp:
        s_memrealtime s[50:51]
        s_waitcnt lgkmcnt(0)
        s_sub_u32 s61, s50, s63
        s_cmp_lt_i32 s61, 0
        s_cbranch_scc1 L_amp
        """)
    elif opts.get("stamps"):
        p(f"""
        s_memrealtime s[{64+2*E}:{65+2*E}]
        s_sleep 127
        s_waitcnt lgkmcnt(0)
        s_lshl_b32 s50, s2, 3
        s_add_u32 s50, s50, s62
        s_lshl_b32 s50, s50, 8
        s_add_u32 s50, s50, {STAMP_OFF}
        s_mov_b64 exec, 1
        v_mov_b32 v3, s50
        """)
        for i in range(NSTAMP):
            p(f"v_mov_b32 v4, s{64+2*i}\nv_mov_b32 v5, s{65+2*i}\nglobal_store_dwordx2 v3, v[4:5], {WS} offset:{8*i}")
    p("s_endpgm")
    al = a.L; pl = p.L
    if opts.get("heads", 1):
        ia = next(i for i, l in enumerate(al) if "HEAD_END" in l)
        body = c.L + al[:ia] + ["    s_branch L_A2"] + pl + ["L_A2:"] + al[ia:] + cold.L
    else:
        body = c.L + al + pl + cold.L
    body += ["L_end:", "    s_endpgm"]
    opts["names"] = [f"{p.names[i] if i < len(p.names) else '-'}|{a.names[i] if i < len(a.names) else '-'}" for i in range(E)] + ["end"]
    hdr = open("cdna_kernels/" + NAME + ".s.ref").read().split("; Override")[0]
    return hdr + f"""; @launch grid=(256,1,1) block=(512,1,1) lds={opts.get("lds", LDS_BYTES)}
.amdgcn_target "amdgcn-amd-amdhsa--gfx950"
.text
.globl {NAME}_kernel
.p2align 8
.type {NAME}_kernel,@function
{NAME}_kernel:
""" + "\n".join(body) + f"""
.section .rodata,"a"
.p2align 6
.amdhsa_kernel {NAME}_kernel
  .amdhsa_next_free_vgpr 256
  .amdhsa_next_free_sgpr 102
  .amdhsa_accum_offset 256
  .amdhsa_group_segment_fixed_size 0
  .amdhsa_kernarg_size 96
  .amdhsa_user_sgpr_count 2
  .amdhsa_user_sgpr_kernarg_segment_ptr 1
  .amdhsa_system_sgpr_workgroup_id_x 1
  .amdhsa_float_denorm_mode_32 3
.end_amdhsa_kernel
"""

if __name__ == "__main__":
    out = sys.argv[1]
    opts = {}
    for kv in sys.argv[2:]:
        k, v = kv.split("=")
        try: v = int(v)
        except ValueError: pass
        opts[k] = v
    open(out, "w").write(build(opts))
    if opts.get("stamps"): print(",".join(opts["names"]))
```

```python
import sys, struct, math
NAME = "parallel_sum__sliding_block_cached__geglu_ffn__decode"
STAMP_OFF = 0x10000000
def f32(x): return struct.unpack("<I", struct.pack("<f", x))[0]
def hx(x): return "0x%08x" % (x & 0xffffffff)
DPP = "row_mask:0xf bank_mask:0xf"
NSTAMP = 17

class Gen:
    def __init__(self, opts, tag=""):
        self.L = []; self.o = opts; self.vm = []; self.nst = 1; self.names = ["start"]
    def __call__(self, s):
        for l in s.strip("\n").split("\n"):
            l = l.strip()
            if not l: continue
            self.L.append(l if l.endswith(":") else "    " + l)
    def vmem(self, name, s):
        self(s); self.vm.append(name)
    def wait(self, name):
        idx = max(i for i, n in enumerate(self.vm) if n == name)
        n = len(self.vm) - 1 - idx
        assert n <= 63
        self(f"s_waitcnt vmcnt({n})")
    def lg(self, n):
        self(f"s_waitcnt lgkmcnt({n})")
    def stamp(self, label=""):
        if not self.o.get("stamps"): return
        i = self.nst; self.nst += 1
        assert i < NSTAMP - 1
        self(f"s_memrealtime s[{64+2*i}:{65+2*i}]   ; stamp {i} {label}")
        self.names.append(label)
    def cnt(self, label):
        if not self.o.get("stamps"): return
        i = self.nst; self.nst += 1
        self(f"s_sub_u32 s31, {SPIN}, s47\ns_mul_i32 s31, s31, 100\ns_add_u32 s{64+2*i}, s64, s31\ns_addc_u32 s{65+2*i}, s65, 0")
        self.names.append(label)
    def setexec(self, m32):
        self(f"s_mov_b32 exec_lo, {hx(m32)}\ns_mov_b32 exec_hi, {hx(m32)}")
    def tag(self, r, tv=252):
        for i in range(4): self(f"v_perm_b32 v{r+i}, v{r+i}, v{tv}, s{38+i}")
    def chk(self, units, t0, t1, acc, ts="s60"):
        for n, r in enumerate(units):
            d = acc if n == 0 else t0
            self(f"v_perm_b32 v{t0}, v{r+1}, v{r}, s44\nv_perm_b32 v{t1}, v{r+3}, v{r+2}, s45")
            self(f"v_bitop3_b32 v{d}, v{t0}, v{t1}, {ts} bitop3:0x56")
            if n: self(f"v_or_b32 v{acc}, v{acc}, v{t0}")
    def toggle(self):
        self(f"s_and_b32 s31, s47, s54\ns_cselect_b64 {PB}, {WG}, {WS}\ns_cselect_b32 s60, s36, s55")

HB = 0x800; QB = 0x1000; GB = 0x11000; MLB = 0x31000; YB = 0x38000; OB = 0x50000; GOFF = 0x100000
L_WQ = 0x0000; L_G = 0x4000; L_WO = 0x8000; L_XN = 0xE000; L_M = 0xE400; L_L = 0xE440; L_F = 0xE480; L_QT = 0xE700; L_OV = 0xE500
L_Q = 0xE800; QSTR = 272; L_O = 0x0000; OSTR = 272
LDS_BYTES = 98304
SPIN = 200000; TFALL = 256
LOG2E = 1.4426950408889634
X, K, V, WQ, WO, G, U, D, OUT, WS = "s[4:5]", "s[6:7]", "s[8:9]", "s[10:11]", "s[12:13]", "s[16:17]", "s[18:19]", "s[20:21]", "s[22:23]", "s[26:27]"
WG, PB = "s[56:57]", "s[58:59]"
MF = "v_mfma_f32_16x16x32_bf16"
def R4(r): return f"v[{r}:{r+3}]"

def build(opts):
    c = Gen(opts); p = Gen(opts); a = Gen(opts); cold = Gen(opts)
    NT = " nt" if opts.get("nt", 1) else ""
    pq_at = opts.get("pq_at", 6)
    pq2 = opts.get("pq2", 0)
    F1, FG, FQ, FW, FP, FV = L_F, L_F+16, L_F+32, L_F+48, L_F+64, L_F+80
    npub = [0]
    def pub(g, name, voff, r, nreg=4):
        n = npub[0]; npub[0] += 1
        if nreg == 4:
            g.tag(r); s = f"global_store_dwordx4 v{voff}, {R4(r)}, "
        else:
            s = f"global_store_dwordx2 v{voff}, v[{r}:{r+1}], "
        if name: g.vmem(name, s + WS)
        else: g(s + WS)
        g(f"s_cmp_lg_u32 s54, 0\ns_cbranch_scc1 L_fb{n}\nL_fr{n}:")
        cold(f"L_fb{n}:")
        if nreg == 4: cold.tag(r, 253)
        else: cold(f"v_mov_b32 v{r+1}, v253")
        cold(s + WG + f" sc1\ns_branch L_fr{n}")
    nsync = [0]
    def setflag(g, F): g(f"ds_write_b32 v42, v40 offset:{F}")
    def waitflag(g, F, reads, nreads):
        n = nsync[0]; nsync[0] += 1
        g(f"L_ps{n}:\nds_read_b128 v[44:47], v40 offset:{F}")
        reads()
        g(f"""
        s_waitcnt lgkmcnt({nreads})
        v_or3_b32 v44, v44, v45, v46
        v_or_b32 v44, v44, v47
        v_cmp_ne_u32 vcc, 0, v44
        s_cbranch_vccnz L_ps{n}
        """)
    def tags(g):
        g(f"""
        s_mul_i32 s36, s36, 0x9E3779B1
        s_add_u32 s36, s36, 0x7F4A7C15
        s_add_u32 s55, s55, 1
        s_mul_i32 s55, s55, 0x85EBCA6B
        s_xor_b32 s55, s55, s36
        s_mov_b32 s60, s55
        v_mov_b32 v252, s55
        v_mov_b32 v253, s36
        """)
    def consts(g):
        g(f"""
        s_getreg_b32 s55, hwreg(HW_REG_XCC_ID, 0, 4)
        s_add_u32 s56, s26, {GOFF}
        s_addc_u32 s57, s27, 0
        s_mov_b64 {PB}, {WS}
        s_mov_b32 s54, 0
        s_lshr_b32 s31, s29, 3
        s_lshl_b32 s52, s28, 2
        s_add_u32 s52, s52, s31                 ; 4g+hh
        s_mov_b32 s38, 0x07060500
        s_mov_b32 s39, 0x07060501
        s_mov_b32 s40, 0x07060502
        s_mov_b32 s41, 0x07060503
        s_mov_b32 s44, 0x0c0c0400
        s_mov_b32 s45, 0x04000c0c
        s_lshl_b32 s31, s3, 2
        v_mov_b32 v42, s31
        v_mov_b32 v40, 0
        s_lshl_b32 s61, s28, 13
        s_add_u32 s61, s61, {QB}
        s_and_b32 s31, s29, 3
        s_lshl_b32 s31, s31, 11
        s_add_u32 s31, s31, s61
        s_and_b32 s32, s29, 28
        s_add_u32 s32, s32, s3
        s_lshl_b32 s32, s32, 6
        s_add_u32 s31, s31, s32
        v_lshl_add_u32 v5, v10, 4, s31
        s_lshl_b32 s31, s30, 2
        s_add_u32 s31, s31, {HB}
        v_mov_b32 v38, s31
        s_lshl_b32 s31, s3, 6
        v_lshl_add_u32 v41, v10, 4, s31
        """)
    if opts.get("stamps"): c("s_memrealtime s[64:65]")
    c(f"""
    s_load_dwordx16 s[4:19], s[0:1], 0
    s_load_dwordx8 s[20:27], s[0:1], 64
    s_cmp_ge_u32 s2, 256
    s_cbranch_scc1 L_end
    s_getpc_b64 s[34:35]
L_pc:
    v_lshlrev_b32 v14, 4, v0
    v_min_u32 v14, L_end-L_pc, v14
    global_load_dword v254, v14, s[34:35]
    """)
    if opts.get("stamps"):
        for i in range(1, NSTAMP): c(f"s_mov_b64 s[{64+2*i}:{65+2*i}], 0")
    c(f"""
    v_lshrrev_b32 v2, 6, v0
    v_and_b32 v1, 63, v0
    v_readfirstlane_b32 s62, v2
    s_and_b32 s28, s2, 7
    s_lshr_b32 s29, s2, 3
    s_lshl_b32 s30, s28, 5
    s_add_u32 s30, s30, s29                 ; p
    v_lshlrev_b32 v2, 4, v1                 ; lane*16
    v_lshrrev_b32 v12, 3, v1                ; lane>>3
    v_and_b32 v13, 0x70, v2                 ; (lane&7)*16
    v_and_b32 v9, 15, v1
    v_lshrrev_b32 v10, 4, v1
    s_and_b32 s3, s62, 3
    s_cmp_ge_u32 s62, 4
    s_cbranch_scc0 L_P
    """)
    KR, VR, VT = 48, 80, 112
    a(f"""
    v_lshlrev_b32 v14, 2, v1
    v_mov_b32 v15, -1
    ds_write_b32 v14, v15 offset:{L_M}
    s_lshl_b32 s31, s28, 24
    s_lshl_b32 s32, s29, 15
    s_add_u32 s31, s31, s32
    s_lshl_b32 s32, s3, 13
    s_add_u32 s31, s31, s32
    s_add_u32 s31, s31, {61440*256+4096}
    v_lshlrev_b32 v7, 8, v9
    v_lshl_add_u32 v7, v10, 4, v7
    v_add_u32 v7, s31, v7                   ; K voff (+4096)
    v_lshlrev_b32 v8, 4, v9
    v_lshl_add_u32 v8, v10, 10, v8
    v_add_u32 v8, s31, v8                   ; V voff (+4096)
    s_setprio 1
    s_waitcnt lgkmcnt(0)
    """)
    a.stamp("karg")
    a(f"s_load_dword s36, {WS}, 0")
    a("s_barrier   ; B0")
    if opts.get("tlb", 3) & 1:
        a(f"s_mov_b64 exec, 1\nglobal_load_dword v254, v2, {OUT}")
        if opts.get("tlb", 3) & 2: a(f"global_load_dword v254, v8, {V}{NT}")
        a("s_mov_b64 exec, -1")
    if opts.get("kdelay"): a(f"s_sleep {opts['kdelay']}")
    for t in range(2):
        for s in range(4):
            if opts.get("klin"): a.vmem(f"K{t}{s}", f"global_load_dwordx4 {R4(KR+16*t+4*s)}, v8, {K} offset:{4096*t-4096+256*s}{NT}")
            else: a.vmem(f"K{t}{s}", f"global_load_dwordx4 {R4(KR+16*t+4*s)}, v7, {K} offset:{4096*t-4096+64*s}{NT}")
    a.stamp("K_iss")
    a("; HEAD_END")
    consts(a)
    a(f"""
    s_lshl_b32 s31, s3, 9
    s_add_u32 s31, s31, s61
    s_add_u32 s31, s31, 4096
    v_and_b32 v14, 0x1f0, v2
    v_lshrrev_b32 v6, 5, v1
    v_lshl_add_u32 v6, v6, 11, v14
    v_add_u32 v6, s31, v6
    s_lshl_b32 s31, s28, 7
    s_add_u32 s31, s31, {HB}
    v_lshrrev_b32 v14, 2, v14
    v_add_u32 v39, s31, v14
    """)
    def pollq(g, r=28, h=36):
        g(f"global_load_dwordx4 {R4(r)}, v6, {PB} offset:-4096 sc1\nglobal_load_dwordx4 {R4(r+4)}, v6, {PB} sc1\nglobal_load_dword v{h}, v39, {PB} sc1")
    for t in range(9):
        if t == opts.get("gate_v", 0): waitflag(a, FP, lambda: None, 0)
        if t == opts.get("gate_g", 8): setflag(a, FV)
        if t == pq_at:
            pollq(a); a.vm += ["pq0", "pq1", "pq"]
            a.stamp("pq_iss")
        if t < 8:
            a.vmem(f"V{t}", f"global_load_dwordx4 {R4(VR+4*t)}, v8, {V} offset:{4096*(t>>2)-4096+256*(t&3)}{NT}")
    if pq2:
        pollq(a, 144, 152); a.vm += ["pr0", "pr1", "pr"]
    a.stamp("V_iss")
    for r in range(240, 244): a(f"v_mov_b32 v{r}, 0x3f803f80")
    for r in range(216, 232): a(f"v_mov_b32 v{r}, 0")
    a(f"""
    s_mov_b32 s42, 0x05040100
    s_mov_b32 s43, 0x07060302
    s_mul_i32 s31, s3, {QSTR}
    s_add_u32 s31, s31, {L_Q}
    v_and_b32 v24, 31, v1
    v_lshl_add_u32 v24, v24, 3, s31
    v_lshrrev_b32 v14, 5, v1
    v_lshl_add_u32 v24, v14, 2, v24
    v_and_b32 v14, 3, v1
    v_mul_u32_u24 v14, {QSTR}, v14
    v_lshl_add_u32 v14, v10, 4, v14
    s_mov_b32 s48, {hx(f32(128**-0.5))}
    s_mov_b32 s49, {hx(f32(LOG2E))}
    s_mul_i32 s31, s3, {8*OSTR}
    v_mul_u32_u24 v15, {OSTR}, v10
    v_lshl_add_u32 v15, v9, 4, v15
    v_add_u32 v15, s31, v15
    v_add_u32 v16, v42, v2
    v_and_b32 v17, 3, v1
    v_mul_u32_u24 v17, {OSTR}, v17
    v_and_b32 v18, 12, v1
    v_add_u32 v18, v18, v10
    v_lshl_add_u32 v17, v18, 4, v17
    s_mul_i32 s31, s3, {4*OSTR}
    v_add_u32 v17, s31, v17
    v_lshlrev_b32 v18, 4, v10
    s_lshl_b32 s31, s30, 3
    s_add_u32 s31, s31, s3
    s_lshl_b32 s31, s31, 8
    s_add_u32 s31, s31, {OB}
    v_lshlrev_b32 v19, 9, v10
    v_lshl_add_u32 v19, v9, 4, v19
    v_add_u32 v19, s31, v19                  ; O voff
    s_lshl_b32 s31, s28, 10
    s_lshl_b32 s32, s29, 3
    s_add_u32 s31, s31, s32
    s_add_u32 s31, s31, {MLB}
    v_lshl_add_u32 v20, v10, 8, s31
    s_lshl_b32 s31, s28, 16
    s_and_b32 s32, s29, 24
    s_lshl_b32 s32, s32, 6
    s_add_u32 s31, s31, s32
    s_lshl_b32 s32, s3, 7
    s_add_u32 s31, s31, s32
    s_add_u32 s31, s31, {OB+4096}
    v_lshl_add_u32 v7, v12, 13, v13
    v_add_u32 v7, s31, v7
    s_lshl_b32 s31, s52, 8
    s_add_u32 s31, s31, {MLB}
    v_lshl_add_u32 v21, v12, 5, s31
    v_and_b32 v22, 3, v1
    v_lshlrev_b32 v22, 6, v22
    v_lshl_add_u32 v22, v10, 4, v22
    v_bfe_u32 v23, v1, 2, 1
    v_lshl_add_u32 v22, v23, 1, v22
    v_add_u32 v22, v42, v22
    s_mov_b32 s47, {SPIN}
    s_waitcnt lgkmcnt(0)
    """)
    tags(a)
    def vperm(tp):
        a.wait(f"V{2*tp+1}")
        for d in range(4):
            lo = VR + 8*tp + d; hi = lo + 4
            a(f"v_perm_b32 v{VT+4*(2*d)+tp}, v{hi}, v{lo}, s42")
            a(f"v_perm_b32 v{VT+4*(2*d+1)+tp}, v{hi}, v{lo}, s43")
    npre = min(4, pq_at // 2)
    for tp in range(npre): vperm(tp)
    a.wait("pq")
    a.stamp("pq_ret")
    a("L_pq:")
    a.chk([28, 32], 25, 26, 27)
    a(f"""
    v_xor_b32 v25, s60, v36
    v_or_b32 v27, v27, v25
    v_cmp_ne_u32 vcc, 0, v27
    s_cbranch_vccnz L_pq_retry
L_pq_ok:
    s_mov_b64 exec, -1
    """)
    cold("L_pq_retry:")
    if pq2:
        cold(f"s_cmp_lg_u32 s47, {SPIN}\ns_cbranch_scc1 L_pq_r2\ns_sub_u32 s47, s47, 1\ns_waitcnt vmcnt(0)")
        for i in range(9): cold(f"v_mov_b32 v{28+i}, v{144+i}")
        cold("s_branch L_pq\nL_pq_r2:")
    cold(f"""
    s_sub_u32 s47, s47, 1
    s_cbranch_scc1 L_pq_ok
    s_cmp_lg_u32 s47, {SPIN-TFALL}
    s_cbranch_scc1 L_pq_nf
    s_mov_b32 s54, 1
    s_mov_b64 exec, -1
    s_mov_b64 s[50:51], vcc
    """)
    waitflag(cold, FP, lambda: cold(f"ds_read_b128 v[208:211], v41 offset:{L_QT}"), 0)
    cold("s_mov_b64 vcc, s[50:51]")
    cold.setexec(0x00010001)
    cold.tag(208, 253)
    cold(f"""
    global_store_dword v38, v253, {WG} sc1
    global_store_dwordx4 v5, v[208:211], {WG} sc1
L_pq_nf:
    s_mov_b64 exec, vcc
    """)
    cold.toggle(); pollq(cold)
    cold("s_waitcnt vmcnt(0)\ns_branch L_pq")
    a(f"""
    v_add_f32 v28, v28, v32
    v_add_f32 v30, v30, v34
    v_add_f32 v29, v29, v33
    v_add_f32 v31, v31, v35
    s_nop 0
    v_permlane32_swap_b32 v28, v30
    v_permlane32_swap_b32 v29, v31
    v_add_f32 v28, v28, v30
    v_add_f32 v29, v29, v31
    v_cvt_pk_bf16_f32 v28, v28, v29
    ds_write_b32 v24, v28
    """)
    setflag(a, FQ)
    a.cnt("#pq")
    def qreads():
        for s in range(4): a(f"ds_read_b128 {R4(192+4*s)}, v14 offset:{L_Q+64*s}")
    waitflag(a, FQ, qreads, 4)
    a.stamp("q_ok")
    for s in range(4):
        a.lg(3-s)
        for t in range(2):
            a(f"{MF} {R4(208+4*t)}, {R4(KR+16*t+4*s)}, {R4(192+4*s)}, {'0' if s==0 else R4(208+4*t)}")
    a(f"s_mov_b32 s47, {SPIN}\ns_nop 6")
    for i in range(8): a(f"v_cvt_pk_bf16_f32 v{208+i}, 0, v{208+i}")
    for i in range(8): a(f"v_mul_f32 v{208+i}, s48, v{208+i}")
    for i in range(8): a(f"v_cvt_pk_bf16_f32 v{208+i}, 0, v{208+i}")
    a("""
    v_max3_f32 v244, v208, v209, v210
    v_max3_f32 v245, v211, v212, v213
    v_max3_f32 v244, v244, v214, v215
    v_max_f32 v244, v244, v245
    """)
    for sw in (16, 32):
        a(f"v_mov_b32 v245, v244\ns_nop 1\nv_permlane{sw}_swap_b32 v244, v245\nv_max_f32 v244, v244, v245")
    a("v_mul_f32 v244, s49, v244")
    for i in range(8): a(f"v_fma_f32 v{208+i}, v{208+i}, s49, -v244")
    for i in range(8): a(f"v_exp_f32 v{208+i}, v{208+i}")
    for e in range(4):
        m = 0xF << (4*e); a.setexec(m | (m << 16))
        for i in range(4): a(f"v_cvt_pk_bf16_f32 v{216+4*e+i}, v{208+2*i}, v{209+2*i}")
    a("s_mov_b64 exec, -1\nv_min_u32 v244, -2, v244")
    a(f"{MF} v[248:251], v[240:243], v[216:219], 0")
    a.stamp("sm")
    if npre < 4:
        for tp in range(npre, 4): vperm(tp)
        a("s_nop 1")
    a.stamp("V")
    for e in range(4):
        for hf in range(2):
            a(f"{MF} {R4(232+4*hf)}, {R4(VT+4*(4*hf+e))}, {R4(216+4*e)}, {'0' if e==0 else R4(232+4*hf)}")
    a(f"""
    s_mov_b64 exec, 0xf
    ds_write_b32 v16, v248 offset:{L_L}
    s_mov_b64 exec, -1
    s_nop 3
    ds_write_b128 v15, v[232:235] offset:{L_O}
    ds_write_b128 v15, v[236:239] offset:{L_O+4*OSTR}
    s_mov_b64 exec, 0xf
    ds_write_b32 v16, v244 offset:{L_M}
    s_mov_b64 exec, -1
    s_cmp_ge_u32 s3, 2
    s_cbranch_scc1 L_nocomb
L_cmb:
    ds_read_b128 v[208:211], v18 offset:{L_M}
    ds_read_b128 v[212:215], v18 offset:{L_L}
    """)
    for w in range(4):
        a(f"ds_read_b128 {R4(216+4*w)}, v17 offset:{L_O+8*OSTR*w}")
    a.lg(5)
    a("""
    v_max3_u32 v246, v208, v209, v210
    v_max3_f32 v244, v208, v209, v210
    v_max_u32 v246, v246, v211
    v_max_f32 v244, v244, v211
    v_cmp_eq_u32 vcc, -1, v246
    s_cbranch_vccnz L_cmb
    """)
    for w in range(4): a(f"v_sub_f32 v{208+w}, v{208+w}, v244")
    for w in range(4): a(f"v_exp_f32 v{208+w}, v{208+w}")
    a.lg(4)
    a("v_mul_f32 v246, v208, v212")
    for w in range(1, 4): a(f"v_fmac_f32 v246, v{208+w}, v{212+w}")
    a("v_rcp_f32 v247, v246\nv_log_f32 v246, v246\ns_waitcnt lgkmcnt(0)")
    for i in range(4): a(f"v_mul_f32 v{232+i}, v208, v{216+i}")
    a("v_add_f32 v244, v244, v246\nv_mov_b32 v245, v252")
    for w in range(1, 4):
        for i in range(4): a(f"v_fmac_f32 v{232+i}, v{208+w}, v{216+4*w+i}")
    for i in range(4): a(f"v_mul_f32 v{232+i}, v247, v{232+i}")
    pub(a, None, 19, 232)
    a.setexec(0x00010001)
    pub(a, None, 20, 244, nreg=2)
    a("s_mov_b64 exec, -1\nL_nocomb:")
    a.stamp("pubO")
    if opts.get("fw", "w3") != "none" and opts.get("usefw", 1): waitflag(a, FW, lambda: None, 0)
    a("L_po:")
    a.toggle()
    for k in range(2): a(f"global_load_dwordx4 {R4(48+4*k)}, v21, {PB} offset:{16*k} sc1")
    for k in range(4): a(f"global_load_dwordx4 {R4(56+4*k)}, v7, {PB} offset:{2048*k-4096} sc1")
    a("s_waitcnt vmcnt(0)")
    a.chk([56, 60, 64, 68], 76, 77, 78)
    a(f"""
    v_xor_b32 v76, s60, v49
    v_xor_b32 v77, s60, v51
    v_or3_b32 v78, v78, v76, v77
    v_xor_b32 v76, s60, v53
    v_xor_b32 v77, s60, v55
    v_or3_b32 v78, v78, v76, v77
    v_cmp_ne_u32 vcc, 0, v78
    s_cbranch_vccz L_po_ok
    s_mov_b64 exec, vcc
    s_sub_u32 s47, s47, 1
    s_cbranch_scc0 L_po
L_po_ok:
    s_mov_b64 exec, -1
    """)
    a.stamp("O_ok")
    a(f"""
    v_max3_f32 v76, v48, v50, v52
    v_max_f32 v76, v76, v54
    s_nop 1
    v_max_f32_dpp v76, v76, v76 row_ror:8 {DPP}
    v_mov_b32 v77, v76
    s_nop 1
    v_permlane16_swap_b32 v76, v77
    v_max_f32 v76, v76, v77
    v_mov_b32 v77, v76
    s_nop 1
    v_permlane32_swap_b32 v76, v77
    v_max_f32 v76, v76, v77
    v_sub_f32 v48, v48, v76
    v_sub_f32 v50, v50, v76
    v_sub_f32 v52, v52, v76
    v_sub_f32 v54, v54, v76
    v_exp_f32 v48, v48
    v_exp_f32 v50, v50
    v_exp_f32 v52, v52
    v_exp_f32 v54, v54
    v_mul_f32 v56, v48, v56
    v_mul_f32 v57, v48, v57
    v_mul_f32 v58, v48, v58
    v_mul_f32 v59, v48, v59
    v_add_f32 v49, v48, v50
    v_add_f32 v51, v52, v54
    v_add_f32 v49, v49, v51
    v_mov_b32 v77, v49
    """)
    for k in range(1, 4):
        for i in (0, 2, 1, 3): a(f"v_fmac_f32 v{56+i}, v{48+2*k}, v{56+4*k+i}")
        if k == 1: a("v_permlane32_swap_b32 v49, v77\nv_add_f32 v49, v49, v77\nv_mov_b32 v77, v49")
        if k == 2: a("v_permlane16_swap_b32 v49, v77\nv_add_f32 v49, v49, v77")
    a(f"""
    v_add_f32_dpp v49, v49, v49 row_ror:8 {DPP}
    v_permlane32_swap_b32 v56, v58
    v_permlane32_swap_b32 v57, v59
    v_rcp_f32 v49, v49
    v_add_f32 v56, v56, v58
    v_add_f32 v57, v57, v59
    s_nop 1
    v_permlane16_swap_b32 v56, v57
    v_add_f32 v56, v56, v57
    s_nop 1
    v_add_f32_dpp v56, v56, v56 row_ror:8 {DPP}
    v_mul_f32 v56, v56, v49
    v_cvt_pk_bf16_f32 v56, v56, v56
    ds_write_b16 v22, v56 offset:{L_OV}
    s_waitcnt lgkmcnt(0)
    """)
    a.stamp("o_wr")
    a.cnt("#po")
    a("s_barrier")
    if opts.get("dirty"):
        a(f"s_lshl_b32 s31, s2, 2\ns_add_u32 s31, s31, s3\ns_lshl_b32 s31, s31, 12\ns_add_u32 s31, s31, 0x400000\nv_add_u32 v3, s31, v2")
        for i in range(opts["dirty"]): a(f"global_store_dwordx4 v3, v[48:51], {WS} offset:{1024*i}")
    a("s_branch L_fin" if opts.get("stamps") else "s_endpgm")

    p(f"""
L_P:
    s_and_b32 s31, s29, 3
    s_lshl_b32 s31, s31, 2
    s_add_u32 s31, s31, s3
    s_lshl_b32 s31, s31, 18
    s_lshr_b32 s32, s30, 2
    s_lshl_b32 s32, s32, 7
    s_add_u32 s31, s31, s32
    v_and_b32 v43, 16, v1
    v_lshlrev_b32 v43, 1, v43
    v_xor_b32 v43, v43, v13
    v_lshl_add_u32 v3, v12, 13, v43
    v_add_u32 v3, s31, v3
    v_xor_b32 v4, 0x10040, v3
    v_add_u32 v7, 0x20000, v3
    v_xor_b32 v6, 0x30040, v3
    s_lshl_b32 m0, s3, 12
    s_setprio 2
    s_waitcnt lgkmcnt(0)
    """)
    p.stamp("karg")
    p.vmem("x", f"global_load_dwordx4 v[16:19], v2, {X}")
    for i in range(4):
        p.vmem(f"wq{i}", f"global_load_lds_dwordx4 v{(3,4,7,6)[i]}, {WQ}{NT}")
        if i < 3: p("s_add_u32 m0, m0, 1024\ns_nop 0")
    p(f"s_load_dword s36, {WS}, 0")
    p("s_barrier   ; B0")
    consts(p)
    if opts.get("pre", 2):
        p(f"""
        s_lshl_b32 s31, s30, 11
        s_add_u32 s31, s31, {OB}                ; w0: O lines
        s_mov_b32 s32, 15
        s_lshl_b32 s48, s30, 9
        s_add_u32 s48, s48, {GB}
        s_cmp_eq_u32 s3, 1
        s_cselect_b32 s31, s48, s31
        s_cselect_b32 s32, 3, s32
        s_lshl_b32 s48, s30, 8
        s_add_u32 s48, s48, {QB}
        s_cmp_eq_u32 s3, 2
        s_cselect_b32 s31, s48, s31
        s_cselect_b32 s32, 1, s32
        s_lshl_b32 s48, s30, 5
        s_add_u32 s48, s48, {MLB}
        s_cmp_eq_u32 s3, 3
        s_cselect_b32 s31, s48, s31
        s_cselect_b32 s32, 0, s32
        v_and_b32 v44, s32, v1
        v_lshl_add_u32 v44, v44, 7, s31
        v_cmp_gt_u32 vcc, 32, v1
        s_nop 1
        v_cndmask_b32 v44, v38, v44, vcc
        """)
        p.vmem("pre", f"global_load_dword v254, v44, {WS}{' nt' if opts.get('pre', 2) == 2 else ''}")
    p(f"""
    s_and_b32 s33, s29, 7
    s_and_b32 s53, s29, 24
    s_add_u32 s53, s53, s28
    s_cmp_lt_u32 s53, 28
    s_cselect_b32 s46, -1, 0
    s_cselect_b32 s32, 0, 8
    s_sub_u32 s53, s53, s32                 ; line
    s_lshl_b32 s32, s33, 2
    s_add_u32 s32, s32, s3
    s_mul_i32 s32, s32, {16*3584}
    s_lshl_b32 s31, s53, 7
    s_add_u32 s32, s32, s31
    v_mul_u32_u24 v11, 3584, v12
    v_add3_u32 v11, v11, v43, s32
    v_add_u32 v14, {8*3584}, v11
    v_xor_b32 v14, 64, v14
    v_lshl_add_u32 v37, v12, 10, v43
    s_lshl_b32 s31, s52, 2
    s_add_u32 s31, s31, s3
    s_lshl_b32 s31, s31, 15
    s_lshl_b32 s32, s33, 7
    s_add_u32 s31, s31, s32
    v_add_u32 v36, s31, v37
    s_lshl_b32 s31, s53, 2
    s_add_u32 s31, s31, s3
    s_lshl_b32 s31, s31, 14
    s_add_u32 s31, s31, s32
    v_add_u32 v37, s31, v37
    v_bfe_u32 v3, v1, 2, 2
    v_lshl_add_u32 v3, v10, 3, v3
    v_lshlrev_b32 v3, 7, v3
    v_and_b32 v4, 3, v1
    v_lshl_add_u32 v3, v4, 3, v3
    s_lshl_b32 s31, s3, 5
    v_add_u32 v3, s31, v3
    v_bfe_u32 v4, v1, 3, 2
    v_lshlrev_b32 v4, 5, v4
    v_xor_b32 v3, v3, v4
    s_and_b32 s31, s29, 3
    s_lshl_b32 s31, s31, 8
    v_lshl_add_u32 v4, v10, 4, s31
    s_lshl_b32 s31, s33, 7
    v_lshl_add_u32 v6, v10, 4, s31
    """)
    if opts.get("tlb", 3) & 2:
        p("s_mov_b64 exec, 1")
        for vo, P in ((11, G), (11, U), (36, WO), (37, D)):
            p.vmem("tlbw", f"global_load_dword v254, v{vo}, {P}{NT}")
        p("s_mov_b64 exec, -1")
    p.wait("x")
    p.stamp("x")
    xs = list(range(20, 28))
    for i in range(4):
        p(f"v_lshlrev_b32 v{xs[2*i]}, 16, v{16+i}\nv_and_b32 v{xs[2*i+1]}, 0xffff0000, v{16+i}")
    p("v_readfirstlane_b32 s31, v20\ns_nop 1")
    p("v_subrev_f32 v28, s31, v20\nv_mul_f32 v29, v28, v28")
    for i in range(1, 8):
        p(f"v_subrev_f32 v30, s31, v{xs[i]}\nv_add_f32 v28, v28, v30\nv_fmac_f32 v29, v30, v30")
    p("s_nop 0")
    for r in (1, 2, 4, 8):
        p(f"v_add_f32_dpp v28, v28, v28 row_ror:{r} {DPP}\nv_add_f32_dpp v29, v29, v29 row_ror:{r} {DPP}\ns_nop 0")
    p(f"""
    s_nop 0
    v_permlane32_swap_b32 v28, v29
    v_add_f32 v28, v28, v29
    v_mov_b32 v29, v28
    s_nop 1
    v_permlane16_swap_b32 v28, v29
    v_add_f32 v28, v28, v29
    v_mul_f32 v28, {hx(f32(1/512))}, v28
    s_nop 0
    v_readlane_b32 s32, v28, 0
    v_readlane_b32 s48, v28, 32
    s_nop 0
    v_mov_b32 v28, s32
    v_fma_f32 v29, -v28, v28, s48
    v_add_f32 v28, s31, v28
    v_max_f32 v29, 0, v29
    v_cvt_pk_bf16_f32 v28, 0, v28
    v_cvt_pk_bf16_f32 v29, 0, v29
    v_add_f32 v29, {hx(f32(1e-5))}, v29
    v_cvt_pk_bf16_f32 v29, 0, v29
    v_sqrt_f32 v29, v29
    """)
    for i in range(8): p(f"v_sub_f32 v{xs[i]}, v{xs[i]}, v28")
    p("v_cvt_pk_bf16_f32 v29, 0, v29\nv_rcp_f32 v30, v29")
    for i in range(8): p(f"v_cvt_pk_bf16_f32 v{xs[i]}, 0, v{xs[i]}")
    if opts.get("refine", 0):
        for i in range(8):
            p(f"v_mul_f32 v31, v{xs[i]}, v30\nv_fma_f32 v32, -v31, v29, v{xs[i]}\nv_fma_f32 v{xs[i]}, v32, v30, v31")
    else:
        for i in range(8): p(f"v_mul_f32 v{xs[i]}, v{xs[i]}, v30")
    for i in range(4):
        p(f"v_cvt_pk_bf16_f32 v{16+i}, v{xs[2*i]}, v{xs[2*i+1]}")
    p(f"ds_write_b128 v2, v[16:19] offset:{L_XN}")
    for i in range(4):
        p(f"ds_read_b128 {R4(20+4*i)}, v4 offset:{L_XN+64*i}")
    p(f"ds_read_b128 v[48:51], v6 offset:{L_XN}\nds_read_b128 v[52:55], v6 offset:{L_XN+64}")
    p.stamp("ln")
    p.wait("wq3")
    setflag(p, F1)
    p("s_waitcnt lgkmcnt(0)")
    tags(p)
    def trq():
        for s in range(4):
            p(f"ds_read_b64_tr_b16 v[{192+4*s}:{193+4*s}], v3 offset:{L_WQ+4096*s}")
            p(f"ds_read_b64_tr_b16 v[{194+4*s}:{195+4*s}], v3 offset:{L_WQ+4096*s+512}")
    waitflag(p, F1, trq, 8)
    p.stamp("S1")
    for s in range(4):
        p.lg(6-2*s)
        p(f"{MF} v[208:211], {R4(192+4*s)}, {R4(20+4*s)}, {'0' if s==0 else 'v[208:211]'}")
    p.setexec(0x00010001)
    p.vmem("hello", f"global_store_dword v38, v252, {WS}")
    p("s_lshl_b32 s49, s3, 11\ns_nop 3")
    p(f"ds_write_b128 v41, v[208:211] offset:{L_QT}")
    p.tag(208)
    p.vmem("pubq", f"global_store_dwordx4 v5, v[208:211], {WS}")
    p("s_mov_b64 exec, -1\ns_setprio 0")
    setflag(p, FP)
    p.stamp("pubq")
    if opts.get("gate_g", 8) <= 8: waitflag(p, FV, lambda: None, 0)
    if opts.get("gdelay"): p(f"s_sleep {opts['gdelay']}")
    for i in range(2):
        for m, (nm, P) in enumerate((("g", G), ("u", U))):
            p(f"s_add_u32 m0, s49, {L_G + 1024*i + 8192*m}\ns_nop 0")
            p.vmem(f"{nm}{i}", f"global_load_lds_dwordx4 v{11 if i==0 else 14}, {P}{NT}")
    for n in range(6):
        if n == opts.get("gate_w", 0): waitflag(p, FQ, lambda: None, 0)
        if n < 4:
            p(f"s_lshl_b32 s31, s3, 12\ns_add_u32 m0, s31, {L_WO + 1024*n}\ns_nop 0")
            p.vmem(f"w{n}", f"global_load_lds_dwordx4 v36, {WO}{NT}")
            if n < 3: p(f"v_xor_b32 v36, {hx((0x2040, 0x6040, 0x2040)[n])}, v36")
        else:
            p(f"s_add_u32 m0, s49, {L_WO + 16384 + 1024*(n-4)}\ns_nop 0")
            p.vmem(f"w{n}", f"global_load_lds_dwordx4 v37, {D}{NT}")
            if n < 5: p("v_xor_b32 v37, 0x2040, v37")
    p.stamp("iss")
    p(f"""
    s_lshl_b32 s31, s30, 2
    s_add_u32 s31, s31, s3
    s_lshl_b32 s31, s31, 7
    s_add_u32 s31, s31, {GB}
    v_and_b32 v14, 1, v1
    v_lshlrev_b32 v14, 6, v14
    v_lshl_add_u32 v14, v10, 4, v14
    v_add_u32 v14, s31, v14
    s_and_b32 s31, s31, 0xfffff1ff
    v_lshl_add_u32 v5, v12, 9, v13
    v_add_u32 v5, s31, v5
    s_mov_b32 s50, 0x00020002
    s_mov_b32 s51, 0x00020002
    v_and_b32 v15, 3, v1
    v_lshlrev_b32 v15, 3, v15
    v_lshl_add_u32 v15, v10, 1, v15
    s_lshl_b32 s31, s2, 5
    v_add_u32 v17, s31, v15
    s_lshl_b32 s31, s3, 5
    v_add_u32 v15, s31, v15
    v_lshlrev_b32 v4, 4, v10
    s_lshl_b32 s31, s33, 2
    s_add_u32 s31, s31, s3
    s_lshl_b32 s31, s31, 11
    s_lshl_b32 s32, s52, 6
    s_add_u32 s31, s31, s32
    s_add_u32 s31, s31, {YB}
    v_add_u32 v16, s31, v4                   ; Y voff
    s_lshl_b32 s31, s2, 11
    s_add_u32 s31, s31, {YB}
    v_add_u32 v13, s31, v2
    s_mov_b32 s47, {SPIN}
    """)
    p.wait("u1")
    setflag(p, FG)
    p.stamp("gu")
    def trg():
        for m in range(2):
            for s in range(2):
                b = 192 + 8*m + 4*s
                p(f"ds_read_b64_tr_b16 v[{b}:{b+1}], v3 offset:{L_G+8192*m+4096*s}")
                p(f"ds_read_b64_tr_b16 v[{b+2}:{b+3}], v3 offset:{L_G+8192*m+4096*s+512}")
    waitflag(p, FG, trg, 8)
    for m in range(2):
        for s in range(2):
            p.lg(6-2*(2*m+s))
            p(f"{MF} {R4(208+4*m)}, {R4(192+8*m+4*s)}, {R4(48+4*s)}, {'0' if s==0 else R4(208+4*m)}")
    p.setexec(0x00030003)
    p("s_nop 5")
    for i in range(4): p(f"v_cndmask_b32 v{208+i}, v{208+i}, v{212+i}, s[50:51]")
    p.tag(208)
    p.vmem("pubg", f"global_store_dwordx4 v14, v[208:211], {WS}")
    p("s_mov_b64 exec, -1")
    p.stamp("pubg")
    fw = opts.get("fw", "w3")
    if fw != "none": p.wait(fw)
    setflag(p, FW)
    p.stamp("fw")
    p(f"""
L_pg:
    global_load_dwordx4 v[72:75], v5, {PB} sc1
    s_waitcnt vmcnt(0)
    """)
    p.chk([72], 76, 77, 78)
    p(f"""
    v_cmp_ne_u32 vcc, 0, v78
    s_cbranch_vccnz L_pg_retry
L_pg_ok:
    s_mov_b64 exec, -1
    """)
    cold(f"""
L_pg_retry:
    s_sub_u32 s47, s47, 1
    s_cbranch_scc1 L_pg_ok
    s_cmp_lg_u32 s47, {SPIN-TFALL}
    s_cbranch_scc1 L_pg_nf
    s_mov_b32 s54, 1
    """)
    cold.setexec(0x00030003)
    cold.tag(208, 253)
    cold(f"global_store_dwordx4 v14, v[208:211], {WG} sc1\nL_pg_nf:\ns_mov_b64 exec, vcc")
    cold.toggle()
    cold("s_branch L_pg")
    c1 = -2*0.7978845608028654*LOG2E
    p(f"""
    v_permlane32_swap_b32 v72, v74
    v_permlane32_swap_b32 v73, v75
    v_add_f32 v72, v72, v74
    v_add_f32 v73, v73, v75
    s_nop 1
    v_permlane16_swap_b32 v72, v73
    v_add_f32 v72, v72, v73
    s_nop 1
    v_add_f32_dpp v72, v72, v72 row_ror:8 {DPP}
    v_cvt_pk_bf16_f32 v72, 0, v72
    v_mul_f32 v73, v72, v72
    v_mul_f32 v73, {hx(f32(0.044715))}, v73
    v_mov_b32_dpp v74, v72 row_ror:4 {DPP}
    v_fma_f32 v73, v73, v72, v72
    v_mul_f32 v73, {hx(f32(c1))}, v73
    v_exp_f32 v73, v73
    s_nop 0
    v_add_f32 v73, 1.0, v73
    v_rcp_f32 v73, v73
    s_nop 0
    v_mul_f32 v72, v72, v73
    v_cvt_pk_bf16_f32 v72, 0, v72
    v_mul_f32 v72, v72, v74
    v_cvt_pk_bf16_f32 v72, v72, v72
    v_and_b32 v72, s46, v72
    """)
    p.setexec(0x000f000f)
    p(f"""
    ds_write_b16 v15, v72 offset:{L_OV+256}
    s_mov_b64 exec, -1
    s_waitcnt vmcnt(0) lgkmcnt(0)
    """)
    p.stamp("allin")
    p("s_barrier")
    def frd(s):
        p(f"ds_read_b128 {R4(48+4*s)}, v4 offset:{L_OV+64*s}")
        p(f"ds_read_b64_tr_b16 v[{192+4*s}:{193+4*s}], v3 offset:{L_WO+4096*s}")
        p(f"ds_read_b64_tr_b16 v[{194+4*s}:{195+4*s}], v3 offset:{L_WO+4096*s+512}")
    for s in range(4): frd(s)
    for s in range(6):
        p(f"s_waitcnt lgkmcnt({min(9, 15-3*s)})")
        p(f"{MF} v[232:235], {R4(192+4*s)}, {R4(48+4*s)}, {'0' if s==0 else 'v[232:235]'}")
        if s < 2: frd(s+4)
    p.setexec(0x00010001)
    p("s_nop 5")
    p.tag(232, 253)
    p(f"global_store_dwordx4 v16, v[232:235], {WS} sc1")
    p("s_mov_b64 exec, -1")
    p.stamp("pubY")
    p(f"""
    s_cmp_ge_u32 s2, 32
    s_cbranch_scc1 L_fin
    s_cmp_lg_u32 s3, {opts.get("rw", 0)}
    s_cbranch_scc1 L_fin
    global_load_ushort v60, v17, {X}
    s_mov_b32 s47, {SPIN}
L_py:
    global_load_dwordx4 v[40:43], v13, {WS} sc1
    global_load_dwordx4 v[44:47], v13, {WS} offset:1024 sc1
    s_waitcnt vmcnt(0)
    """)
    p.chk([40, 44], 48, 49, 50, "s36")
    p(f"""
    v_cmp_ne_u32 vcc, 0, v50
    s_cbranch_vccz L_py_ok
    s_mov_b64 exec, vcc
    s_sub_u32 s47, s47, 1
    s_cbranch_scc0 L_py
L_py_ok:
    s_mov_b64 exec, -1
    v_add_f32 v40, v40, v44
    v_add_f32 v42, v42, v46
    v_add_f32 v41, v41, v45
    v_add_f32 v43, v43, v47
    v_lshlrev_b32 v60, 16, v60
    v_permlane32_swap_b32 v40, v42
    v_permlane32_swap_b32 v41, v43
    v_add_f32 v40, v40, v42
    v_add_f32 v41, v41, v43
    s_nop 1
    v_permlane16_swap_b32 v40, v41
    v_add_f32 v40, v40, v41
    s_nop 1
    v_add_f32_dpp v40, v40, v40 row_ror:4 {DPP}
    s_nop 1
    v_add_f32_dpp v40, v40, v40 row_ror:8 {DPP}
    """)
    p.setexec(0x000f000f)
    p(f"""
    v_add_f32 v40, v40, v60
    v_cvt_pk_bf16_f32 v40, v40, v40
    global_store_short v17, v40, {OUT}
    s_cmp_lg_u32 s2, 0
    s_cbranch_scc1 L_fin
    s_mov_b64 exec, 1
    v_mov_b32 v42, 0
    global_store_dword v42, v253, {WS}
L_fin:
    """)
    E = NSTAMP - 1
    if "amp" in opts:
        i = opts["amp"]
        p(f"""
        s_memrealtime s[{64+2*E}:{65+2*E}]
        s_waitcnt lgkmcnt(0)
        s_cmp_lg_u32 s2, {opts.get("ampwg", 0)}
        s_cbranch_scc1 L_end
        s_cmp_lg_u32 s62, {opts.get("ampw", 0)}
        s_cbranch_scc1 L_end
        s_sub_u32 s63, s{64+2*i}, s64
        s_mul_i32 s63, s63, 10
        s_min_u32 s63, s63, 100000
        {"s_mov_b32 s63, %d" % opts["fix"] if "fix" in opts else ""}
        s_add_u32 s63, s63, s{64+2*E}
L_amp:
        s_memrealtime s[50:51]
        s_waitcnt lgkmcnt(0)
        s_sub_u32 s61, s50, s63
        s_cmp_lt_i32 s61, 0
        s_cbranch_scc1 L_amp
        """)
    elif opts.get("stamps"):
        p(f"""
        s_memrealtime s[{64+2*E}:{65+2*E}]
        s_sleep 127
        s_waitcnt lgkmcnt(0)
        s_lshl_b32 s50, s2, 3
        s_add_u32 s50, s50, s62
        s_lshl_b32 s50, s50, 8
        s_add_u32 s50, s50, {STAMP_OFF}
        s_mov_b64 exec, 1
        v_mov_b32 v3, s50
        """)
        for i in range(NSTAMP):
            p(f"v_mov_b32 v4, s{64+2*i}\nv_mov_b32 v5, s{65+2*i}\nglobal_store_dwordx2 v3, v[4:5], {WS} offset:{8*i}")
    p("s_endpgm")
    al = a.L; pl = p.L
    if opts.get("heads", 1):
        ia = next(i for i, l in enumerate(al) if "HEAD_END" in l)
        body = c.L + al[:ia] + ["    s_branch L_A2"] + pl + ["L_A2:"] + al[ia:] + cold.L
    else:
        body = c.L + al + pl + cold.L
    body += ["L_end:", "    s_endpgm"]
    opts["names"] = [f"{p.names[i] if i < len(p.names) else '-'}|{a.names[i] if i < len(a.names) else '-'}" for i in range(E)] + ["end"]
    hdr = open("cdna_kernels/" + NAME + ".s.ref").read().split("; Override")[0]
    return hdr + f"""; @launch grid=(256,1,1) block=(512,1,1) lds={opts.get("lds", LDS_BYTES)}
.amdgcn_target "amdgcn-amd-amdhsa--gfx950"
.text
.globl {NAME}_kernel
.p2align 8
.type {NAME}_kernel,@function
{NAME}_kernel:
""" + "\n".join(body) + f"""
.section .rodata,"a"
.p2align 6
.amdhsa_kernel {NAME}_kernel
  .amdhsa_next_free_vgpr 256
  .amdhsa_next_free_sgpr 102
  .amdhsa_accum_offset 256
  .amdhsa_group_segment_fixed_size 0
  .amdhsa_kernarg_size 96
  .amdhsa_user_sgpr_count 2
  .amdhsa_user_sgpr_kernarg_segment_ptr 1
  .amdhsa_system_sgpr_workgroup_id_x 1
  .amdhsa_float_denorm_mode_32 3
.end_amdhsa_kernel
"""

if __name__ == "__main__":
    out = sys.argv[1]
    opts = {}
    for kv in sys.argv[2:]:
        k, v = kv.split("=")
        try: v = int(v)
        except ValueError: pass
        opts[k] = v
    open(out, "w").write(build(opts))
    if opts.get("stamps"): print(",".join(opts["names"]))
```

```python
import sys, struct
NAME = "parallel_sum__sliding_block_cached__geglu_ffn__decode"
STAMP_OFF = 0x10000000
def f32(x): return struct.unpack("<I", struct.pack("<f", x))[0]
def hx(x): return "0x%08x" % (x & 0xffffffff)
DPP = "row_mask:0xf bank_mask:0xf"
NSTAMP = 17
HB = 0x800; QB = 0x1000; GB = 0x11000; MLB = 0x31000; YB = 0x38000; OB = 0x50000; GOFF = 0x100000
L_WQ = 0x0000; L_G = 0x4000; L_WO = 0x8000; L_XN = 0xE000; L_M = 0xE400; L_L = 0xE440; L_F = 0xE480; L_OV = 0xE540
L_QT = 0xE700; L_Q = 0xE800; QSTR = 272; L_O = 0x0000; OSTR = 272
F1, FG, FQ, FW, FP, FV, FD, FO, F1b, FX, FS = [L_F + 16*i for i in range(11)]
LDS_BYTES = 98304
SPIN = 200000; TFALL = 256
LOG2E = 1.4426950408889634
X, K, V, WQ, WO, G, U, D, OUT, WS = "s[4:5]", "s[6:7]", "s[8:9]", "s[10:11]", "s[12:13]", "s[16:17]", "s[18:19]", "s[20:21]", "s[22:23]", "s[26:27]"
WG, PB = "s[56:57]", "s[58:59]"
MF = "v_mfma_f32_16x16x32_bf16"
TL, TG, DUM = 124, 125, 126
def R4(r): return f"v[{r}:{r+3}]"
def R2(r): return f"v[{r}:{r+1}]"
def bc(r):
    return (f"v[{r}:{r+1}]", 0) if r % 2 == 0 else (f"v[{r-1}:{r}]", 1)

class Gen:
    nsync = 0
    def __init__(self, opts):
        self.L = []; self.o = opts; self.vm = []; self.nst = 1; self.names = ["start"]
    def __call__(self, s):
        for l in s.strip("\n").split("\n"):
            l = l.strip()
            if not l: continue
            self.L.append(l if l.endswith(":") else "    " + l)
    def vmem(self, name, s):
        self(s); self.vm.append(name)
    def wait(self, name):
        idx = max(i for i, n in enumerate(self.vm) if n == name)
        self(f"s_waitcnt vmcnt({len(self.vm) - 1 - idx})")
    def lg(self, n): self(f"s_waitcnt lgkmcnt({n})")
    def stamp(self, label=""):
        if not self.o.get("stamps") or self.o.get("light"): return
        i = self.nst; self.nst += 1
        assert i < NSTAMP - 1
        self(f"s_memrealtime s[{64+2*i}:{65+2*i}]   ; stamp {i} {label}")
        self.names.append(label)
    def cnt(self, label):
        if not self.o.get("stamps") or self.o.get("light"): return
        i = self.nst; self.nst += 1
        self(f"s_sub_u32 s31, {SPIN}, s47\ns_mul_i32 s31, s31, 100\ns_add_u32 s{64+2*i}, s64, s31\ns_addc_u32 s{65+2*i}, s65, 0")
        self.names.append(label)
    def setexec(self, m32):
        self(f"s_mov_b32 exec_lo, {hx(m32)}\ns_mov_b32 exec_hi, {hx(m32)}")
    def tag(self, r, tv=TL):
        for i in range(4): self(f"v_perm_b32 v{r+i}, v{r+i}, v{tv}, s{38+i}")
    def chk(self, units, t, acc, ts="s60"):
        for n, r in enumerate(units):
            d = acc if n == 0 else (t + 2 if n % 2 == 1 and n + 1 < len(units) else t)
            self(f"v_perm_b32 v{t}, v{r+1}, v{r}, s44\nv_perm_b32 v{t+1}, v{r+3}, v{r+2}, s45")
            self(f"v_bitop3_b32 v{d}, v{t}, v{t+1}, {ts} bitop3:0x56")
            if n and n % 2 == 0: self(f"v_or3_b32 v{acc}, v{acc}, v{t}, v{t+2}")
            elif n and n + 1 == len(units): self(f"v_or_b32 v{acc}, v{acc}, v{t}")
    def toggle(self):
        self(f"s_and_b32 s31, s47, s54\ns_cselect_b64 {PB}, {WG}, {WS}\ns_cselect_b32 s60, s36, s55")
    def setflag(self, F): self(f"ds_write_b32 v42, v40 offset:{F}")
    def waitflag(self, F, reads=None, nreads=0):
        n = Gen.nsync; Gen.nsync += 1
        self(f"L_ps{n}:\nds_read_b128 v[44:47], v40 offset:{F}")
        if reads: reads()
        self(f"s_waitcnt lgkmcnt({nreads})\nv_or3_b32 v44, v44, v45, v46\nv_or_b32 v44, v44, v47\nv_cmp_ne_u32 vcc, 0, v44\ns_cbranch_vccnz L_ps{n}")
    def pkmul(self, d, s, f):
        src, h = bc(f); self(f"v_pk_mul_f32 {R2(d)}, {R2(s)}, {src} op_sel:[0,{h}] op_sel_hi:[1,{h}]")
    def pkfma(self, d, s, f):
        src, h = bc(f); self(f"v_pk_fma_f32 {R2(d)}, {R2(s)}, {src}, {R2(d)} op_sel:[0,{h},0] op_sel_hi:[1,{h},1]")

def build(opts):
    Gen.nsync = 0
    c = Gen(opts); p = Gen(opts); a = Gen(opts); cold = Gen(opts)
    NT = " nt" if opts.get("nt", 0) else ""
    pace = opts.get("pace", 8)
    def tags(g):
        g(f"""
        s_mul_i32 s36, s36, 0x9E3779B1
        s_add_u32 s36, s36, 0x7F4A7C15
        s_add_u32 s55, s55, 1
        s_mul_i32 s55, s55, 0x85EBCA6B
        s_xor_b32 s55, s55, s36
        s_mov_b32 s60, s55
        v_mov_b32 v{TL}, s55
        v_mov_b32 v{TG}, s36
        """)
    def consts(g):
        g(f"""
        s_getreg_b32 s55, hwreg(HW_REG_XCC_ID, 0, 4)
        s_add_u32 s56, s26, {GOFF}
        s_addc_u32 s57, s27, 0
        s_mov_b64 {PB}, {WS}
        s_mov_b32 s54, 0
        s_lshr_b32 s31, s29, 3
        s_lshl_b32 s52, s28, 2
        s_add_u32 s52, s52, s31                 ; 4g+hh
        s_mov_b32 s38, 0x07060500
        s_mov_b32 s39, 0x07060501
        s_mov_b32 s40, 0x07060502
        s_mov_b32 s41, 0x07060503
        s_mov_b32 s44, 0x0c0c0400
        s_mov_b32 s45, 0x04000c0c
        s_lshl_b32 s31, s3, 2
        v_mov_b32 v42, s31
        v_mov_b32 v40, 0
        s_lshl_b32 s61, s28, 13
        s_add_u32 s61, s61, {QB}
        s_and_b32 s31, s29, 3
        s_lshl_b32 s31, s31, 11
        s_add_u32 s31, s31, s61
        s_and_b32 s32, s29, 28
        s_add_u32 s32, s32, s3
        s_lshl_b32 s32, s32, 6
        s_add_u32 s31, s31, s32
        v_lshl_add_u32 v5, v10, 4, s31
        s_lshl_b32 s31, s30, 2
        s_add_u32 s31, s31, {HB}
        v_mov_b32 v38, s31
        s_lshl_b32 s31, s3, 6
        v_lshl_add_u32 v41, v10, 4, s31
        """)
    if opts.get("stamps"): c("s_memrealtime s[64:65]")
    c(f"""
    s_load_dwordx16 s[4:19], s[0:1], 0
    s_load_dwordx8 s[20:27], s[0:1], 64
    s_cmp_ge_u32 s2, 256
    s_cbranch_scc1 L_end
    """)
    if opts.get("stamps"):
        for i in range(1, NSTAMP): c(f"s_mov_b64 s[{64+2*i}:{65+2*i}], 0")
    c(f"""
    v_lshrrev_b32 v2, 6, v0
    v_and_b32 v1, 63, v0
    v_readfirstlane_b32 s62, v2
    s_and_b32 s28, s2, 7
    s_lshr_b32 s29, s2, 3
    {"s_xor_b32 s29, s29, %d" % opts["jx"] if opts.get("jx") else ""}
    s_lshl_b32 s30, s28, 5
    s_add_u32 s30, s30, s29                 ; p
    v_lshlrev_b32 v2, 4, v1                 ; lane*16
    v_lshrrev_b32 v12, 3, v1                ; lane>>3
    v_and_b32 v13, 0x70, v2                 ; (lane&7)*16
    v_and_b32 v9, 15, v1
    v_lshrrev_b32 v10, 4, v1
    s_and_b32 s3, s62, 3
    s_cmp_ge_u32 s62, 4
    s_cbranch_scc1 L_A1
    """)
    KR, VR, VT = 128, 160, 192
    QO, S, PM, DD = 48, 64, 72, 88
    ONE, LD, MK = 96, 100, 104
    order = opts.get("ord", "i.q.t.w.j").split(".")
    width = {"i":2, "q":2, "t":1, "w":2, "j":5, "jl":3, "jh":2}
    sh = {}; b_ = 8
    for f_ in order: sh[f_] = b_; b_ += width[f_]
    assert b_ == 20
    KMAP = f"s_lshl_b32 s31, s3, {sh['w']}\n"
    if "j" in sh: KMAP += f"s_lshl_b32 s32, s29, {sh['j']}\ns_add_u32 s31, s31, s32\n"
    else: KMAP += f"s_and_b32 s32, s29, 7\ns_lshl_b32 s32, s32, {sh['jl']}\ns_add_u32 s31, s31, s32\ns_lshr_b32 s32, s29, 3\ns_lshl_b32 s32, s32, {sh['jh']}\ns_add_u32 s31, s31, s32\n"
    opts.setdefault("xm", 7)
    if opts.get("xm"): KMAP += f"s_xor_b32 s33, s29, s28\ns_and_b32 s33, s33, {opts['xm']}\ns_lshl_b32 s33, s33, {sh['t']}\ns_xor_b32 s31, s31, s33\n"
    KMAP += f'''s_lshl_b32 s32, s28, 24
    s_add_u32 s31, s31, s32
    s_add_u32 s31, s31, {61440*256}
    v_and_b32 v7, 3, v9
    v_lshlrev_b32 v7, {sh["i"]}, v7
    v_lshrrev_b32 v8, 2, v9
    v_lshl_add_u32 v7, v8, {sh["q"]}, v7
    v_lshl_add_u32 v7, v10, 4, v7
    v_add_u32 v7, s31, v7
    v_xor_b32 v26, {1 << sh["t"]}, v7
    v_lshlrev_b32 v8, {sh["q"]}, v10
    v_lshl_add_u32 v8, v9, 4, v8
    v_add_u32 v8, s31, v8                   ; V voff'''
    a(f"""
    s_getpc_b64 s[34:35]
L_pc:
    s_lshl_b32 s31, s29, 2
    s_add_u32 s31, s31, s3
    s_lshl_b32 s31, s31, 7
    s_min_u32 s31, s31, L_end-L_pc
    v_mov_b32 v14, s31
    s_mov_b64 exec, 1
    global_load_dword v{DUM}, v14, s[34:35]
    s_mov_b64 exec, -1
    v_lshlrev_b32 v14, 2, v1
    v_mov_b32 v15, -1
    ds_write_b32 v14, v15 offset:{L_M}
    ds_write_b32 v14, v15 offset:{L_M+64}
    {KMAP}
    s_setprio 1
    s_waitcnt lgkmcnt(0)
    """)
    a.stamp("karg")
    a(f"s_load_dword s36, {WS}, 0")
    a("s_barrier")
    if opts.get("headk", 1) == 0: a("; HEAD_END")
    consts(a)
    a(f"""
    s_lshl_b32 s31, s3, 9
    s_add_u32 s31, s31, s61
    s_add_u32 s31, s31, 4096
    v_and_b32 v14, 0x1f0, v2
    v_lshrrev_b32 v6, 5, v1
    v_lshl_add_u32 v6, v6, 11, v14
    v_add_u32 v6, s31, v6
    s_lshl_b32 s31, s28, 7
    s_add_u32 s31, s31, {HB}
    v_lshrrev_b32 v14, 2, v14
    v_add_u32 v39, s31, v14
    """)
    if opts.get("kdelay", 5): a(f"s_sleep {opts.get('kdelay', 5)}")
    if opts.get("alt", 0): seq = "K00 K01 V4 V5 K02 K03 V6 V7 K10 K11 V0 V1 K12 K13 V2 V3".split()
    else: seq = "K00 K01 K02 K03 K10 K11 K12 K13 V0 V1 V2 V3 V4 V5 V6 V7".split()
    def kv(nm):
        if nm[0] == "K":
            t, s = int(nm[1]), int(nm[2])
            a.vmem(nm, f"global_load_dwordx4 {R4(KR+16*t+4*s)}, v{(7,26)[t]}, {K} offset:{64*s}{NT}")
        else:
            t = int(nm[1])
            off = ((t >> 2) << sh["t"]) + ((t & 3) << sh["i"])
            if t: a(f"v_xor_b32 v27, {hx(off)}, v8")
            a.vmem(nm, f"global_load_dwordx4 {R4(VR+4*t)}, v{27 if t else 8}, {V}{NT}")
    n0 = opts.get('n0', 8)
    for nm in seq[:n0]: kv(nm)
    a.stamp("K_iss")
    if opts.get("headk", 1): a("; HEAD_END")
    def prep():
        for r in range(ONE, ONE+4): a(f"v_mov_b32 v{r}, 0x3f803f80")
        a("v_bfe_u32 v14, v1, 2, 2")
        for e in range(4): a(f"v_cmp_eq_u32 s[50:51], {e}, v14\ns_nop 1\nv_cndmask_b32 v{MK+e}, 0, -1, s[50:51]")
        a(f"""
        s_mov_b32 s42, 0x05040100
        s_mov_b32 s43, 0x07060302
        s_mul_i32 s31, s3, {QSTR}
        s_add_u32 s31, s31, {L_Q}
        v_and_b32 v24, 31, v1
        v_lshl_add_u32 v24, v24, 3, s31
        v_lshrrev_b32 v14, 5, v1
        v_lshl_add_u32 v24, v14, 2, v24
        v_and_b32 v17, 3, v1
        v_mul_u32_u24 v17, {QSTR}, v17
        v_lshl_add_u32 v14, v10, 4, v17
        s_mov_b32 s48, {hx(f32(128**-0.5))}
        s_mov_b32 s49, {hx(f32(LOG2E))}
        s_mul_i32 s31, s3, {8*OSTR}
        v_mul_u32_u24 v15, {OSTR}, v10
        v_lshl_add_u32 v15, v9, 4, v15
        v_add_u32 v15, s31, v15
        v_add_u32 v16, v42, v2
        v_and_b32 v18, 12, v1
        v_add_u32 v18, v18, v10
        v_lshl_add_u32 v17, v18, 4, v17
        s_mul_i32 s31, s3, {4*OSTR}
        v_add_u32 v17, s31, v17
        v_lshlrev_b32 v18, 4, v10
        s_lshl_b32 s31, s30, 3
        s_add_u32 s31, s31, s3
        s_lshl_b32 s31, s31, 8
        s_add_u32 s31, s31, {OB}
        v_lshlrev_b32 v19, 9, v10
        v_lshl_add_u32 v19, v9, 4, v19
        v_add_u32 v19, s31, v19                  ; O voff
        s_lshl_b32 s31, s28, 10
        s_lshl_b32 s32, s29, 3
        s_add_u32 s31, s31, s32
        s_add_u32 s31, s31, {MLB}
        v_lshl_add_u32 v20, v10, 8, s31
        s_lshl_b32 s31, s28, 16
        s_and_b32 s32, s29, 24
        s_lshl_b32 s32, s32, 6
        s_add_u32 s31, s31, s32
        s_lshl_b32 s32, s3, 7
        s_add_u32 s31, s31, s32
        s_add_u32 s31, s31, {OB+4096}
        v_lshl_add_u32 v43, v12, 13, v13
        v_add_u32 v43, s31, v43
        s_lshl_b32 s31, s52, 8
        s_add_u32 s31, s31, {MLB}
        v_lshl_add_u32 v21, v12, 5, s31
        v_and_b32 v22, 3, v1
        v_lshlrev_b32 v22, 6, v22
        v_lshl_add_u32 v22, v10, 4, v22
        v_bfe_u32 v23, v1, 2, 1
        v_lshl_add_u32 v22, v23, 1, v22
        v_add_u32 v22, v42, v22
        s_mov_b32 s47, {SPIN}
        s_waitcnt lgkmcnt(0)
        """)
        tags(a)
    assert QSTR == OSTR
    prep()
    def pollq(g, r=28):
        g(f"global_load_dwordx4 {R4(r)}, v6, {PB} offset:-4096 sc1\nglobal_load_dwordx4 {R4(r+4)}, v6, {PB} sc1\nglobal_load_dword v{r+8}, v39, {PB} sc1")
    if n0 < 8:
        a.waitflag(FP)
        for nm in seq[n0:8]: kv(nm)
    pq_at = opts.get("pq_at", 4)
    def dopoll():
        a.setflag(FV)
        a.waitflag(FV)
        pollq(a); a.vm += ["pq0", "pq1", "pq"]
        a.stamp("pq_iss")
    a("s_mov_b64 vcc, -1")
    for t in range(8):
        if opts.get("gate", 0) == t: a.waitflag(FP)
        if 8 + t >= pace and opts.get("gate", 0) < 0:
            a(f"""
            s_cbranch_vccz L_pa{t}
            s_waitcnt vmcnt({pace-1})
            ds_read_b128 v[44:47], v40 offset:{FP}
            s_waitcnt lgkmcnt(0)
            v_or3_b32 v44, v44, v45, v46
            v_or_b32 v44, v44, v47
            v_cmp_ne_u32 vcc, 0, v44
L_pa{t}:
            """)
        if t == pq_at: dopoll()
        kv(seq[8+t])
    a.stamp("V_iss")
    if opts.get("so"):
        a.setflag(FV); a.setflag(FW)
        a("s_waitcnt vmcnt(0)")
        a.setflag(FQ)
        a("s_branch L_fin")
    if pq_at == 8: dopoll()
    pq2 = opts.get("pq2", 2)
    if pq2:
        if pq2 == 2:
            a.setflag(F1b); a.waitflag(F1b)
        pollq(a, 112); a.vm += ["pr0", "pr1", "pr"]
    a.setflag(FW)
    def vperm(tp):
        a.wait(f"V{2*tp+1}")
        for d in range(4):
            lo = VR + 8*tp + d; hi = lo + 4
            a(f"v_perm_b32 v{VT+4*(2*d)+tp}, v{hi}, v{lo}, s42")
            a(f"v_perm_b32 v{VT+4*(2*d+1)+tp}, v{hi}, v{lo}, s43")
    npre = pq_at // 2
    for tp in range(npre): vperm(tp)
    a.wait("pq")
    a.stamp("pq_ret")
    a("L_pq:")
    a.chk([28, 32], 25, 37)
    a(f"""
    v_xor_b32 v25, s60, v36
    v_or_b32 v37, v37, v25
    v_cmp_ne_u32 vcc, 0, v37
    s_cbranch_vccnz L_pq_retry
L_pq_ok:
    s_mov_b64 exec, -1
    v_pk_add_f32 v[28:29], v[28:29], v[32:33]
    v_pk_add_f32 v[30:31], v[30:31], v[34:35]
    s_nop 1
    v_permlane32_swap_b32 v28, v30
    v_permlane32_swap_b32 v29, v31
    v_pk_add_f32 v[28:29], v[28:29], v[30:31]
    v_cvt_pk_bf16_f32 v28, v28, v29
    ds_write_b32 v24, v28
    """)
    a.setflag(FQ)
    cold("L_pq_retry:\ns_sub_u32 s47, s47, 1\ns_cbranch_scc1 L_pq_ok")
    if pq2:
        cold(f"s_cmp_lg_u32 s47, {SPIN-1}\ns_cbranch_scc1 L_pq_r2\ns_waitcnt vmcnt(0)")
        for i in range(9): cold(f"v_mov_b32 v{28+i}, v{112+i}")
        cold("s_branch L_pq\nL_pq_r2:")
    cold(f"""
    s_cmp_lg_u32 s47, {SPIN-TFALL}
    s_cbranch_scc1 L_pq_nf
    s_mov_b32 s54, 1
    s_mov_b64 exec, -1
    s_mov_b64 s[50:51], vcc
    """)
    cold.waitflag(FP, lambda: cold(f"ds_read_b128 {R4(S)}, v41 offset:{L_QT}"), 0)
    cold("s_mov_b64 vcc, s[50:51]")
    cold.setexec(0x00010001)
    cold.tag(S, TG)
    cold(f"""
    global_store_dword v38, v{TG}, {WG} sc1
    global_store_dwordx4 v5, {R4(S)}, {WG} sc1
L_pq_nf:
    s_mov_b64 exec, vcc
    """)
    cold.toggle(); pollq(cold)
    cold("s_waitcnt vmcnt(0)\ns_branch L_pq")
    a.cnt("#pq")
    def qreads():
        for s in range(4): a(f"ds_read_b128 {R4(QO+4*s)}, v14 offset:{L_Q+64*s}")
    a.waitflag(FQ, qreads, 4)
    a.stamp("q_ok")
    for s in range(4):
        a.lg(3-s)
        for t in range(2):
            a(f"{MF} {R4(S+4*t)}, {R4(KR+16*t+4*s)}, {R4(QO+4*s)}, {'0' if s==0 else R4(S+4*t)}")
    a(f"s_mov_b32 s47, {SPIN}\ns_nop 5")
    for i in range(8): a(f"v_cvt_pk_bf16_f32 v{S+i}, 0, v{S+i}")
    for i in range(0, 8, 2): a(f"v_pk_mul_f32 {R2(S+i)}, {R2(S+i)}, s[48:49] op_sel_hi:[1,0]")
    for i in range(8): a(f"v_cvt_pk_bf16_f32 v{S+i}, 0, v{S+i}")
    a(f"""
    v_max3_f32 v108, v{S}, v{S+1}, v{S+2}
    v_max3_f32 v109, v{S+3}, v{S+4}, v{S+5}
    v_max3_f32 v108, v108, v{S+6}, v{S+7}
    v_max_f32 v108, v108, v109
    """)
    for sw in (16, 32):
        a(f"v_mov_b32 v109, v108\ns_nop 1\nv_permlane{sw}_swap_b32 v108, v109\nv_max_f32 v108, v108, v109")
    a("v_mul_f32 v108, s49, v108")
    for i in range(0, 8, 2):
        a(f"v_pk_fma_f32 {R2(S+i)}, {R2(S+i)}, s[48:49], v[108:109] op_sel:[0,1,0] op_sel_hi:[1,1,0] neg_lo:[0,0,1] neg_hi:[0,0,1]")
    for i in range(8): a(f"v_exp_f32 v{S+i}, v{S+i}")
    a("v_min_u32 v108, -2, v108")
    for i in range(4): a(f"v_cvt_pk_bf16_f32 v{S+i}, v{S+2*i}, v{S+2*i+1}")
    def msk(e):
        for i in range(4): a(f"v_and_b32 v{PM+4*e+i}, v{S+i}, v{MK+e}")
    def pv(e):
        for hf in range(2):
            a(f"{MF} {R4(DD+4*hf)}, {R4(VT+4*(4*hf+e))}, {R4(PM+4*e)}, {'0' if e==0 else R4(DD+4*hf)}")
    msk(0)
    a(f"{MF} {R4(LD)}, {R4(ONE)}, {R4(S)}, 0")
    if npre == 4:
        msk(1); a.stamp("V"); pv(0); msk(2); pv(1); msk(3); pv(2); pv(3)
    else:
        msk(1); msk(2); msk(3)
        for tp in range(npre, 4): vperm(tp)
        a.stamp("V")
        a("s_nop 1")
        for e in range(4): pv(e)
    a(f"""
    s_mov_b64 exec, 0xf
    ds_write_b32 v16, v{LD} offset:{L_L}
    s_mov_b64 exec, -1
    s_nop 3
    ds_write_b128 v15, {R4(DD)} offset:{L_O}
    ds_write_b128 v15, {R4(DD+4)} offset:{L_O+4*OSTR}
    s_mov_b64 exec, 0xf
    ds_write_b32 v16, v108 offset:{L_M}
    s_mov_b64 exec, -1
    """)
    a.stamp("PV")
    a(f"""
    s_cmp_ge_u32 s3, 2
    s_cbranch_scc1 L_nocomb
L_cmb:
    ds_read_b128 {R4(S)}, v18 offset:{L_M}
    ds_read_b128 {R4(S+4)}, v18 offset:{L_L}
    """)
    for w in range(4):
        a(f"ds_read_b128 {R4(PM+4*w)}, v17 offset:{L_O+8*OSTR*w}")
    a.lg(5)
    a(f"""
    v_max3_u32 v110, v{S}, v{S+1}, v{S+2}
    v_max3_f32 v108, v{S}, v{S+1}, v{S+2}
    v_max_u32 v110, v110, v{S+3}
    v_max_f32 v108, v108, v{S+3}
    v_cmp_eq_u32 vcc, -1, v110
    s_cbranch_vccnz L_cmb
    v_pk_add_f32 {R2(S)}, {R2(S)}, v[108:109] op_sel_hi:[1,0] neg_lo:[0,1] neg_hi:[0,1]
    v_pk_add_f32 {R2(S+2)}, {R2(S+2)}, v[108:109] op_sel_hi:[1,0] neg_lo:[0,1] neg_hi:[0,1]
    """)
    for w in range(4): a(f"v_exp_f32 v{S+w}, v{S+w}")
    a.lg(4)
    a(f"""
    v_pk_mul_f32 {R2(S+4)}, {R2(S)}, {R2(S+4)}
    v_pk_fma_f32 {R2(S+4)}, {R2(S+2)}, {R2(S+6)}, {R2(S+4)}
    v_add_f32 v110, v{S+4}, v{S+5}
    v_rcp_f32 v111, v110
    v_log_f32 v110, v110
    s_waitcnt lgkmcnt(0)
    """)
    a.pkmul(DD, PM, S); a.pkmul(DD+2, PM+2, S)
    a(f"v_add_f32 v108, v108, v110\nv_mov_b32 v109, v{TL}")
    for w in range(1, 4):
        a.pkfma(DD, PM+4*w, S+w); a.pkfma(DD+2, PM+4*w+2, S+w)
    a.pkmul(DD, DD, 111); a.pkmul(DD+2, DD+2, 111)
    a.tag(DD)
    a(f"global_store_dwordx4 v19, {R4(DD)}, {WS}")
    a.setexec(0x00010001)
    a(f"""
    global_store_dwordx2 v20, v[108:109], {WS}
    s_mov_b64 exec, -1
    s_cmp_lg_u32 s54, 0
    s_cbranch_scc1 L_fbO
L_nocomb:
    """)
    cold("L_fbO:")
    cold.tag(DD, TG)
    cold(f"v_mov_b32 v109, v{TG}\nglobal_store_dwordx4 v19, {R4(DD)}, {WG} sc1")
    cold.setexec(0x00010001)
    cold(f"global_store_dwordx2 v20, v[108:109], {WG} sc1\ns_mov_b64 exec, -1\ns_branch L_nocomb")
    a.setflag(FS)
    a.stamp("pubO")
    if opts.get("fx", 1): a.waitflag(FX)
    a.stamp("FX")
    LS, OD = 48, 56
    def odata(g):
        for k in range(4): g(f"global_load_dwordx4 {R4(OD+4*k)}, v43, {PB} offset:{2048*k-4096} sc1")
    if not opts.get("spec", 0): a("s_mov_b64 vcc, -1\ns_branch L_po_retry")
    a("L_po:")
    for k in range(2): a(f"global_load_dwordx4 {R4(LS+4*k)}, v21, {PB} offset:{16*k} sc1")
    odata(a)
    a(f"""
    s_mov_b64 exec, -1
    s_waitcnt vmcnt(4)
    v_xor_b32 v76, s60, v{LS+1}
    v_xor_b32 v77, s60, v{LS+3}
    v_xor_b32 v78, s60, v{LS+5}
    v_or3_b32 v76, v76, v77, v78
    v_xor_b32 v77, s60, v{LS+7}
    v_or_b32 v76, v76, v77
    v_cmp_ne_u32 vcc, 0, v76
    s_cbranch_vccnz L_po_retry
L_po_ok:
    v_max3_f32 v76, v{LS}, v{LS+2}, v{LS+4}
    v_max_f32 v76, v76, v{LS+6}
    s_nop 1
    v_max_f32_dpp v76, v76, v76 row_ror:8 {DPP}
    v_mov_b32 v77, v76
    s_nop 1
    v_permlane16_swap_b32 v76, v77
    v_max_f32 v76, v76, v77
    v_mov_b32 v77, v76
    s_nop 1
    v_permlane32_swap_b32 v76, v77
    v_max_f32 v76, v76, v77
    v_sub_f32 v80, v{LS}, v76
    v_sub_f32 v81, v{LS+2}, v76
    v_sub_f32 v82, v{LS+4}, v76
    v_sub_f32 v83, v{LS+6}, v76
    v_exp_f32 v80, v80
    v_exp_f32 v81, v81
    v_exp_f32 v82, v82
    v_exp_f32 v83, v83
    s_nop 0
    v_pk_add_f32 v[84:85], v[80:81], v[82:83]
    v_add_f32 v84, v84, v85
    v_mov_b32 v85, v84
    s_nop 1
    v_permlane32_swap_b32 v84, v85
    v_add_f32 v84, v84, v85
    v_mov_b32 v85, v84
    s_nop 1
    v_permlane16_swap_b32 v84, v85
    v_add_f32 v84, v84, v85
L_pd:
    s_waitcnt vmcnt(0)
    """)
    a.chk([OD, OD+4, OD+8, OD+12], 76, 79)
    a(f"""
    v_cmp_ne_u32 vcc, 0, v79
    s_cbranch_vccnz L_pd_retry
L_pd_ok:
    """)
    a.stamp("O_ok")
    cold(f"""
L_po_retry:
    s_sub_u32 s47, s47, 1
    s_cbranch_scc1 L_po_giveup
    s_cmp_lg_u32 s54, 0
    s_cbranch_scc1 L_po_fb
    s_mov_b64 exec, vcc
    {"s_sleep %d" % opts["oslp"] if opts.get("oslp") else ""}
    """)
    for k in range(2): cold(f"global_load_dwordx4 {R4(LS+4*k)}, v21, {PB} offset:{16*k} sc1")
    cold(f"""
    s_waitcnt vmcnt(0)
    v_xor_b32 v76, s60, v{LS+1}
    v_xor_b32 v77, s60, v{LS+3}
    v_xor_b32 v78, s60, v{LS+5}
    v_or3_b32 v76, v76, v77, v78
    v_xor_b32 v77, s60, v{LS+7}
    v_or_b32 v76, v76, v77
    v_cmp_ne_u32 vcc, 0, v76
    s_andn2_b64 exec, exec, vcc
    s_cbranch_execz L_po_retry
    """)
    odata(cold)
    cold(f"""
    s_cbranch_vccnz L_po_retry
L_po_giveup:
    s_mov_b64 exec, -1
    s_branch L_po_ok
L_po_fb:
    """)
    cold.toggle()
    cold(f"""
    s_branch L_po
L_pd_retry:
    s_sub_u32 s47, s47, 1
    s_cbranch_scc1 L_pd_ok
    s_mov_b64 exec, vcc
    """)
    odata(cold)
    cold("s_mov_b64 exec, -1\ns_branch L_pd")
    a(f"v_add_f32_dpp v84, v84, v84 row_ror:8 {DPP}")
    a.pkmul(OD, OD, 80); a.pkmul(OD+2, OD+2, 80)
    a("v_rcp_f32 v84, v84")
    for k in range(1, 4):
        a.pkfma(OD, OD+4*k, 80+k); a.pkfma(OD+2, OD+4*k+2, 80+k)
    a(f"""
    s_nop 1
    v_permlane32_swap_b32 v{OD}, v{OD+2}
    v_permlane32_swap_b32 v{OD+1}, v{OD+3}
    v_pk_add_f32 {R2(OD)}, {R2(OD)}, {R2(OD+2)}
    s_nop 1
    v_permlane16_swap_b32 v{OD}, v{OD+1}
    v_add_f32 v{OD}, v{OD}, v{OD+1}
    s_nop 1
    v_add_f32_dpp v{OD}, v{OD}, v{OD} row_ror:8 {DPP}
    v_mul_f32 v{OD}, v{OD}, v84
    v_cvt_pk_bf16_f32 v{OD}, v{OD}, v{OD}
    ds_write_b16 v22, v{OD} offset:{L_OV}
    """)
    a.setflag(FO)
    a.stamp("o_wr")
    a.cnt("#po")
    a("s_branch L_fin" if opts.get("stamps") else "s_endpgm")

    TR, QD = 64, 88
    p(f"""
    s_and_b32 s31, s29, 3
    s_lshl_b32 s31, s31, 2
    s_add_u32 s31, s31, s3
    s_lshl_b32 s31, s31, 18
    s_lshr_b32 s32, s30, 2
    s_lshl_b32 s32, s32, 7
    s_add_u32 s31, s31, s32
    v_and_b32 v43, 16, v1
    v_lshlrev_b32 v43, 1, v43
    v_xor_b32 v43, v43, v13
    v_lshl_add_u32 v3, v12, 13, v43
    v_add_u32 v3, s31, v3
    v_xor_b32 v4, 0x10040, v3
    v_add_u32 v7, 0x20000, v3
    v_xor_b32 v6, 0x30040, v3
    s_lshl_b32 m0, s3, 12
    s_setprio 2
    s_waitcnt lgkmcnt(0)
    """)
    p.stamp("karg")
    p.vmem("x", f"global_load_dwordx4 v[16:19], v2, {X}")
    for i in range(4):
        p.vmem(f"wq{i}", f"global_load_lds_dwordx4 v{(3,4,7,6)[i]}, {WQ}{NT}")
        if i < 3: p("s_add_u32 m0, m0, 1024\ns_nop 0")
    p(f"s_load_dword s36, {WS}, 0")
    p("s_barrier")
    p("; HEAD_END")
    consts(p)
    p(f"""
    s_and_b32 s33, s29, 7
    s_lshl_b32 s31, s33, 2
    s_add_u32 s31, s31, s3
    s_lshl_b32 s31, s31, 11
    s_lshl_b32 s32, s52, 6
    s_add_u32 s31, s31, s32
    s_add_u32 s31, s31, {YB}
    v_lshl_add_u32 v39, v10, 4, s31         ; Y voff
    s_lshl_b32 s31, s30, 11
    s_add_u32 s31, s31, {OB}
    s_mov_b32 s32, 15
    s_lshl_b32 s48, s30, 9
    s_add_u32 s48, s48, {GB}
    s_cmp_eq_u32 s3, 1
    s_cselect_b32 s31, s48, s31
    s_cselect_b32 s32, 3, s32
    s_lshl_b32 s48, s30, 8
    s_add_u32 s48, s48, {QB}
    s_cmp_eq_u32 s3, 2
    s_cselect_b32 s31, s48, s31
    s_cselect_b32 s32, 1, s32
    s_lshl_b32 s48, s30, 5
    s_add_u32 s48, s48, {MLB}
    s_cmp_eq_u32 s3, 3
    s_cselect_b32 s31, s48, s31
    s_cselect_b32 s32, 0, s32
    v_and_b32 v44, s32, v1
    v_lshl_add_u32 v44, v44, 7, s31
    v_cmp_gt_u32 vcc, 16, v1
    v_cmp_gt_u32 s[50:51], 32, v1
    s_nop 0
    v_cndmask_b32 v44, v38, v44, vcc
    v_cndmask_b32 v44, v39, v44, s[50:51]
    """)
    if opts.get("pre", 1): p.vmem("pre", f"global_load_dword v{DUM}, v44, {WS}{NT}")
    p(f"""
    s_and_b32 s53, s29, 24
    s_add_u32 s53, s53, s28
    s_lshl_b32 s32, s33, 2
    s_add_u32 s32, s32, s3
    s_mul_i32 s32, s32, {16*3584}
    s_lshl_b32 s31, s53, 7
    s_add_u32 s32, s32, s31
    v_mul_u32_u24 v11, 3584, v12
    v_add3_u32 v11, v11, v43, s32
    v_add_u32 v14, {8*3584}, v11
    v_xor_b32 v14, 64, v14
    v_lshl_add_u32 v37, v12, 10, v43
    s_lshl_b32 s31, s52, 2
    s_add_u32 s31, s31, s3
    s_lshl_b32 s31, s31, 15
    s_lshl_b32 s32, s33, 7
    s_add_u32 s31, s31, s32
    v_add_u32 v36, s31, v37
    s_lshl_b32 s31, s53, 2
    s_add_u32 s31, s31, s3
    s_lshl_b32 s31, s31, 14
    s_add_u32 s31, s31, s32
    v_add_u32 v37, s31, v37
    v_bfe_u32 v3, v1, 2, 2
    v_lshl_add_u32 v3, v10, 3, v3
    v_lshlrev_b32 v3, 7, v3
    v_and_b32 v4, 3, v1
    v_lshl_add_u32 v3, v4, 3, v3
    s_lshl_b32 s31, s3, 5
    v_add_u32 v3, s31, v3
    v_bfe_u32 v4, v1, 3, 2
    v_lshlrev_b32 v4, 5, v4
    v_xor_b32 v3, v3, v4
    s_and_b32 s31, s29, 3
    s_lshl_b32 s31, s31, 8
    v_lshl_add_u32 v4, v10, 4, s31
    s_lshl_b32 s31, s33, 7
    v_lshl_add_u32 v6, v10, 4, s31
    s_lshl_b32 s49, s3, 11
    """)
    early = opts.get("early", 0)
    def gu_issue():
        for i in range(2):
            for m, (nm, P) in enumerate((("g", G), ("u", U))):
                p(f"s_add_u32 m0, s49, {L_G + 1024*i + 8192*m}\ns_nop 0")
                p.vmem(f"{nm}{i}", f"global_load_lds_dwordx4 v{11 if i==0 else 14}, {P}{NT}")
    def wd_issue():
        for n in range(2):
            p(f"s_add_u32 m0, s49, {L_WO + 16384 + 1024*n}\ns_nop 0")
            p.vmem(f"w{4+n}", f"global_load_lds_dwordx4 v37, {D}{NT}")
            if n == 0: p("v_xor_b32 v37, 0x2040, v37")
    if early >= 1:
        p("s_cmp_ge_u32 s53, 28\ns_cselect_b64 exec, 1, -1\ns_cbranch_scc0 L_ef\nv_mov_b32 v11, 0\nv_mov_b32 v14, 0\nv_mov_b32 v37, 0\nL_ef:")
        gu_issue()
        if early >= 2: wd_issue()
        p("s_mov_b64 exec, -1")
    p.wait("x")
    p.stamp("x")
    xs = list(range(20, 28))
    for i in range(4):
        p(f"v_lshlrev_b32 v{xs[2*i]}, 16, v{16+i}\nv_and_b32 v{xs[2*i+1]}, 0xffff0000, v{16+i}")
    p("v_readfirstlane_b32 s50, v20\ns_nop 1")
    for i in range(4):
        p(f"v_pk_add_f32 {R2(48+2*i)}, {R2(20+2*i)}, s[50:51] op_sel_hi:[1,0] neg_lo:[0,1] neg_hi:[0,1]")
    p(f"""
    v_pk_mul_f32 v[30:31], v[48:49], v[48:49]
    v_pk_add_f32 v[28:29], v[48:49], v[50:51]
    v_pk_fma_f32 v[30:31], v[50:51], v[50:51], v[30:31]
    v_pk_add_f32 v[28:29], v[28:29], v[52:53]
    v_pk_fma_f32 v[30:31], v[52:53], v[52:53], v[30:31]
    v_pk_add_f32 v[28:29], v[28:29], v[54:55]
    v_pk_fma_f32 v[30:31], v[54:55], v[54:55], v[30:31]
    v_add_f32 v28, v28, v29
    v_add_f32 v29, v30, v31
    s_nop 0
    """)
    for r in (1, 2, 4, 8):
        p(f"v_add_f32_dpp v28, v28, v28 row_ror:{r} {DPP}\nv_add_f32_dpp v29, v29, v29 row_ror:{r} {DPP}\ns_nop 0")
    p(f"""
    s_nop 0
    v_permlane32_swap_b32 v28, v29
    v_add_f32 v28, v28, v29
    v_mov_b32 v29, v28
    s_nop 1
    v_permlane16_swap_b32 v28, v29
    v_add_f32 v28, v28, v29
    v_mul_f32 v28, {hx(f32(1/512))}, v28
    s_nop 0
    v_readlane_b32 s32, v28, 0
    v_readlane_b32 s48, v28, 32
    s_nop 0
    v_mov_b32 v28, s32
    v_fma_f32 v29, -v28, v28, s48
    v_add_f32 v28, s50, v28
    v_max_f32 v29, 0, v29
    v_cvt_pk_bf16_f32 v28, 0, v28
    v_cvt_pk_bf16_f32 v29, 0, v29
    v_add_f32 v29, {hx(f32(1e-5))}, v29
    v_cvt_pk_bf16_f32 v29, 0, v29
    v_sqrt_f32 v31, v29
    """)
    for i in range(4):
        p(f"v_pk_add_f32 {R2(20+2*i)}, {R2(20+2*i)}, v[28:29] op_sel_hi:[1,0] neg_lo:[0,1] neg_hi:[0,1]")
    p("v_cvt_pk_bf16_f32 v29, 0, v31\nv_rcp_f32 v30, v29")
    for i in range(8): p(f"v_cvt_pk_bf16_f32 v{xs[i]}, 0, v{xs[i]}")
    for i in range(4): p.pkmul(20+2*i, 20+2*i, 30)
    for i in range(4):
        p(f"v_cvt_pk_bf16_f32 v{16+i}, v{xs[2*i]}, v{xs[2*i+1]}")
    p(f"ds_write_b128 v2, v[16:19] offset:{L_XN}")
    for i in range(4):
        p(f"ds_read_b128 {R4(20+4*i)}, v4 offset:{L_XN+64*i}")
    p(f"ds_read_b128 v[48:51], v6 offset:{L_XN}\nds_read_b128 v[52:55], v6 offset:{L_XN+64}")
    p.stamp("ln")
    p.wait("wq3")
    p.setflag(F1)
    p("s_waitcnt lgkmcnt(0)")
    tags(p)
    def trr(n, base):
        for s in range(n):
            p(f"ds_read_b64_tr_b16 v[{TR+4*s}:{TR+4*s+1}], v3 offset:{base+4096*s}")
            p(f"ds_read_b64_tr_b16 v[{TR+4*s+2}:{TR+4*s+3}], v3 offset:{base+4096*s+512}")
    p.waitflag(F1, lambda: trr(4, L_WQ), 8)
    p.stamp("S1")
    for s in range(4):
        p.lg(6-2*s)
        p(f"{MF} {R4(QD)}, {R4(TR+4*s)}, {R4(20+4*s)}, {'0' if s==0 else R4(QD)}")
    p.setexec(0x00010001)
    p.vmem("hello", f"global_store_dword v38, v{TL}, {WS}")
    p("s_nop 4")
    p.tag(QD)
    p.vmem("pubq", f"global_store_dwordx4 v5, {R4(QD)}, {WS}")
    p(f"ds_write_b128 v41, {R4(QD)} offset:{L_QT}")
    p("s_mov_b64 exec, -1")
    p.setflag(FP)
    if opts.get("so", 0) & 4:
        if opts["so"] & 8: p.waitflag(FQ)
        p("s_branch L_fin")
    p.stamp("pubq")
    p(f"""
    s_lshl_b32 s31, s30, 2
    s_add_u32 s31, s31, s3
    s_lshl_b32 s31, s31, 7
    s_add_u32 s31, s31, {GB}
    v_and_b32 v18, 1, v1
    v_lshlrev_b32 v18, 6, v18
    v_lshl_add_u32 v18, v10, 4, v18
    v_add_u32 v18, s31, v18
    s_and_b32 s31, s31, 0xfffff1ff
    v_lshl_add_u32 v5, v12, 9, v13
    v_add_u32 v5, s31, v5
    s_mov_b32 s50, 0x00020002
    s_mov_b32 s51, 0x00020002
    v_and_b32 v15, 3, v1
    v_lshlrev_b32 v15, 3, v15
    v_lshl_add_u32 v15, v10, 1, v15
    s_lshl_b32 s31, s2, 5
    v_add_u32 v17, s31, v15
    s_lshl_b32 s31, s3, 5
    v_add_u32 v15, s31, v15
    v_lshlrev_b32 v4, 4, v10
    s_lshl_b32 s31, s2, 11
    s_add_u32 s31, s31, {YB}
    v_add_u32 v13, s31, v2
    s_mov_b32 s47, {SPIN}
    s_lshl_b32 s46, s3, 12
    """)
    hold = opts.get("hold", 4)
    def wo_issue(g):
        for n in range(4):
            if n == 4 - hold: g.waitflag(FS)
            g(f"s_add_u32 m0, s46, {L_WO + 1024*n}\ns_nop 0")
            g.vmem(f"w{n}", f"global_load_lds_dwordx4 v36, {WO}{NT}")
            if n < 3: g(f"v_xor_b32 v36, {hx((0x2040, 0x6040, 0x2040)[n])}, v36")
    LG = {"w": FW, "q": FQ, "v": FV}[opts.get("lg", "w")]
    p("s_cmp_ge_u32 s53, 28\ns_cbranch_scc1 L_noffn")
    def gcomp():
        p.wait("u1")
        p.setflag(FG)
        p.stamp("gu")
        p.waitflag(FG, lambda: trr(4, L_G), 8)
        for m in range(2):
            for s in range(2):
                p.lg(6-2*(2*m+s))
                p(f"{MF} {R4(QD+4*m)}, {R4(TR+8*m+4*s)}, {R4(48+4*s)}, {'0' if s==0 else R4(QD+4*m)}")
        p.setexec(0x00030003)
        p("s_nop 5")
        for i in range(4): p(f"v_cndmask_b32 v{QD+i}, v{QD+i}, v{QD+4+i}, s[50:51]")
        p.tag(QD)
        p.vmem("pubg", f"global_store_dwordx4 v18, {R4(QD)}, {WS}")
        p("s_mov_b64 exec, -1")
        p.stamp("pubg")
    if early >= 1: gcomp()
    p("s_setprio 0")
    if early < 1 and opts.get("gg", "w") == "v":
        p.waitflag(FV)
        if opts.get("ggprio"): p("s_setprio 2")
        gu_issue()
        p("s_setprio 0")
    p.waitflag(LG)
    if early >= 1 and opts.get("pgearly", 0): p.vmem("pg", f"global_load_dwordx4 v[56:59], v5, {PB} sc1")
    if early < 1 and opts.get("gg", "w") == "w": gu_issue()
    if early < 2: wd_issue()
    late_wo = lambda: wo_issue(p)
    if not (early >= 1 and opts.get("pgearly", 0)): wo_issue(p)
    if opts.get("so"): p("s_waitcnt vmcnt(0)\ns_branch L_fin")
    p.stamp("iss")
    if early < 1: gcomp()
    if early >= 1 and opts.get("pgearly", 0):
        p.wait("pg"); p("s_branch L_pg1")
    else:
        p.wait(opts.get("fw", "w1"))
        p.setflag(FX)
        p.stamp("fw")
    p(f"""
L_pg:
    global_load_dwordx4 v[56:59], v5, {PB} sc1
    s_waitcnt vmcnt(0)
L_pg1:
    """)
    p.chk([56], 60, 63)
    p(f"""
    v_cmp_ne_u32 vcc, 0, v63
    s_cbranch_vccnz L_pg_retry
L_pg_ok:
    s_mov_b64 exec, -1
    """)
    cold(f"""
L_pg_retry:
    s_sub_u32 s47, s47, 1
    s_cbranch_scc1 L_pg_ok
    s_cmp_lg_u32 s47, {SPIN-TFALL}
    s_cbranch_scc1 L_pg_nf
    s_mov_b32 s54, 1
    """)
    cold.setexec(0x00030003)
    cold.tag(QD, TG)
    cold(f"global_store_dwordx4 v18, {R4(QD)}, {WG} sc1\nL_pg_nf:\ns_mov_b64 exec, vcc")
    cold.toggle()
    cold("s_branch L_pg")
    c1 = -2*0.7978845608028654*LOG2E
    p(f"""
    v_permlane32_swap_b32 v56, v58
    v_permlane32_swap_b32 v57, v59
    v_pk_add_f32 v[56:57], v[56:57], v[58:59]
    s_nop 1
    v_permlane16_swap_b32 v56, v57
    v_add_f32 v56, v56, v57
    s_nop 1
    v_add_f32_dpp v56, v56, v56 row_ror:8 {DPP}
    v_cvt_pk_bf16_f32 v56, 0, v56
    v_mul_f32 v57, v56, v56
    v_mul_f32 v57, {hx(f32(0.044715))}, v57
    v_mov_b32_dpp v58, v56 row_ror:4 {DPP}
    v_fma_f32 v57, v57, v56, v56
    v_mul_f32 v57, {hx(f32(c1))}, v57
    v_exp_f32 v57, v57
    s_nop 0
    v_add_f32 v57, 1.0, v57
    v_rcp_f32 v57, v57
    s_nop 0
    v_mul_f32 v56, v56, v57
    v_cvt_pk_bf16_f32 v56, 0, v56
    v_mul_f32 v56, v56, v58
    v_cvt_pk_bf16_f32 v56, v56, v56
    """)
    p.setexec(0x000f000f)
    p(f"ds_write_b16 v15, v56 offset:{L_OV+256}\ns_mov_b64 exec, -1")
    p.stamp("h")
    if early >= 1 and opts.get("pgearly", 0):
        late_wo()
        p.wait(opts.get("fw", "w1")); p.setflag(FX); p.stamp("fw")
    p("s_waitcnt vmcnt(0)")
    p.setflag(FD)
    p.stamp("allin")
    def dreads():
        p(f"ds_read_b128 v[48:51], v4 offset:{L_OV+256}\nds_read_b128 v[52:55], v4 offset:{L_OV+320}")
        trr(6, L_WO)
    p.waitflag(FD, dreads, 14)
    p(f"""
    s_waitcnt lgkmcnt(0)
    {MF} {R4(QD)}, {R4(TR+16)}, v[48:51], 0
    {MF} {R4(QD)}, {R4(TR+20)}, v[52:55], {R4(QD)}
L_final:
    """)
    nf = Gen(opts)
    nf("L_noffn:\ns_setprio 0")
    nf.waitflag(LG)
    wo_issue(nf)
    nf.wait(opts.get("fw", "w1")); nf.setflag(FX)
    if opts.get("so"): nf("s_waitcnt vmcnt(0)\ns_branch L_fin")
    for i in range(4): nf(f"v_mov_b32 v{QD+i}, 0")
    nf("s_waitcnt vmcnt(0)")
    nf.setflag(FD)
    def nreads():
        for s in range(4):
            nf(f"ds_read_b64_tr_b16 v[{TR+4*s}:{TR+4*s+1}], v3 offset:{L_WO+4096*s}")
            nf(f"ds_read_b64_tr_b16 v[{TR+4*s+2}:{TR+4*s+3}], v3 offset:{L_WO+4096*s+512}")
    nf.waitflag(FD, nreads, 8)
    nf("s_branch L_final")
    def oreads():
        for s in range(4): p(f"ds_read_b128 {R4(20+4*s)}, v4 offset:{L_OV+64*s}")
    p.waitflag(FO, oreads, 4)
    for s in range(4):
        p.lg(3-s)
        p(f"{MF} {R4(QD)}, {R4(TR+4*s)}, {R4(20+4*s)}, {R4(QD)}")
    p.setexec(0x00010001)
    p("s_nop 5")
    p.tag(QD, TG)
    p(f"global_store_dwordx4 v39, {R4(QD)}, {WS} sc1")
    p("s_mov_b64 exec, -1")
    p.stamp("pubY")
    p(f"""
    s_cmp_ge_u32 s2, 32
    s_cbranch_scc1 L_fin
    s_cmp_lg_u32 s3, 0
    s_cbranch_scc1 L_fin
    global_load_ushort v60, v17, {X}
    s_mov_b32 s47, {SPIN}
L_py:
    global_load_dwordx4 v[48:51], v13, {WS} sc1
    global_load_dwordx4 v[52:55], v13, {WS} offset:1024 sc1
    s_waitcnt vmcnt(0)
    """)
    p.chk([48, 52], 56, 59, "s36")
    p(f"""
    v_cmp_ne_u32 vcc, 0, v59
    s_cbranch_vccz L_py_ok
    s_mov_b64 exec, vcc
    s_sub_u32 s47, s47, 1
    s_cbranch_scc0 L_py
L_py_ok:
    s_mov_b64 exec, -1
    v_pk_add_f32 v[48:49], v[48:49], v[52:53]
    v_pk_add_f32 v[50:51], v[50:51], v[54:55]
    v_lshlrev_b32 v60, 16, v60
    s_nop 0
    v_permlane32_swap_b32 v48, v50
    v_permlane32_swap_b32 v49, v51
    v_pk_add_f32 v[48:49], v[48:49], v[50:51]
    s_nop 1
    v_permlane16_swap_b32 v48, v49
    v_add_f32 v48, v48, v49
    s_nop 1
    v_add_f32_dpp v48, v48, v48 row_ror:4 {DPP}
    s_nop 1
    v_add_f32_dpp v48, v48, v48 row_ror:8 {DPP}
    """)
    p.setexec(0x000f000f)
    p(f"""
    v_add_f32 v48, v48, v60
    v_cvt_pk_bf16_f32 v48, v48, v48
    global_store_short v17, v48, {OUT}
    s_cmp_lg_u32 s2, 0
    s_cbranch_scc1 L_fin
    s_mov_b64 exec, 1
    global_store_dword v40, v{TG}, {WS}
L_fin:
    """)
    E = NSTAMP - 1
    if "amp" in opts:
        i = opts["amp"]
        p(f"""
        s_memrealtime s[{64+2*E}:{65+2*E}]
        s_waitcnt lgkmcnt(0)
        s_cmp_lg_u32 s2, {opts.get("ampwg", 0)}
        s_cbranch_scc1 L_end
        s_cmp_lg_u32 s62, {opts.get("ampw", 0)}
        s_cbranch_scc1 L_end
        s_sub_u32 s63, s{64+2*i}, s64
        s_mul_i32 s63, s63, 10
        s_min_u32 s63, s63, 100000
        s_add_u32 s63, s63, s{64+2*E}
L_amp:
        s_memrealtime s[50:51]
        s_waitcnt lgkmcnt(0)
        s_sub_u32 s61, s50, s63
        s_cmp_lt_i32 s61, 0
        s_cbranch_scc1 L_amp
        """)
    elif opts.get("stamps"):
        p(f"""
        s_memrealtime s[{64+2*E}:{65+2*E}]
        s_sleep 127
        s_waitcnt lgkmcnt(0)
        s_lshl_b32 s50, s2, 3
        s_add_u32 s50, s50, s62
        s_lshl_b32 s50, s50, 8
        s_add_u32 s50, s50, {STAMP_OFF}
        s_mov_b64 exec, 1
        v_mov_b32 v3, s50
        """)
        for i in ((0, E) if opts.get("light") else range(NSTAMP)):
            p(f"v_mov_b32 v4, s{64+2*i}\nv_mov_b32 v5, s{65+2*i}\nglobal_store_dwordx2 v3, v[4:5], {WS} offset:{8*i}")
    p("s_endpgm")
    al = a.L
    ia = next(i for i, l in enumerate(al) if "HEAD_END" in l)
    ip = next(i for i, l in enumerate(p.L) if "HEAD_END" in l)
    body = (c.L + p.L[:ip] + ["    s_branch L_P2", "L_A1:"] + al[:ia] + ["    s_branch L_A2", "L_P2:"] + p.L[ip+1:]
            + ["L_A2:"] + al[ia+1:] + nf.L + cold.L + ["L_end:", "    s_endpgm"])
    opts["names"] = [f"{p.names[i] if i < len(p.names) else '-'}|{a.names[i] if i < len(a.names) else '-'}" for i in range(E)] + ["end"]
    hdr = open("cdna_kernels/" + NAME + ".s.ref").read().split("; Override")[0]
    return hdr + f"""; @launch grid=(256,1,1) block=(512,1,1) lds={opts.get("lds", LDS_BYTES)}
.amdgcn_target "amdgcn-amd-amdhsa--gfx950"
.text
.globl {NAME}_kernel
.p2align 8
.type {NAME}_kernel,@function
{NAME}_kernel:
""" + "\n".join(body) + f"""
.section .rodata,"a"
.p2align 6
.amdhsa_kernel {NAME}_kernel
  .amdhsa_next_free_vgpr 224
  .amdhsa_next_free_sgpr 102
  .amdhsa_accum_offset 224
  .amdhsa_group_segment_fixed_size 0
  .amdhsa_kernarg_size 96
  .amdhsa_user_sgpr_count 2
  .amdhsa_user_sgpr_kernarg_segment_ptr 1
  .amdhsa_system_sgpr_workgroup_id_x 1
  .amdhsa_float_denorm_mode_32 3
.end_amdhsa_kernel
"""

if __name__ == "__main__":
    out = sys.argv[1]
    opts = {}
    for kv in sys.argv[2:]:
        k, v = kv.split("=")
        try: v = int(v)
        except ValueError: pass
        opts[k] = v
    open(out, "w").write(build(opts))
    if opts.get("stamps") and not opts.get("light"): print(",".join(opts["names"]))
```

```python
import sys, struct
NAME = "parallel_sum__sliding_block_cached__geglu_ffn__decode"
STAMP_OFF = 0x10000000
def f32(x): return struct.unpack("<I", struct.pack("<f", x))[0]
def hx(x): return "0x%08x" % (x & 0xffffffff)
DPP = "row_mask:0xf bank_mask:0xf"
NSTAMP = 17
HB = 0x800; QB = 0x1000; GB = 0x11000; MLB = 0x31000; YB = 0x38000; OB = 0x50000; GOFF = 0x100000
L_WQ = 0x0000; L_G = 0x4000; L_WO = 0x8000; L_XN = 0xE000; L_M = 0xE400; L_L = 0xE440; L_F = 0xE480; L_OV = 0xE540
L_QT = 0xE6C0; L_Q = 0xE800; QSTR = 272; L_O = 0x0000; OSTR = 272
F1, FG, FQ, FW, FP, FV, FD, FO, F1b, FX, FS, FY = [L_F + 16*i for i in range(12)]
LDS_BYTES = 98304
SPIN = 200000; TFALL = 256
LOG2E = 1.4426950408889634
X, K, V, WQ, WO, G, U, D, OUT, WS = "s[4:5]", "s[6:7]", "s[8:9]", "s[10:11]", "s[12:13]", "s[16:17]", "s[18:19]", "s[20:21]", "s[22:23]", "s[26:27]"
WG, PB = "s[56:57]", "s[58:59]"
MF = "v_mfma_f32_16x16x32_bf16"
TL, TG, DUM = 124, 125, 126
def R4(r): return f"v[{r}:{r+3}]"
def R2(r): return f"v[{r}:{r+1}]"
def bc(r):
    return (f"v[{r}:{r+1}]", 0) if r % 2 == 0 else (f"v[{r-1}:{r}]", 1)

class Gen:
    nsync = 0
    def __init__(self, opts):
        self.L = []; self.o = opts; self.vm = []; self.nst = 1; self.names = ["start"]
    def __call__(self, s):
        for l in s.strip("\n").split("\n"):
            l = l.strip()
            if not l: continue
            self.L.append(l if l.endswith(":") else "    " + l)
    def vmem(self, name, s):
        self(s); self.vm.append(name)
    def wait(self, name):
        idx = max(i for i, n in enumerate(self.vm) if n == name)
        self(f"s_waitcnt vmcnt({len(self.vm) - 1 - idx})")
    def lg(self, n): self(f"s_waitcnt lgkmcnt({n})")
    def stamp(self, label=""):
        if not self.o.get("stamps") or self.o.get("light"): return
        i = self.nst; self.nst += 1
        assert i < NSTAMP - 1
        self(f"s_memrealtime s[{64+2*i}:{65+2*i}]   ; stamp {i} {label}")
        self.names.append(label)
    def cnt(self, label):
        if not self.o.get("stamps") or self.o.get("light"): return
        i = self.nst; self.nst += 1
        self(f"s_sub_u32 s31, {SPIN}, s47\ns_mul_i32 s31, s31, 100\ns_add_u32 s{64+2*i}, s64, s31\ns_addc_u32 s{65+2*i}, s65, 0")
        self.names.append(label)
    def setexec(self, m32):
        self(f"s_mov_b32 exec_lo, {hx(m32)}\ns_mov_b32 exec_hi, {hx(m32)}")
    def tag(self, r, tv=TL):
        for i in range(4): self(f"v_perm_b32 v{r+i}, v{r+i}, v{tv}, s{38+i}")
    def chk(self, units, t, acc, ts="s60"):
        for n, r in enumerate(units):
            d = acc if n == 0 else (t + 2 if n % 2 == 1 and n + 1 < len(units) else t)
            self(f"v_perm_b32 v{t}, v{r+1}, v{r}, s44\nv_perm_b32 v{t+1}, v{r+3}, v{r+2}, s45")
            self(f"v_bitop3_b32 v{d}, v{t}, v{t+1}, {ts} bitop3:0x56")
            if n and n % 2 == 0: self(f"v_or3_b32 v{acc}, v{acc}, v{t}, v{t+2}")
            elif n and n + 1 == len(units): self(f"v_or_b32 v{acc}, v{acc}, v{t}")
    def toggle(self):
        self(f"s_and_b32 s31, s47, s54\ns_cselect_b64 {PB}, {WG}, {WS}\ns_cselect_b32 s60, s36, s55")
    def setflag(self, F): self(f"ds_write_b32 v42, v40 offset:{F}")
    def waitflag(self, F, reads=None, nreads=0):
        n = Gen.nsync; Gen.nsync += 1
        self(f"L_ps{n}:\nds_read_b128 v[44:47], v40 offset:{F}")
        if reads: reads()
        self(f"s_waitcnt lgkmcnt({nreads})\nv_or3_b32 v44, v44, v45, v46\nv_or_b32 v44, v44, v47\nv_cmp_ne_u32 vcc, 0, v44\ns_cbranch_vccnz L_ps{n}")
    def pkmul(self, d, s, f):
        src, h = bc(f); self(f"v_pk_mul_f32 {R2(d)}, {R2(s)}, {src} op_sel:[0,{h}] op_sel_hi:[1,{h}]")
    def pkfma(self, d, s, f):
        src, h = bc(f); self(f"v_pk_fma_f32 {R2(d)}, {R2(s)}, {src}, {R2(d)} op_sel:[0,{h},0] op_sel_hi:[1,{h},1]")

def build(opts):
    Gen.nsync = 0
    global YB
    YB = 0xD0000 + opts.get("yb", 0); PRB = YB + 0x20000; L_N = L_QT + 256
    near = opts.get("near", 1)
    c = Gen(opts); p = Gen(opts); a = Gen(opts); cold = Gen(opts)
    ntm = str(opts.get("nt", "kvwq"))
    if ntm == "1": ntm = "kvwqp"
    nts = lambda ch: " nt" if ch in ntm else ""
    NT = nts("w")
    pace = opts.get("pace", 8)
    def tags(g):
        g(f"""
        s_mul_i32 s36, s36, 0x9E3779B1
        s_add_u32 s36, s36, 0x7F4A7C15
        s_add_u32 s55, s55, 1
        s_mul_i32 s55, s55, 0x85EBCA6B
        s_xor_b32 s55, s55, s36
        s_mov_b32 s60, s55
        v_mov_b32 v{TL}, s55
        v_mov_b32 v{TG}, s36
        """)
    def consts(g):
        g(f"""
        s_getreg_b32 s55, hwreg(HW_REG_XCC_ID, 0, 4)
        s_add_u32 s56, s26, {GOFF}
        s_addc_u32 s57, s27, 0
        s_mov_b64 {PB}, {WS}
        s_mov_b32 s54, 0
        s_lshr_b32 s31, s29, 3
        s_lshl_b32 s52, s28, 2
        s_add_u32 s52, s52, s31                 ; 4g+hh
        s_mov_b32 s38, 0x07060500
        s_mov_b32 s39, 0x07060501
        s_mov_b32 s40, 0x07060502
        s_mov_b32 s41, 0x07060503
        s_mov_b32 s44, 0x0c0c0400
        s_mov_b32 s45, 0x04000c0c
        s_lshl_b32 s31, s3, 2
        v_mov_b32 v42, s31
        v_mov_b32 v40, 0
        s_lshl_b32 s61, s28, 13
        s_add_u32 s61, s61, {QB}
        s_and_b32 s31, s29, 3
        s_lshl_b32 s31, s31, 11
        s_add_u32 s31, s31, s61
        s_and_b32 s32, s29, 28
        s_add_u32 s32, s32, s3
        s_lshl_b32 s32, s32, 6
        s_add_u32 s31, s31, s32
        v_lshl_add_u32 v5, v10, 4, s31
        s_lshl_b32 s31, s30, 2
        s_add_u32 s31, s31, {HB}
        v_mov_b32 v38, s31
        s_lshl_b32 s31, s3, 6
        v_lshl_add_u32 v41, v10, 4, s31
        """)
    if opts.get("stamps"): c("s_memrealtime s[64:65]")
    c(f"""
    s_load_dwordx16 s[4:19], s[0:1], 0
    s_load_dwordx8 s[20:27], s[0:1], 64
    s_cmp_ge_u32 s2, 256
    s_cbranch_scc1 L_end
    """)
    if opts.get("stamps"):
        for i in range(1, NSTAMP): c(f"s_mov_b64 s[{64+2*i}:{65+2*i}], 0")
    c(f"""
    v_lshrrev_b32 v2, 6, v0
    v_and_b32 v1, 63, v0
    v_readfirstlane_b32 s62, v2
    s_and_b32 s28, s2, 7
    s_lshr_b32 s29, s2, 3
    {"s_xor_b32 s29, s29, %d" % opts["jx"] if opts.get("jx") else ""}
    s_lshl_b32 s30, s28, 5
    s_add_u32 s30, s30, s29                 ; p
    v_lshlrev_b32 v2, 4, v1                 ; lane*16
    v_lshrrev_b32 v12, 3, v1                ; lane>>3
    v_and_b32 v13, 0x70, v2                 ; (lane&7)*16
    v_and_b32 v9, 15, v1
    v_lshrrev_b32 v10, 4, v1
    s_and_b32 s3, s62, 3
    s_cmp_ge_u32 s62, 4
    s_cbranch_scc1 L_A1
    """)
    KR, VR, VT = 128, 160, 192
    QO, S, PM, DD = 48, 64, 72, 88
    ONE, LD, MK = 96, 100, 104
    order = opts.get("ord", "i.q.t.w.j").split(".")
    width = {"i":2, "q":2, "t":1, "w":2, "j":5, "jl":3, "jh":2}
    sh = {}; b_ = 8
    for f_ in order: sh[f_] = b_; b_ += width[f_]
    assert b_ == 20
    KMAP = f"s_lshl_b32 s31, s3, {sh['w']}\n"
    if "j" in sh: KMAP += f"s_lshl_b32 s32, s29, {sh['j']}\ns_add_u32 s31, s31, s32\n"
    else: KMAP += f"s_and_b32 s32, s29, 7\ns_lshl_b32 s32, s32, {sh['jl']}\ns_add_u32 s31, s31, s32\ns_lshr_b32 s32, s29, 3\ns_lshl_b32 s32, s32, {sh['jh']}\ns_add_u32 s31, s31, s32\n"
    opts.setdefault("xm", 7)
    if opts.get("xm"): KMAP += f"s_xor_b32 s33, s29, s28\ns_and_b32 s33, s33, {opts['xm']}\ns_lshl_b32 s33, s33, {sh['t']}\ns_xor_b32 s31, s31, s33\n"
    KMAP += f'''s_lshl_b32 s32, s28, 24
    s_add_u32 s31, s31, s32
    s_add_u32 s31, s31, {61440*256}
    v_and_b32 v7, 3, v9
    v_lshlrev_b32 v7, {sh["i"]}, v7
    v_lshrrev_b32 v8, 2, v9
    v_lshl_add_u32 v7, v8, {sh["q"]}, v7
    v_lshl_add_u32 v7, v10, 4, v7
    v_add_u32 v7, s31, v7
    v_xor_b32 v26, {1 << sh["t"]}, v7
    v_lshlrev_b32 v8, {sh["q"]}, v10
    v_lshl_add_u32 v8, v9, 4, v8
    v_add_u32 v8, s31, v8                   ; V voff'''
    a(f"""
    s_getpc_b64 s[34:35]
L_pc:
    s_lshl_b32 s31, s29, 2
    s_add_u32 s31, s31, s3
    s_lshl_b32 s31, s31, 7
    s_min_u32 s31, s31, L_end-L_pc
    v_mov_b32 v14, s31
    s_mov_b64 exec, 1
    global_load_dword v{DUM}, v14, s[34:35]
    s_mov_b64 exec, -1
    v_lshlrev_b32 v14, 2, v1
    v_mov_b32 v15, -1
    ds_write_b32 v14, v15 offset:{L_M}
    ds_write_b32 v14, v15 offset:{L_M+64}
    {KMAP}
    s_setprio 1
    s_waitcnt lgkmcnt(0)
    """)
    a.stamp("karg")
    a(f"s_load_dword s36, {WS}, 0")
    a("s_barrier")
    if opts.get("headk", 1) == 0: a("; HEAD_END")
    consts(a)
    a(f"""
    s_lshl_b32 s31, s3, 9
    s_add_u32 s31, s31, s61
    s_add_u32 s31, s31, 4096
    v_and_b32 v14, 0x1f0, v2
    v_lshrrev_b32 v6, 5, v1
    v_lshl_add_u32 v6, v6, 11, v14
    v_add_u32 v6, s31, v6
    s_lshl_b32 s31, s28, 7
    s_add_u32 s31, s31, {HB}
    v_lshrrev_b32 v14, 2, v14
    v_add_u32 v39, s31, v14
    """)
    if opts.get("kdelay", 0): a(f"s_sleep {opts.get('kdelay', 0)}")
    if opts.get("alt", 0): seq = "K00 K01 V4 V5 K02 K03 V6 V7 K10 K11 V0 V1 K12 K13 V2 V3".split()
    else: seq = "K00 K01 K02 K03 K10 K11 K12 K13 V0 V1 V2 V3 V4 V5 V6 V7".split()
    def kv(nm):
        if nm[0] == "K":
            t, s = int(nm[1]), int(nm[2])
            if opts.get("klin"):
                a(f"v_xor_b32 v27, {hx((t << sh['t']) + (s << sh['i']))}, v8")
                a.vmem(nm, f"global_load_dwordx4 {R4(KR+16*t+4*s)}, v27, {K}{nts('k')}")
            else: a.vmem(nm, f"global_load_dwordx4 {R4(KR+16*t+4*s)}, v{(7,26)[t]}, {K} offset:{64*s}{nts('k')}")
        else:
            t = int(nm[1])
            off = ((t >> 2) << sh["t"]) + ((t & 3) << sh["i"])
            if t: a(f"v_xor_b32 v27, {hx(off)}, v8")
            a.vmem(nm, f"global_load_dwordx4 {R4(VR+4*t)}, v{27 if t else 8}, {V}{nts('v')}")
    n0 = opts.get('n0', 6)
    for nm in seq[:n0]: kv(nm)
    a.stamp("K_iss")
    if opts.get("headk", 1): a("; HEAD_END")
    def prep():
        for r in range(ONE, ONE+4): a(f"v_mov_b32 v{r}, 0x3f803f80")
        a("v_bfe_u32 v14, v1, 2, 2")
        for e in range(4): a(f"v_cmp_eq_u32 s[50:51], {e}, v14\ns_nop 1\nv_cndmask_b32 v{MK+e}, 0, -1, s[50:51]")
        a(f"""
        s_mov_b32 s42, 0x05040100
        s_mov_b32 s43, 0x07060302
        s_mul_i32 s31, s3, {QSTR}
        s_add_u32 s31, s31, {L_Q}
        v_and_b32 v24, 31, v1
        v_lshl_add_u32 v24, v24, 3, s31
        v_lshrrev_b32 v14, 5, v1
        v_lshl_add_u32 v24, v14, 2, v24
        v_and_b32 v17, 3, v1
        v_mul_u32_u24 v17, {QSTR}, v17
        v_lshl_add_u32 v14, v10, 4, v17
        s_mov_b32 s48, {hx(f32(128**-0.5))}
        s_mov_b32 s49, {hx(f32(LOG2E))}
        s_mul_i32 s31, s3, {8*OSTR}
        v_mul_u32_u24 v15, {OSTR}, v10
        v_lshl_add_u32 v15, v9, 4, v15
        v_add_u32 v15, s31, v15
        v_add_u32 v16, v42, v2
        v_and_b32 v18, 12, v1
        v_add_u32 v18, v18, v10
        v_lshl_add_u32 v17, v18, 4, v17
        s_mul_i32 s31, s3, {4*OSTR}
        v_add_u32 v17, s31, v17
        v_lshlrev_b32 v18, 4, v10
        s_lshl_b32 s31, s30, 3
        s_add_u32 s31, s31, s3
        s_lshl_b32 s31, s31, 8
        s_add_u32 s31, s31, {OB}
        v_lshlrev_b32 v19, 9, v10
        v_lshl_add_u32 v19, v9, 4, v19
        v_add_u32 v19, s31, v19                  ; O voff
        s_lshl_b32 s31, s28, 10
        s_lshl_b32 s32, s29, 3
        s_add_u32 s31, s31, s32
        s_add_u32 s31, s31, {MLB}
        v_lshl_add_u32 v20, v10, 8, s31
        s_lshl_b32 s31, s28, 16
        s_and_b32 s32, s29, 24
        s_lshl_b32 s32, s32, 6
        s_add_u32 s31, s31, s32
        s_lshl_b32 s32, s3, 7
        s_add_u32 s31, s31, s32
        s_add_u32 s31, s31, {OB+4096}
        v_lshl_add_u32 v43, v12, 13, v13
        v_add_u32 v43, s31, v43
        s_lshl_b32 s31, s52, 8
        s_add_u32 s31, s31, {MLB}
        v_lshl_add_u32 v21, v12, 5, s31
        v_and_b32 v22, 3, v1
        v_lshlrev_b32 v22, 6, v22
        v_lshl_add_u32 v22, v10, 4, v22
        v_bfe_u32 v23, v1, 2, 1
        v_lshl_add_u32 v22, v23, 1, v22
        v_add_u32 v22, v42, v22
        s_mov_b32 s47, {SPIN}
        s_waitcnt lgkmcnt(0)
        """)
        tags(a)
    assert QSTR == OSTR
    prep()
    def pollq(g, r=28):
        g(f"global_load_dwordx4 {R4(r)}, v6, {PB} offset:-4096 sc1\nglobal_load_dwordx4 {R4(r+4)}, v6, {PB} sc1\nglobal_load_dword v{r+8}, v39, {PB} sc1")
    if n0 < 8:
        a.waitflag(FP)
        for nm in seq[n0:8]: kv(nm)
    pq_at = opts.get("pq_at", 4)
    def dopoll():
        a.setflag(FV)
        a.waitflag(FV)
        pollq(a); a.vm += ["pq0", "pq1", "pq"]
        a.stamp("pq_iss")
    a("s_mov_b64 vcc, -1")
    for t in range(8):
        if opts.get("gate", 0) == t: a.waitflag(FP)
        if 8 + t >= pace and opts.get("gate", 0) < 0:
            a(f"""
            s_cbranch_vccz L_pa{t}
            s_waitcnt vmcnt({pace-1})
            ds_read_b128 v[44:47], v40 offset:{FP}
            s_waitcnt lgkmcnt(0)
            v_or3_b32 v44, v44, v45, v46
            v_or_b32 v44, v44, v47
            v_cmp_ne_u32 vcc, 0, v44
L_pa{t}:
            """)
        if t == pq_at: dopoll()
        kv(seq[8+t])
    a.stamp("V_iss")
    if opts.get("so"):
        a.setflag(FV); a.setflag(FW)
        a("s_waitcnt vmcnt(0)")
        a.setflag(FQ)
        a("s_branch L_fin")
    if pq_at == 8: dopoll()
    pq2 = opts.get("pq2", 2)
    if pq2:
        if pq2 == 2:
            a.setflag(F1b); a.waitflag(F1b)
        pollq(a, 112); a.vm += ["pr0", "pr1", "pr"]
    a.setflag(FW)
    def vperm(tp):
        a.wait(f"V{2*tp+1}")
        for d in range(4):
            lo = VR + 8*tp + d; hi = lo + 4
            a(f"v_perm_b32 v{VT+4*(2*d)+tp}, v{hi}, v{lo}, s42")
            a(f"v_perm_b32 v{VT+4*(2*d+1)+tp}, v{hi}, v{lo}, s43")
    npre = pq_at // 2
    for tp in range(npre): vperm(tp)
    a.wait("pq")
    a.stamp("pq_ret")
    a("L_pq:")
    a.chk([28, 32], 25, 37)
    a(f"""
    v_xor_b32 v25, s60, v36
    v_or_b32 v37, v37, v25
    v_cmp_ne_u32 vcc, 0, v37
    s_cbranch_vccnz L_pq_retry
L_pq_ok:
    s_mov_b64 exec, -1
    v_pk_add_f32 v[28:29], v[28:29], v[32:33]
    v_pk_add_f32 v[30:31], v[30:31], v[34:35]
    s_nop 1
    v_permlane32_swap_b32 v28, v30
    v_permlane32_swap_b32 v29, v31
    v_pk_add_f32 v[28:29], v[28:29], v[30:31]
    v_cvt_pk_bf16_f32 v28, v28, v29
    ds_write_b32 v24, v28
    """)
    a.setflag(FQ)
    cold("L_pq_retry:\ns_sub_u32 s47, s47, 1\ns_cbranch_scc1 L_pq_ok")
    if pq2:
        cold(f"s_cmp_lg_u32 s47, {SPIN-1}\ns_cbranch_scc1 L_pq_r2\ns_waitcnt vmcnt(0)")
        for i in range(9): cold(f"v_mov_b32 v{28+i}, v{112+i}")
        cold("s_branch L_pq\nL_pq_r2:")
    cold(f"""
    s_cmp_lg_u32 s47, {SPIN-TFALL}
    s_cbranch_scc1 L_pq_nf
    s_mov_b32 s54, 1
    s_mov_b64 exec, -1
    s_mov_b64 s[50:51], vcc
    """)
    cold.waitflag(FP, lambda: cold(f"ds_read_b128 {R4(S)}, v41 offset:{L_QT}"), 0)
    cold("s_mov_b64 vcc, s[50:51]")
    cold.setexec(0x00010001)
    cold.tag(S, TG)
    cold(f"""
    global_store_dword v38, v{TG}, {WG} sc1
    global_store_dwordx4 v5, {R4(S)}, {WG} sc1
L_pq_nf:
    s_mov_b64 exec, vcc
    """)
    cold.toggle(); pollq(cold)
    cold("s_waitcnt vmcnt(0)\ns_branch L_pq")
    a.cnt("#pq")
    def qreads():
        for s in range(4): a(f"ds_read_b128 {R4(QO+4*s)}, v14 offset:{L_Q+64*s}")
    a.waitflag(FQ, qreads, 4)
    a.stamp("q_ok")
    for s in range(4):
        a.lg(3-s)
        for t in range(2):
            a(f"{MF} {R4(S+4*t)}, {R4(KR+16*t+4*s)}, {R4(QO+4*s)}, {'0' if s==0 else R4(S+4*t)}")
    a(f"s_mov_b32 s47, {SPIN}\ns_nop 5")
    for i in range(8): a(f"v_cvt_pk_bf16_f32 v{S+i}, 0, v{S+i}")
    for i in range(0, 8, 2): a(f"v_pk_mul_f32 {R2(S+i)}, {R2(S+i)}, s[48:49] op_sel_hi:[1,0]")
    for i in range(8): a(f"v_cvt_pk_bf16_f32 v{S+i}, 0, v{S+i}")
    a(f"""
    v_max3_f32 v108, v{S}, v{S+1}, v{S+2}
    v_max3_f32 v109, v{S+3}, v{S+4}, v{S+5}
    v_max3_f32 v108, v108, v{S+6}, v{S+7}
    v_max_f32 v108, v108, v109
    """)
    for sw in (16, 32):
        a(f"v_mov_b32 v109, v108\ns_nop 1\nv_permlane{sw}_swap_b32 v108, v109\nv_max_f32 v108, v108, v109")
    a("v_mul_f32 v108, s49, v108")
    for i in range(0, 8, 2):
        a(f"v_pk_fma_f32 {R2(S+i)}, {R2(S+i)}, s[48:49], v[108:109] op_sel:[0,1,0] op_sel_hi:[1,1,0] neg_lo:[0,0,1] neg_hi:[0,0,1]")
    for i in range(8): a(f"v_exp_f32 v{S+i}, v{S+i}")
    a("v_min_u32 v108, -2, v108")
    for i in range(4): a(f"v_cvt_pk_bf16_f32 v{S+i}, v{S+2*i}, v{S+2*i+1}")
    def msk(e):
        for i in range(4): a(f"v_and_b32 v{PM+4*e+i}, v{S+i}, v{MK+e}")
    def pv(e):
        for hf in range(2):
            a(f"{MF} {R4(DD+4*hf)}, {R4(VT+4*(4*hf+e))}, {R4(PM+4*e)}, {'0' if e==0 else R4(DD+4*hf)}")
    msk(0)
    a(f"{MF} {R4(LD)}, {R4(ONE)}, {R4(S)}, 0")
    if npre == 4:
        msk(1); a.stamp("V"); pv(0); msk(2); pv(1); msk(3); pv(2); pv(3)
    else:
        msk(1); msk(2); msk(3)
        for tp in range(npre, 4): vperm(tp)
        a.stamp("V")
        a("s_nop 1")
        for e in range(4): pv(e)
    a(f"""
    s_mov_b64 exec, 0xf
    ds_write_b32 v16, v{LD} offset:{L_L}
    s_mov_b64 exec, -1
    s_nop 3
    ds_write_b128 v15, {R4(DD)} offset:{L_O}
    ds_write_b128 v15, {R4(DD+4)} offset:{L_O+4*OSTR}
    s_mov_b64 exec, 0xf
    ds_write_b32 v16, v108 offset:{L_M}
    s_mov_b64 exec, -1
    """)
    a.stamp("PV")
    a(f"""
    s_cmp_ge_u32 s3, 2
    s_cbranch_scc1 L_nocomb
L_cmb:
    ds_read_b128 {R4(S)}, v18 offset:{L_M}
    ds_read_b128 {R4(S+4)}, v18 offset:{L_L}
    """)
    for w in range(4):
        a(f"ds_read_b128 {R4(PM+4*w)}, v17 offset:{L_O+8*OSTR*w}")
    a.lg(5)
    a(f"""
    v_max3_u32 v110, v{S}, v{S+1}, v{S+2}
    v_max3_f32 v108, v{S}, v{S+1}, v{S+2}
    v_max_u32 v110, v110, v{S+3}
    v_max_f32 v108, v108, v{S+3}
    v_cmp_eq_u32 vcc, -1, v110
    s_cbranch_vccnz L_cmb
    v_pk_add_f32 {R2(S)}, {R2(S)}, v[108:109] op_sel_hi:[1,0] neg_lo:[0,1] neg_hi:[0,1]
    v_pk_add_f32 {R2(S+2)}, {R2(S+2)}, v[108:109] op_sel_hi:[1,0] neg_lo:[0,1] neg_hi:[0,1]
    """)
    for w in range(4): a(f"v_exp_f32 v{S+w}, v{S+w}")
    a.lg(4)
    a(f"""
    v_pk_mul_f32 {R2(S+4)}, {R2(S)}, {R2(S+4)}
    v_pk_fma_f32 {R2(S+4)}, {R2(S+2)}, {R2(S+6)}, {R2(S+4)}
    v_add_f32 v110, v{S+4}, v{S+5}
    v_rcp_f32 v111, v110
    v_log_f32 v110, v110
    s_waitcnt lgkmcnt(0)
    """)
    a.pkmul(DD, PM, S); a.pkmul(DD+2, PM+2, S)
    a(f"v_add_f32 v108, v108, v110\nv_mov_b32 v109, v{TL}")
    for w in range(1, 4):
        a.pkfma(DD, PM+4*w, S+w); a.pkfma(DD+2, PM+4*w+2, S+w)
    a.pkmul(DD, DD, 111); a.pkmul(DD+2, DD+2, 111)
    a.tag(DD)
    a(f"global_store_dwordx4 v19, {R4(DD)}, {WS}")
    a.setexec(0x00010001)
    a(f"""
    global_store_dwordx2 v20, v[108:109], {WS}
    s_mov_b64 exec, -1
    s_cmp_lg_u32 s54, 0
    s_cbranch_scc1 L_fbO
L_nocomb:
    """)
    cold("L_fbO:")
    cold.tag(DD, TG)
    cold(f"v_mov_b32 v109, v{TG}\nglobal_store_dwordx4 v19, {R4(DD)}, {WG} sc1")
    cold.setexec(0x00010001)
    cold(f"global_store_dwordx2 v20, v[108:109], {WG} sc1\ns_mov_b64 exec, -1\ns_branch L_nocomb")
    a.setflag(FS)
    a.stamp("pubO")
    if opts.get("fx", 1): a.waitflag(FX)
    a.stamp("FX")
    LS, OD = 48, 56
    def odata(g):
        for k in range(4): g(f"global_load_dwordx4 {R4(OD+4*k)}, v43, {PB} offset:{2048*k-4096} sc1")
    if not opts.get("spec", 1): a("s_mov_b64 vcc, -1\ns_branch L_po_retry")
    a("L_po:")
    for k in range(2): a(f"global_load_dwordx4 {R4(LS+4*k)}, v21, {PB} offset:{16*k} sc1")
    odata(a)
    if opts.get("fw") == "pre": a.setflag(FY)
    a(f"""
    s_mov_b64 exec, -1
    s_waitcnt vmcnt(4)
    v_xor_b32 v76, s60, v{LS+1}
    v_xor_b32 v77, s60, v{LS+3}
    v_xor_b32 v78, s60, v{LS+5}
    v_or3_b32 v76, v76, v77, v78
    v_xor_b32 v77, s60, v{LS+7}
    v_or_b32 v76, v76, v77
    v_cmp_ne_u32 vcc, 0, v76
    s_cbranch_vccnz L_po_retry
L_po_ok:
    v_max3_f32 v76, v{LS}, v{LS+2}, v{LS+4}
    v_max_f32 v76, v76, v{LS+6}
    s_nop 1
    v_max_f32_dpp v76, v76, v76 row_ror:8 {DPP}
    v_mov_b32 v77, v76
    s_nop 1
    v_permlane16_swap_b32 v76, v77
    v_max_f32 v76, v76, v77
    v_mov_b32 v77, v76
    s_nop 1
    v_permlane32_swap_b32 v76, v77
    v_max_f32 v76, v76, v77
    v_sub_f32 v80, v{LS}, v76
    v_sub_f32 v81, v{LS+2}, v76
    v_sub_f32 v82, v{LS+4}, v76
    v_sub_f32 v83, v{LS+6}, v76
    v_exp_f32 v80, v80
    v_exp_f32 v81, v81
    v_exp_f32 v82, v82
    v_exp_f32 v83, v83
    s_nop 0
    v_pk_add_f32 v[84:85], v[80:81], v[82:83]
    v_add_f32 v84, v84, v85
    v_mov_b32 v85, v84
    s_nop 1
    v_permlane32_swap_b32 v84, v85
    v_add_f32 v84, v84, v85
    v_mov_b32 v85, v84
    s_nop 1
    v_permlane16_swap_b32 v84, v85
    v_add_f32 v84, v84, v85
L_pd:
    s_waitcnt vmcnt(0)
    """)
    a.chk([OD, OD+4, OD+8, OD+12], 76, 79)
    a(f"""
    v_cmp_ne_u32 vcc, 0, v79
    s_cbranch_vccnz L_pd_retry
L_pd_ok:
    """)
    a.stamp("O_ok")
    cold(f"""
L_po_retry:
    s_sub_u32 s47, s47, 1
    s_cbranch_scc1 L_po_giveup
    s_cmp_lg_u32 s54, 0
    s_cbranch_scc1 L_po_fb
    s_mov_b64 exec, vcc
    {"s_sleep %d" % opts["oslp"] if opts.get("oslp") else ""}
    """)
    for k in range(2): cold(f"global_load_dwordx4 {R4(LS+4*k)}, v21, {PB} offset:{16*k} sc1")
    cold(f"""
    s_waitcnt vmcnt(0)
    v_xor_b32 v76, s60, v{LS+1}
    v_xor_b32 v77, s60, v{LS+3}
    v_xor_b32 v78, s60, v{LS+5}
    v_or3_b32 v76, v76, v77, v78
    v_xor_b32 v77, s60, v{LS+7}
    v_or_b32 v76, v76, v77
    v_cmp_ne_u32 vcc, 0, v76
    s_andn2_b64 exec, exec, vcc
    s_cbranch_execz L_po_retry
    """)
    odata(cold)
    cold(f"""
    s_cbranch_vccnz L_po_retry
L_po_giveup:
    s_mov_b64 exec, -1
    s_branch L_po_ok
L_po_fb:
    """)
    cold.toggle()
    cold(f"""
    s_branch L_po
L_pd_retry:
    s_sub_u32 s47, s47, 1
    s_cbranch_scc1 L_pd_ok
    s_mov_b64 exec, vcc
    """)
    odata(cold)
    cold("s_mov_b64 exec, -1\ns_branch L_pd")
    a(f"v_add_f32_dpp v84, v84, v84 row_ror:8 {DPP}")
    a.pkmul(OD, OD, 80); a.pkmul(OD+2, OD+2, 80)
    a("v_rcp_f32 v84, v84")
    for k in range(1, 4):
        a.pkfma(OD, OD+4*k, 80+k); a.pkfma(OD+2, OD+4*k+2, 80+k)
    a(f"""
    s_nop 1
    v_permlane32_swap_b32 v{OD}, v{OD+2}
    v_permlane32_swap_b32 v{OD+1}, v{OD+3}
    v_pk_add_f32 {R2(OD)}, {R2(OD)}, {R2(OD+2)}
    s_nop 1
    v_permlane16_swap_b32 v{OD}, v{OD+1}
    v_add_f32 v{OD}, v{OD}, v{OD+1}
    s_nop 1
    v_add_f32_dpp v{OD}, v{OD}, v{OD} row_ror:8 {DPP}
    v_mul_f32 v{OD}, v{OD}, v84
    v_cvt_pk_bf16_f32 v{OD}, v{OD}, v{OD}
    ds_write_b16 v22, v{OD} offset:{L_OV}
    """)
    a.setflag(FO)
    a.stamp("o_wr")
    a.cnt("#po")
    a("s_branch L_fin" if opts.get("stamps") else "s_endpgm")

    TR, QD = 64, 88
    p(f"""
    s_and_b32 s31, s29, 3
    s_lshl_b32 s31, s31, 2
    s_add_u32 s31, s31, s3
    s_lshl_b32 s31, s31, 18
    s_lshr_b32 s32, s30, 2
    s_lshl_b32 s32, s32, 7
    s_add_u32 s31, s31, s32
    v_and_b32 v43, 16, v1
    v_lshlrev_b32 v43, 1, v43
    v_xor_b32 v43, v43, v13
    v_lshl_add_u32 v3, v12, 13, v43
    v_add_u32 v3, s31, v3
    v_xor_b32 v4, 0x10040, v3
    v_add_u32 v7, 0x20000, v3
    v_xor_b32 v6, 0x30040, v3
    {"s_lshl_b32 s31, s30, 2" + chr(10) + "s_add_u32 s31, s31, s3" + chr(10) + "s_lshl_b32 s31, s31, 12" + chr(10) + "v_add_u32 v3, s31, v2" + chr(10) + "v_add_u32 v4, 1024, v3" + chr(10) + "v_add_u32 v7, 2048, v3" + chr(10) + "v_add_u32 v6, 3072, v3" if "q" in str(opts.get("wlin", "")) else ""}
    s_lshl_b32 m0, s3, 12
    s_setprio 2
    s_waitcnt lgkmcnt(0)
    """)
    p.stamp("karg")
    p.vmem("x", f"global_load_dwordx4 v[16:19], v2, {X}")
    for i in range(4):
        p.vmem(f"wq{i}", f"global_load_lds_dwordx4 v{(3,4,7,6)[i]}, {WQ}{nts('q')}")
        if i < 3: p("s_add_u32 m0, m0, 1024\ns_nop 0")
    p(f"s_load_dword s36, {WS}, 0")
    p("s_barrier")
    p("; HEAD_END")
    consts(p)
    p(f"""
    s_and_b32 s33, s29, 7
    s_lshl_b32 s31, s33, 2
    s_add_u32 s31, s31, s3
    s_lshl_b32 s31, s31, 11
    s_lshl_b32 s32, s52, 6
    s_add_u32 s31, s31, s32
    s_add_u32 s31, s31, {YB}
    v_lshl_add_u32 v39, v10, 4, s31         ; Y voff
    s_lshl_b32 s31, s30, 11
    s_add_u32 s31, s31, {OB}
    s_mov_b32 s32, {0 if opts.get("pre", 1) == 2 else 15}
    s_lshl_b32 s48, s30, 9
    s_add_u32 s48, s48, {GB}
    s_cmp_eq_u32 s3, 1
    s_cselect_b32 s31, s48, s31
    s_cselect_b32 s32, 3, s32
    s_lshl_b32 s48, s30, 8
    s_add_u32 s48, s48, {QB}
    s_cmp_eq_u32 s3, 2
    s_cselect_b32 s31, s48, s31
    s_cselect_b32 s32, 1, s32
    s_lshl_b32 s48, s30, 5
    s_add_u32 s48, s48, {MLB}
    s_cmp_eq_u32 s3, 3
    s_cselect_b32 s31, s48, s31
    s_cselect_b32 s32, 0, s32
    v_and_b32 v44, s32, v1
    v_lshl_add_u32 v44, v44, 7, s31
    v_cmp_gt_u32 vcc, 16, v1
    v_cmp_gt_u32 s[50:51], 32, v1
    s_nop 0
    v_cndmask_b32 v44, v38, v44, vcc
    v_cndmask_b32 v44, v39, v44, s[50:51]
    """)
    if opts.get("pre", 1): p.vmem("pre", f"global_load_dword v{DUM}, v44, {WS}{nts('p')}")
    p(f"""
    s_and_b32 s53, s29, 24
    s_add_u32 s53, s53, s28
    s_lshl_b32 s32, s33, 2
    s_add_u32 s32, s32, s3
    s_mul_i32 s32, s32, {16*3584}
    s_lshl_b32 s31, s53, 7
    s_add_u32 s32, s32, s31
    v_mul_u32_u24 v11, 3584, v12
    v_add3_u32 v11, v11, v43, s32
    v_add_u32 v14, {8*3584}, v11
    v_xor_b32 v14, 64, v14
    v_lshl_add_u32 v37, v12, 10, v43
    s_lshl_b32 s31, s52, 2
    s_add_u32 s31, s31, s3
    s_lshl_b32 s31, s31, 15
    s_lshl_b32 s32, s33, 7
    s_add_u32 s31, s31, s32
    v_add_u32 v36, s31, v37
    s_lshl_b32 s31, s53, 2
    s_add_u32 s31, s31, s3
    s_lshl_b32 s31, s31, 14
    s_add_u32 s31, s31, s32
    v_add_u32 v37, s31, v37
    v_bfe_u32 v3, v1, 2, 2
    v_lshl_add_u32 v3, v10, 3, v3
    v_lshlrev_b32 v3, 7, v3
    v_and_b32 v4, 3, v1
    v_lshl_add_u32 v3, v4, 3, v3
    s_lshl_b32 s31, s3, 5
    v_add_u32 v3, s31, v3
    v_bfe_u32 v4, v1, 3, 2
    v_lshlrev_b32 v4, 5, v4
    v_xor_b32 v3, v3, v4
    s_and_b32 s31, s29, 3
    s_lshl_b32 s31, s31, 8
    v_lshl_add_u32 v4, v10, 4, s31
    s_lshl_b32 s31, s33, 7
    v_lshl_add_u32 v6, v10, 4, s31
    s_lshl_b32 s49, s3, 11
    """)
    wl = str(opts.get("wlin", ""))
    if "g" in wl: p("s_lshl_b32 s31, s30, 2\ns_add_u32 s31, s31, s3\ns_mul_i32 s31, s31, 1792\nv_add_u32 v11, s31, v2\nv_add_u32 v14, 768, v11")
    if "o" in wl: p("s_lshl_b32 s31, s30, 14\ns_lshl_b32 s32, s3, 10\ns_add_u32 s31, s31, s32\ns_and_b32 s32, s30, 1\ns_lshl_b32 s32, s32, 12\ns_and_b32 s31, s31, 0xffff8fff\ns_add_u32 s31, s31, s32\nv_add_u32 v36, s31, v2")
    early = opts.get("early", 0)
    def gu_issue():
        for i in range(2):
            for m, (nm, P) in enumerate((("g", G), ("u", U))):
                p(f"s_add_u32 m0, s49, {L_G + 1024*i + 8192*m}\ns_nop 0")
                p.vmem(f"{nm}{i}", f"global_load_lds_dwordx4 v{11 if i==0 else 14}, {P}{NT}")
    def wd_issue():
        for n in range(2):
            p(f"s_add_u32 m0, s49, {L_WO + 16384 + 1024*n}\ns_nop 0")
            p.vmem(f"w{4+n}", f"global_load_lds_dwordx4 v37, {D}{NT}")
            if n == 0: p("v_xor_b32 v37, 0x2040, v37")
    if early >= 1:
        p("s_cmp_ge_u32 s53, 28\ns_cselect_b64 exec, 1, -1\ns_cbranch_scc0 L_ef\nv_mov_b32 v11, 0\nv_mov_b32 v14, 0\nv_mov_b32 v37, 0\nL_ef:")
        gu_issue()
        if early >= 2: wd_issue()
        p("s_mov_b64 exec, -1")
    p.wait("x")
    p.stamp("x")
    xs = list(range(20, 28))
    for i in range(4):
        p(f"v_lshlrev_b32 v{xs[2*i]}, 16, v{16+i}\nv_and_b32 v{xs[2*i+1]}, 0xffff0000, v{16+i}")
    p("v_readfirstlane_b32 s50, v20\ns_nop 1")
    for i in range(4):
        p(f"v_pk_add_f32 {R2(48+2*i)}, {R2(20+2*i)}, s[50:51] op_sel_hi:[1,0] neg_lo:[0,1] neg_hi:[0,1]")
    p(f"""
    v_pk_mul_f32 v[30:31], v[48:49], v[48:49]
    v_pk_add_f32 v[28:29], v[48:49], v[50:51]
    v_pk_fma_f32 v[30:31], v[50:51], v[50:51], v[30:31]
    v_pk_add_f32 v[28:29], v[28:29], v[52:53]
    v_pk_fma_f32 v[30:31], v[52:53], v[52:53], v[30:31]
    v_pk_add_f32 v[28:29], v[28:29], v[54:55]
    v_pk_fma_f32 v[30:31], v[54:55], v[54:55], v[30:31]
    v_add_f32 v28, v28, v29
    v_add_f32 v29, v30, v31
    s_nop 0
    """)
    for r in (1, 2, 4, 8):
        p(f"v_add_f32_dpp v28, v28, v28 row_ror:{r} {DPP}\nv_add_f32_dpp v29, v29, v29 row_ror:{r} {DPP}\ns_nop 0")
    p(f"""
    s_nop 0
    v_permlane32_swap_b32 v28, v29
    v_add_f32 v28, v28, v29
    v_mov_b32 v29, v28
    s_nop 1
    v_permlane16_swap_b32 v28, v29
    v_add_f32 v28, v28, v29
    v_mul_f32 v28, {hx(f32(1/512))}, v28
    s_nop 0
    v_readlane_b32 s32, v28, 0
    v_readlane_b32 s48, v28, 32
    s_nop 0
    v_mov_b32 v28, s32
    v_fma_f32 v29, -v28, v28, s48
    v_add_f32 v28, s50, v28
    v_max_f32 v29, 0, v29
    v_cvt_pk_bf16_f32 v28, 0, v28
    v_cvt_pk_bf16_f32 v29, 0, v29
    v_add_f32 v29, {hx(f32(1e-5))}, v29
    v_cvt_pk_bf16_f32 v29, 0, v29
    v_sqrt_f32 v31, v29
    """)
    for i in range(4):
        p(f"v_pk_add_f32 {R2(20+2*i)}, {R2(20+2*i)}, v[28:29] op_sel_hi:[1,0] neg_lo:[0,1] neg_hi:[0,1]")
    p("v_cvt_pk_bf16_f32 v29, 0, v31\nv_rcp_f32 v30, v29")
    for i in range(8): p(f"v_cvt_pk_bf16_f32 v{xs[i]}, 0, v{xs[i]}")
    for i in range(4): p.pkmul(20+2*i, 20+2*i, 30)
    for i in range(4):
        p(f"v_cvt_pk_bf16_f32 v{16+i}, v{xs[2*i]}, v{xs[2*i+1]}")
    p(f"ds_write_b128 v2, v[16:19] offset:{L_XN}")
    for i in range(4):
        p(f"ds_read_b128 {R4(20+4*i)}, v4 offset:{L_XN+64*i}")
    p(f"ds_read_b128 v[48:51], v6 offset:{L_XN}\nds_read_b128 v[52:55], v6 offset:{L_XN+64}")
    p.stamp("ln")
    p.wait("wq3")
    p.setflag(F1)
    p("s_waitcnt lgkmcnt(0)")
    tags(p)
    def trr(n, base):
        for s in range(n):
            p(f"ds_read_b64_tr_b16 v[{TR+4*s}:{TR+4*s+1}], v3 offset:{base+4096*s}")
            p(f"ds_read_b64_tr_b16 v[{TR+4*s+2}:{TR+4*s+3}], v3 offset:{base+4096*s+512}")
    p.waitflag(F1, lambda: trr(4, L_WQ), 8)
    p.stamp("S1")
    for s in range(4):
        p.lg(6-2*s)
        p(f"{MF} {R4(QD)}, {R4(TR+4*s)}, {R4(20+4*s)}, {'0' if s==0 else R4(QD)}")
    p.setexec(0x00010001)
    p.vmem("hello", f"global_store_dword v38, v{TL}, {WS}")
    p("s_nop 4")
    p.tag(QD)
    p.vmem("pubq", f"global_store_dwordx4 v5, {R4(QD)}, {WS}")
    p(f"ds_write_b128 v41, {R4(QD)} offset:{L_QT}")
    p("s_mov_b64 exec, -1")
    p.setflag(FP)
    if opts.get("so", 0) & 4:
        if opts["so"] & 8: p.waitflag(FQ)
        p("s_branch L_fin")
    p.stamp("pubq")
    p(f"""
    s_lshl_b32 s31, s30, 2
    s_add_u32 s31, s31, s3
    s_lshl_b32 s31, s31, 7
    s_add_u32 s31, s31, {GB}
    v_and_b32 v18, 1, v1
    v_lshlrev_b32 v18, 6, v18
    v_lshl_add_u32 v18, v10, 4, v18
    v_add_u32 v18, s31, v18
    s_and_b32 s31, s31, 0xfffff1ff
    v_lshl_add_u32 v5, v12, 9, v13
    v_add_u32 v5, s31, v5
    s_mov_b32 s50, 0x00020002
    s_mov_b32 s51, 0x00020002
    v_and_b32 v15, 3, v1
    v_lshlrev_b32 v15, 3, v15
    v_lshl_add_u32 v15, v10, 1, v15
    s_lshl_b32 s31, s2, 5
    v_add_u32 v17, s31, v15
    s_lshl_b32 s31, s3, 5
    v_add_u32 v15, s31, v15
    v_lshlrev_b32 v4, 4, v10
    s_lshl_b32 s31, s2, 11
    s_add_u32 s31, s31, {YB}
    v_add_u32 v13, s31, v2
    s_mov_b32 s47, {SPIN}
    s_lshl_b32 s46, s3, 12
    """)
    hold = opts.get("hold", 4)
    def wo_issue(g):
        for n in range(4):
            if n == 4 - hold:
                if g is p and early < 1 and opts.get("gfirst", 0): gcomp()
                g.waitflag(FS)
                if opts.get("fw") == "pre":
                    g.setflag(FX)
                    if g is p: p.vmem("pg", f"global_load_dwordx4 v[56:59], v5, {PB} sc1")
                    g.waitflag(FY)
            g(f"s_add_u32 m0, s46, {L_WO + 1024*n}\ns_nop 0")
            g.vmem(f"w{n}", f"global_load_lds_dwordx4 v36, {WO}{NT}")
            if n < 3: g(f"v_xor_b32 v36, {hx((0x2040, 0x6040, 0x2040)[n])}, v36")
    LG = {"w": FW, "q": FQ, "v": FV}[opts.get("lg", "w")]
    p("s_cmp_ge_u32 s53, 28\ns_cbranch_scc1 L_noffn")
    def gcomp():
        p.wait("u1")
        p.setflag(FG)
        p.stamp("gu")
        p.waitflag(FG, lambda: trr(4, L_G), 8)
        for m in range(2):
            for s in range(2):
                p.lg(6-2*(2*m+s))
                p(f"{MF} {R4(QD+4*m)}, {R4(TR+8*m+4*s)}, {R4(48+4*s)}, {'0' if s==0 else R4(QD+4*m)}")
        p.setexec(0x00030003)
        p("s_nop 5")
        for i in range(4): p(f"v_cndmask_b32 v{QD+i}, v{QD+i}, v{QD+4+i}, s[50:51]")
        p.tag(QD)
        p.vmem("pubg", f"global_store_dwordx4 v18, {R4(QD)}, {WS}")
        p("s_mov_b64 exec, -1")
        p.stamp("pubg")
    if early >= 1: gcomp()
    p("s_setprio 0")
    if early < 1 and opts.get("gg", "w") == "v":
        p.waitflag(FV)
        if opts.get("ggprio"): p("s_setprio 2")
        gu_issue()
        p("s_setprio 0")
    p.waitflag(LG)
    if early >= 1 and opts.get("pgearly", 0): p.vmem("pg", f"global_load_dwordx4 v[56:59], v5, {PB} sc1")
    if early < 1 and opts.get("gg", "w") == "w": gu_issue()
    if early < 2: wd_issue()
    late_wo = lambda: wo_issue(p)
    if not (early >= 1 and opts.get("pgearly", 0)): wo_issue(p)
    if opts.get("so"): p("s_waitcnt vmcnt(0)\ns_branch L_fin")
    p.stamp("iss")
    if early < 1 and not (opts.get("gfirst", 0) and hold): gcomp()
    if (early >= 1 and opts.get("pgearly", 0)) or opts.get("fw") == "pre":
        p.wait("pg"); p("s_branch L_pg1")
    else:
        if opts.get("fw", "none") != "none": p.wait(opts.get("fw", "none"))
        if opts.get("xdelay"): p(f"s_sleep {opts['xdelay']}")
        p.setflag(FX)
        p.stamp("fw")
    p(f"""
L_pg:
    global_load_dwordx4 v[56:59], v5, {PB} sc1
    s_waitcnt vmcnt(0)
L_pg1:
    """)
    p.chk([56], 60, 63)
    p(f"""
    v_cmp_ne_u32 vcc, 0, v63
    s_cbranch_vccnz L_pg_retry
L_pg_ok:
    s_mov_b64 exec, -1
    """)
    cold(f"""
L_pg_retry:
    s_sub_u32 s47, s47, 1
    s_cbranch_scc1 L_pg_ok
    s_cmp_lg_u32 s47, {SPIN-TFALL}
    s_cbranch_scc1 L_pg_nf
    s_mov_b32 s54, 1
    """)
    cold.setexec(0x00030003)
    cold.tag(QD, TG)
    cold(f"global_store_dwordx4 v18, {R4(QD)}, {WG} sc1\nL_pg_nf:\ns_mov_b64 exec, vcc")
    cold.toggle()
    cold("s_branch L_pg")
    c1 = -2*0.7978845608028654*LOG2E
    p(f"""
    v_permlane32_swap_b32 v56, v58
    v_permlane32_swap_b32 v57, v59
    v_pk_add_f32 v[56:57], v[56:57], v[58:59]
    s_nop 1
    v_permlane16_swap_b32 v56, v57
    v_add_f32 v56, v56, v57
    s_nop 1
    v_add_f32_dpp v56, v56, v56 row_ror:8 {DPP}
    v_cvt_pk_bf16_f32 v56, 0, v56
    v_mul_f32 v57, v56, v56
    v_mul_f32 v57, {hx(f32(0.044715))}, v57
    v_mov_b32_dpp v58, v56 row_ror:4 {DPP}
    v_fma_f32 v57, v57, v56, v56
    v_mul_f32 v57, {hx(f32(c1))}, v57
    v_exp_f32 v57, v57
    s_nop 0
    v_add_f32 v57, 1.0, v57
    v_rcp_f32 v57, v57
    s_nop 0
    v_mul_f32 v56, v56, v57
    v_cvt_pk_bf16_f32 v56, 0, v56
    v_mul_f32 v56, v56, v58
    v_cvt_pk_bf16_f32 v56, v56, v56
    """)
    p.setexec(0x000f000f)
    p(f"ds_write_b16 v15, v56 offset:{L_OV+256}\ns_mov_b64 exec, -1")
    p.stamp("h")
    if early >= 1 and opts.get("pgearly", 0):
        late_wo()
        p.wait(opts.get("fw", "none")); p.setflag(FX); p.stamp("fw")
    p("s_waitcnt vmcnt(0)")
    p.setflag(FD)
    p.stamp("allin")
    def dreads():
        p(f"ds_read_b128 v[48:51], v4 offset:{L_OV+256}\nds_read_b128 v[52:55], v4 offset:{L_OV+320}")
        trr(6, L_WO)
    p.waitflag(FD, dreads, 14)
    p(f"""
    s_waitcnt lgkmcnt(0)
    {MF} {R4(QD)}, {R4(TR+16)}, v[48:51], 0
    {MF} {R4(QD)}, {R4(TR+20)}, v[52:55], {R4(QD)}
L_final:
    """)
    nf = Gen(opts)
    nf("L_noffn:\ns_setprio 0")
    nf.waitflag(LG)
    wo_issue(nf)
    nf("s_waitcnt vmcnt(0)"); nf.setflag(FX)
    if opts.get("so"): nf("s_waitcnt vmcnt(0)\ns_branch L_fin")
    for i in range(4): nf(f"v_mov_b32 v{QD+i}, 0")
    nf("s_waitcnt vmcnt(0)")
    nf.setflag(FD)
    def nreads():
        for s in range(4):
            nf(f"ds_read_b64_tr_b16 v[{TR+4*s}:{TR+4*s+1}], v3 offset:{L_WO+4096*s}")
            nf(f"ds_read_b64_tr_b16 v[{TR+4*s+2}:{TR+4*s+3}], v3 offset:{L_WO+4096*s+512}")
    nf.waitflag(FD, nreads, 8)
    nf("s_branch L_final")
    if opts.get("xe", 1): p(f"v_and_b32 v17, 0x3fe, v17\nglobal_load_ushort v61, v17, {X}")
    def oreads():
        for s in range(4): p(f"ds_read_b128 {R4(20+4*s)}, v4 offset:{L_OV+64*s}")
    p.waitflag(FO, oreads, 4)
    for s in range(4):
        p.lg(3-s)
        p(f"{MF} {R4(QD)}, {R4(TR+4*s)}, {R4(20+4*s)}, {R4(QD)}")
    p.setexec(0x00010001)
    p("s_nop 5")
    p.tag(QD, TG)
    p(f"global_store_dwordx4 v39, {R4(QD)}, {WS} sc1")
    p("s_mov_b64 exec, -1")
    p.stamp("pubY")
    p(f"""
    s_cmp_ge_u32 s2, 32
    s_cbranch_scc1 L_fin
    s_cmp_lg_u32 s3, 0
    s_cbranch_scc1 L_fin
    {"" if opts.get("xe", 1) else "global_load_ushort v61, v17, " + X}
    s_mov_b32 s47, {SPIN}
L_py:
    global_load_dwordx4 v[48:51], v13, {WS} sc1
    global_load_dwordx4 v[52:55], v13, {WS} offset:1024 sc1
    s_waitcnt vmcnt(0)
    """)
    p.chk([48, 52], 56, 59, "s36")
    p(f"""
    v_cmp_ne_u32 vcc, 0, v59
    s_cbranch_vccz L_py_ok
    s_mov_b64 exec, vcc
    s_sub_u32 s47, s47, 1
    s_cbranch_scc0 L_py
L_py_ok:
    s_mov_b64 exec, -1
    v_pk_add_f32 v[48:49], v[48:49], v[52:53]
    v_pk_add_f32 v[50:51], v[50:51], v[54:55]
    v_lshlrev_b32 v61, 16, v61
    s_nop 0
    v_permlane32_swap_b32 v48, v50
    v_permlane32_swap_b32 v49, v51
    v_pk_add_f32 v[48:49], v[48:49], v[50:51]
    s_nop 1
    v_permlane16_swap_b32 v48, v49
    v_add_f32 v48, v48, v49
    s_nop 1
    v_add_f32_dpp v48, v48, v48 row_ror:4 {DPP}
    s_nop 1
    v_add_f32_dpp v48, v48, v48 row_ror:8 {DPP}
    """)
    p.setexec(0x000f000f)
    p(f"""
    v_add_f32 v48, v48, v61
    v_cvt_pk_bf16_f32 v48, v48, v48
    global_store_short v17, v48, {OUT}
    s_cmp_lg_u32 s2, 0
    s_cbranch_scc1 L_fin
    s_mov_b64 exec, 1
    global_store_dword v40, v{TG}, {WS}
L_fin:
    """)
    E = NSTAMP - 1
    if "amp" in opts:
        i = opts["amp"]
        p(f"""
        s_memrealtime s[{64+2*E}:{65+2*E}]
        s_waitcnt lgkmcnt(0)
        s_cmp_lg_u32 s2, {opts.get("ampwg", 0)}
        s_cbranch_scc1 L_end
        s_cmp_lg_u32 s62, {opts.get("ampw", 0)}
        s_cbranch_scc1 L_end
        s_sub_u32 s63, s{64+2*i}, s64
        s_mul_i32 s63, s63, 10
        s_min_u32 s63, s63, 100000
        s_add_u32 s63, s63, s{64+2*E}
L_amp:
        s_memrealtime s[50:51]
        s_waitcnt lgkmcnt(0)
        s_sub_u32 s61, s50, s63
        s_cmp_lt_i32 s61, 0
        s_cbranch_scc1 L_amp
        """)
    elif opts.get("stamps"):
        p(f"""
        s_memrealtime s[{64+2*E}:{65+2*E}]
        s_sleep 127
        s_waitcnt lgkmcnt(0)
        s_lshl_b32 s50, s2, 3
        s_add_u32 s50, s50, s62
        s_lshl_b32 s50, s50, 8
        s_add_u32 s50, s50, {STAMP_OFF}
        s_mov_b64 exec, 1
        v_mov_b32 v3, s50
        """)
        for i in ((0, E) if opts.get("light") else range(NSTAMP)):
            p(f"v_mov_b32 v4, s{64+2*i}\nv_mov_b32 v5, s{65+2*i}\nglobal_store_dwordx2 v3, v[4:5], {WS} offset:{8*i}")
    p("s_endpgm")
    al = a.L
    ia = next(i for i, l in enumerate(al) if "HEAD_END" in l)
    ip = next(i for i, l in enumerate(p.L) if "HEAD_END" in l)
    body = (c.L + p.L[:ip] + ["    s_branch L_P2", "L_A1:"] + al[:ia] + ["    s_branch L_A2", "L_P2:"] + p.L[ip+1:]
            + ["L_A2:"] + al[ia+1:] + nf.L + cold.L + ["L_end:", "    s_endpgm"])
    opts["names"] = [f"{p.names[i] if i < len(p.names) else '-'}|{a.names[i] if i < len(a.names) else '-'}" for i in range(E)] + ["end"]
    hdr = open("cdna_kernels/" + NAME + ".s.ref").read().split("; Override")[0]
    return hdr + f"""; @launch grid=(256,1,1) block=(512,1,1) lds={opts.get("lds", LDS_BYTES)}
.amdgcn_target "amdgcn-amd-amdhsa--gfx950"
.text
.globl {NAME}_kernel
.p2align 8
.type {NAME}_kernel,@function
{NAME}_kernel:
""" + "\n".join(body) + f"""
.section .rodata,"a"
.p2align 6
.amdhsa_kernel {NAME}_kernel
  .amdhsa_next_free_vgpr 224
  .amdhsa_next_free_sgpr 102
  .amdhsa_accum_offset 224
  .amdhsa_group_segment_fixed_size 0
  .amdhsa_kernarg_size 96
  .amdhsa_user_sgpr_count 2
  .amdhsa_user_sgpr_kernarg_segment_ptr 1
  .amdhsa_system_sgpr_workgroup_id_x 1
  .amdhsa_float_denorm_mode_32 3
.end_amdhsa_kernel
"""

if __name__ == "__main__":
    out = sys.argv[1]
    opts = {}
    for kv in sys.argv[2:]:
        k, v = kv.split("=")
        try: v = int(v)
        except ValueError: pass
        opts[k] = v
    open(out, "w").write(build(opts))
    if opts.get("stamps") and not opts.get("light"): print(",".join(opts["names"]))
```

```python
import sys, struct
NAME = "parallel_sum__sliding_block_cached__geglu_ffn__decode"
STAMP_OFF = 0x10000000
def f32(x): return struct.unpack("<I", struct.pack("<f", x))[0]
def hx(x): return "0x%08x" % (x & 0xffffffff)
DPP = "row_mask:0xf bank_mask:0xf"
NSTAMP = 17
HB = 0x800; QB = 0x1000; GB = 0x11000; MLB = 0x31000; YB = 0x38000; OB = 0x50000; GOFF = 0x100000
L_WQ = 0x0000; L_G = 0x4000; L_WO = 0x8000; L_XN = 0xE000; L_M = 0xE400; L_L = 0xE440; L_F = 0xE480; L_OV = 0xE540
L_QT = 0xE6C0; L_Q = 0xE800; QSTR = 272; L_O = 0x0000; OSTR = 272
F1, FG, FQ, FW, FP, FV, FD, FO, F1b, FX, FS, FY = [L_F + 16*i for i in range(12)]
LDS_BYTES = 98304
SPIN = 200000; TFALL = 256
LOG2E = 1.4426950408889634
X, K, V, WQ, WO, G, U, D, OUT, WS = "s[4:5]", "s[6:7]", "s[8:9]", "s[10:11]", "s[12:13]", "s[16:17]", "s[18:19]", "s[20:21]", "s[22:23]", "s[26:27]"
WG, PB = "s[56:57]", "s[58:59]"
MF = "v_mfma_f32_16x16x32_bf16"
TL, TG, DUM = 124, 125, 126
def R4(r): return f"v[{r}:{r+3}]"
def R2(r): return f"v[{r}:{r+1}]"
def bc(r):
    return (f"v[{r}:{r+1}]", 0) if r % 2 == 0 else (f"v[{r-1}:{r}]", 1)

class Gen:
    nsync = 0
    def __init__(self, opts):
        self.L = []; self.o = opts; self.vm = []; self.nst = 1; self.names = ["start"]
    def __call__(self, s):
        for l in s.strip("\n").split("\n"):
            l = l.strip()
            if not l: continue
            self.L.append(l if l.endswith(":") else "    " + l)
    def vmem(self, name, s):
        self(s); self.vm.append(name)
    def wait(self, name):
        idx = max(i for i, n in enumerate(self.vm) if n == name)
        self(f"s_waitcnt vmcnt({len(self.vm) - 1 - idx})")
    def lg(self, n): self(f"s_waitcnt lgkmcnt({n})")
    def stamp(self, label=""):
        if not self.o.get("stamps") or self.o.get("light"): return
        i = self.nst; self.nst += 1
        assert i < NSTAMP - 1
        self(f"s_memrealtime s[{64+2*i}:{65+2*i}]   ; stamp {i} {label}")
        self.names.append(label)
    def cnt(self, label):
        if not self.o.get("stamps") or self.o.get("light"): return
        i = self.nst; self.nst += 1
        self(f"s_sub_u32 s31, {SPIN}, s47\ns_mul_i32 s31, s31, 100\ns_add_u32 s{64+2*i}, s64, s31\ns_addc_u32 s{65+2*i}, s65, 0")
        self.names.append(label)
    def setexec(self, m32):
        self(f"s_mov_b32 exec_lo, {hx(m32)}\ns_mov_b32 exec_hi, {hx(m32)}")
    def tag(self, r, tv=TL):
        for i in range(4): self(f"v_perm_b32 v{r+i}, v{r+i}, v{tv}, s{38+i}")
    def chk(self, units, t, acc, ts="s60"):
        for n, r in enumerate(units):
            d = acc if n == 0 else (t + 2 if n % 2 == 1 and n + 1 < len(units) else t)
            self(f"v_perm_b32 v{t}, v{r+1}, v{r}, s44\nv_perm_b32 v{t+1}, v{r+3}, v{r+2}, s45")
            self(f"v_bitop3_b32 v{d}, v{t}, v{t+1}, {ts} bitop3:0x56")
            if n and n % 2 == 0: self(f"v_or3_b32 v{acc}, v{acc}, v{t}, v{t+2}")
            elif n and n + 1 == len(units): self(f"v_or_b32 v{acc}, v{acc}, v{t}")
    def toggle(self):
        self(f"s_and_b32 s31, s47, s54\ns_cselect_b64 {PB}, {WG}, {WS}\ns_cselect_b32 s60, s36, s55")
    def setflag(self, F): self(f"ds_write_b32 v42, v40 offset:{F}")
    def waitflag(self, F, reads=None, nreads=0):
        n = Gen.nsync; Gen.nsync += 1
        self(f"L_ps{n}:\nds_read_b128 v[44:47], v40 offset:{F}")
        if reads: reads()
        self(f"s_waitcnt lgkmcnt({nreads})\nv_or3_b32 v44, v44, v45, v46\nv_or_b32 v44, v44, v47\nv_cmp_ne_u32 vcc, 0, v44\ns_cbranch_vccnz L_ps{n}")
    def pkmul(self, d, s, f):
        src, h = bc(f); self(f"v_pk_mul_f32 {R2(d)}, {R2(s)}, {src} op_sel:[0,{h}] op_sel_hi:[1,{h}]")
    def pkfma(self, d, s, f):
        src, h = bc(f); self(f"v_pk_fma_f32 {R2(d)}, {R2(s)}, {src}, {R2(d)} op_sel:[0,{h},0] op_sel_hi:[1,{h},1]")

def build(opts):
    Gen.nsync = 0
    global YB
    YB = 0xD0000 + opts.get("yb", 0); PRB = YB + 0x20000; L_N = L_QT + 256
    near = opts.get("near", 1)
    c = Gen(opts); p = Gen(opts); a = Gen(opts); cold = Gen(opts)
    ntm = str(opts.get("nt", "kvwq"))
    if ntm == "1": ntm = "kvwqp"
    nts = lambda ch: " nt" if ch in ntm else ""
    NT = nts("w")
    pace = opts.get("pace", 8)
    def tags(g):
        g(f"""
        s_mul_i32 s36, s36, 0x9E3779B1
        s_add_u32 s36, s36, 0x7F4A7C15
        s_add_u32 s55, s55, 1
        s_mul_i32 s55, s55, 0x85EBCA6B
        s_xor_b32 s55, s55, s36
        s_mov_b32 s60, s55
        v_mov_b32 v{TL}, s55
        v_mov_b32 v{TG}, s36
        """)
    def consts(g):
        g(f"""
        s_getreg_b32 s55, hwreg(HW_REG_XCC_ID, 0, 4)
        s_add_u32 s56, s26, {GOFF}
        s_addc_u32 s57, s27, 0
        s_mov_b64 {PB}, {WS}
        s_mov_b32 s54, 0
        s_lshr_b32 s31, s29, 3
        s_lshl_b32 s52, s28, 2
        s_add_u32 s52, s52, s31                 ; 4g+hh
        s_mov_b32 s38, 0x07060500
        s_mov_b32 s39, 0x07060501
        s_mov_b32 s40, 0x07060502
        s_mov_b32 s41, 0x07060503
        s_mov_b32 s44, 0x0c0c0400
        s_mov_b32 s45, 0x04000c0c
        s_lshl_b32 s31, s3, 2
        v_mov_b32 v42, s31
        v_mov_b32 v40, 0
        s_lshl_b32 s61, s28, 13
        s_add_u32 s61, s61, {QB}
        s_and_b32 s31, s29, 3
        s_lshl_b32 s31, s31, 11
        s_add_u32 s31, s31, s61
        s_and_b32 s32, s29, 28
        s_add_u32 s32, s32, s3
        s_lshl_b32 s32, s32, 6
        s_add_u32 s31, s31, s32
        v_lshl_add_u32 v5, v10, 4, s31
        s_lshl_b32 s31, s30, 2
        s_add_u32 s31, s31, {HB}
        v_mov_b32 v38, s31
        s_lshl_b32 s31, s3, 6
        v_lshl_add_u32 v41, v10, 4, s31
        """)
    if opts.get("stamps"): c("s_memrealtime s[64:65]")
    c(f"""
    s_load_dwordx16 s[4:19], s[0:1], 0
    s_load_dwordx8 s[20:27], s[0:1], 64
    s_cmp_ge_u32 s2, 256
    s_cbranch_scc1 L_end
    """)
    if opts.get("stamps"):
        for i in range(1, NSTAMP): c(f"s_mov_b64 s[{64+2*i}:{65+2*i}], 0")
    c(f"""
    v_lshrrev_b32 v2, 6, v0
    v_and_b32 v1, 63, v0
    v_readfirstlane_b32 s62, v2
    s_and_b32 s28, s2, 7
    s_lshr_b32 s29, s2, 3
    {"s_xor_b32 s29, s29, %d" % opts["jx"] if opts.get("jx") else ""}
    s_lshl_b32 s30, s28, 5
    s_add_u32 s30, s30, s29                 ; p
    v_lshlrev_b32 v2, 4, v1                 ; lane*16
    v_lshrrev_b32 v12, 3, v1                ; lane>>3
    v_and_b32 v13, 0x70, v2                 ; (lane&7)*16
    v_and_b32 v9, 15, v1
    v_lshrrev_b32 v10, 4, v1
    s_and_b32 s3, s62, 3
    s_cmp_ge_u32 s62, 4
    s_cbranch_scc1 L_A1
    """)
    KR, VR, VT = 128, 160, 192
    QO, S, PM, DD = 48, 64, 72, 88
    ONE, LD, MK = 96, 100, 104
    order = opts.get("ord", "i.q.t.w.j").split(".")
    width = {"i":2, "q":2, "t":1, "w":2, "j":5, "jl":3, "jh":2}
    sh = {}; b_ = 8
    for f_ in order: sh[f_] = b_; b_ += width[f_]
    assert b_ == 20
    KMAP = f"s_lshl_b32 s31, s3, {sh['w']}\n"
    if "j" in sh: KMAP += f"s_lshl_b32 s32, s29, {sh['j']}\ns_add_u32 s31, s31, s32\n"
    else: KMAP += f"s_and_b32 s32, s29, 7\ns_lshl_b32 s32, s32, {sh['jl']}\ns_add_u32 s31, s31, s32\ns_lshr_b32 s32, s29, 3\ns_lshl_b32 s32, s32, {sh['jh']}\ns_add_u32 s31, s31, s32\n"
    opts.setdefault("xm", 7)
    if opts.get("xm"): KMAP += f"s_xor_b32 s33, s29, s28\ns_and_b32 s33, s33, {opts['xm']}\ns_lshl_b32 s33, s33, {sh['t']}\ns_xor_b32 s31, s31, s33\n"
    KMAP += f'''s_lshl_b32 s32, s28, 24
    s_add_u32 s31, s31, s32
    s_add_u32 s31, s31, {61440*256}
    v_and_b32 v7, 3, v9
    v_lshlrev_b32 v7, {sh["i"]}, v7
    v_lshrrev_b32 v8, 2, v9
    v_lshl_add_u32 v7, v8, {sh["q"]}, v7
    v_lshl_add_u32 v7, v10, 4, v7
    v_add_u32 v7, s31, v7
    v_xor_b32 v26, {1 << sh["t"]}, v7
    v_lshlrev_b32 v8, {sh["q"]}, v10
    v_lshl_add_u32 v8, v9, 4, v8
    v_add_u32 v8, s31, v8                   ; V voff'''
    a(f"""
    s_getpc_b64 s[34:35]
L_pc:
    s_lshl_b32 s31, s29, 2
    s_add_u32 s31, s31, s3
    s_lshl_b32 s31, s31, 7
    s_min_u32 s31, s31, L_end-L_pc
    v_mov_b32 v14, s31
    s_mov_b64 exec, 1
    global_load_dword v{DUM}, v14, s[34:35]
    s_mov_b64 exec, -1
    v_lshlrev_b32 v14, 2, v1
    v_mov_b32 v15, -1
    ds_write_b32 v14, v15 offset:{L_M}
    ds_write_b32 v14, v15 offset:{L_M+64}
    {KMAP}
    s_setprio 1
    s_waitcnt lgkmcnt(0)
    """)
    a.stamp("karg")
    a(f"s_load_dword s36, {WS}, 0")
    a("s_barrier")
    if opts.get("headk", 1) == 0: a("; HEAD_END")
    consts(a)
    a(f"""
    s_lshl_b32 s31, s3, 9
    s_add_u32 s31, s31, s61
    s_add_u32 s31, s31, 4096
    v_and_b32 v14, 0x1f0, v2
    v_lshrrev_b32 v6, 5, v1
    v_lshl_add_u32 v6, v6, 11, v14
    v_add_u32 v6, s31, v6
    s_lshl_b32 s31, s28, 7
    s_add_u32 s31, s31, {HB}
    v_lshrrev_b32 v14, 2, v14
    v_add_u32 v39, s31, v14
    """)
    if opts.get("kdelay", 0): a(f"s_sleep {opts.get('kdelay', 0)}")
    if opts.get("alt", 0): seq = "K00 K01 V4 V5 K02 K03 V6 V7 K10 K11 V0 V1 K12 K13 V2 V3".split()
    else: seq = "K00 K01 K02 K03 K10 K11 K12 K13 V0 V1 V2 V3 V4 V5 V6 V7".split()
    def kv(nm):
        if nm[0] == "K":
            t, s = int(nm[1]), int(nm[2])
            if opts.get("klin"):
                a(f"v_xor_b32 v27, {hx((t << sh['t']) + (s << sh['i']))}, v8")
                a.vmem(nm, f"global_load_dwordx4 {R4(KR+16*t+4*s)}, v27, {K}{nts('k')}")
            else: a.vmem(nm, f"global_load_dwordx4 {R4(KR+16*t+4*s)}, v{(7,26)[t]}, {K} offset:{64*s}{nts('k')}")
        else:
            t = int(nm[1])
            off = ((t >> 2) << sh["t"]) + ((t & 3) << sh["i"])
            if t: a(f"v_xor_b32 v27, {hx(off)}, v8")
            a.vmem(nm, f"global_load_dwordx4 {R4(VR+4*t)}, v{27 if t else 8}, {V}{nts('v')}")
    n0 = opts.get('n0', 6)
    for nm in seq[:n0]: kv(nm)
    a.stamp("K_iss")
    if opts.get("headk", 1): a("; HEAD_END")
    def prep():
        for r in range(ONE, ONE+4): a(f"v_mov_b32 v{r}, 0x3f803f80")
        a("v_bfe_u32 v14, v1, 2, 2")
        for e in range(4): a(f"v_cmp_eq_u32 s[50:51], {e}, v14\ns_nop 1\nv_cndmask_b32 v{MK+e}, 0, -1, s[50:51]")
        a(f"""
        s_mov_b32 s42, 0x05040100
        s_mov_b32 s43, 0x07060302
        s_mul_i32 s31, s3, {QSTR}
        s_add_u32 s31, s31, {L_Q}
        v_and_b32 v24, 31, v1
        v_lshl_add_u32 v24, v24, 3, s31
        v_lshrrev_b32 v14, 5, v1
        v_lshl_add_u32 v24, v14, 2, v24
        v_and_b32 v17, 3, v1
        v_mul_u32_u24 v17, {QSTR}, v17
        v_lshl_add_u32 v14, v10, 4, v17
        s_mov_b32 s48, {hx(f32(128**-0.5))}
        s_mov_b32 s49, {hx(f32(LOG2E))}
        s_mul_i32 s31, s3, {8*OSTR}
        v_mul_u32_u24 v15, {OSTR}, v10
        v_lshl_add_u32 v15, v9, 4, v15
        v_add_u32 v15, s31, v15
        v_add_u32 v16, v42, v2
        v_and_b32 v18, 12, v1
        v_add_u32 v18, v18, v10
        v_lshl_add_u32 v17, v18, 4, v17
        s_mul_i32 s31, s3, {4*OSTR}
        v_add_u32 v17, s31, v17
        v_lshlrev_b32 v18, 4, v10
        s_lshl_b32 s31, s30, 3
        s_add_u32 s31, s31, s3
        s_lshl_b32 s31, s31, 8
        s_add_u32 s31, s31, {OB}
        v_lshlrev_b32 v19, 9, v10
        v_lshl_add_u32 v19, v9, 4, v19
        v_add_u32 v19, s31, v19                  ; O voff
        s_lshl_b32 s31, s28, 10
        s_lshl_b32 s32, s29, 3
        s_add_u32 s31, s31, s32
        s_add_u32 s31, s31, {MLB}
        v_lshl_add_u32 v20, v10, 8, s31
        s_lshl_b32 s31, s28, 16
        s_and_b32 s32, s29, 24
        s_lshl_b32 s32, s32, 6
        s_add_u32 s31, s31, s32
        s_lshl_b32 s32, s3, 7
        s_add_u32 s31, s31, s32
        s_add_u32 s31, s31, {OB+4096}
        v_lshl_add_u32 v43, v12, 13, v13
        v_add_u32 v43, s31, v43
        s_lshl_b32 s31, s52, 8
        s_add_u32 s31, s31, {MLB}
        v_lshl_add_u32 v21, v12, 5, s31
        v_and_b32 v22, 3, v1
        v_lshlrev_b32 v22, 6, v22
        v_lshl_add_u32 v22, v10, 4, v22
        v_bfe_u32 v23, v1, 2, 1
        v_lshl_add_u32 v22, v23, 1, v22
        v_add_u32 v22, v42, v22
        s_mov_b32 s47, {SPIN}
        s_waitcnt lgkmcnt(0)
        """)
        tags(a)
    assert QSTR == OSTR
    prep()
    def pollq(g, r=28):
        g(f"global_load_dwordx4 {R4(r)}, v6, {PB} offset:-4096 sc1\nglobal_load_dwordx4 {R4(r+4)}, v6, {PB} sc1\nglobal_load_dword v{r+8}, v39, {PB} sc1")
    if n0 < 8:
        a.waitflag(FP)
        for nm in seq[n0:8]: kv(nm)
    pq_at = opts.get("pq_at", 4)
    def dopoll():
        a.setflag(FV)
        a.waitflag(FV)
        pollq(a); a.vm += ["pq0", "pq1", "pq"]
        a.stamp("pq_iss")
    a("s_mov_b64 vcc, -1")
    for t in range(8):
        if opts.get("gate", 0) == t: a.waitflag(FP)
        if 8 + t >= pace and opts.get("gate", 0) < 0:
            a(f"""
            s_cbranch_vccz L_pa{t}
            s_waitcnt vmcnt({pace-1})
            ds_read_b128 v[44:47], v40 offset:{FP}
            s_waitcnt lgkmcnt(0)
            v_or3_b32 v44, v44, v45, v46
            v_or_b32 v44, v44, v47
            v_cmp_ne_u32 vcc, 0, v44
L_pa{t}:
            """)
        if t == pq_at: dopoll()
        kv(seq[8+t])
    a.stamp("V_iss")
    if opts.get("so"):
        a.setflag(FV); a.setflag(FW)
        a("s_waitcnt vmcnt(0)")
        a.setflag(FQ)
        a("s_branch L_fin")
    if pq_at == 8: dopoll()
    pq2 = opts.get("pq2", 2)
    if pq2:
        if pq2 == 2:
            a.setflag(F1b); a.waitflag(F1b)
        pollq(a, 112); a.vm += ["pr0", "pr1", "pr"]
    a.setflag(FW)
    def vperm(tp):
        a.wait(f"V{2*tp+1}")
        for d in range(4):
            lo = VR + 8*tp + d; hi = lo + 4
            a(f"v_perm_b32 v{VT+4*(2*d)+tp}, v{hi}, v{lo}, s42")
            a(f"v_perm_b32 v{VT+4*(2*d+1)+tp}, v{hi}, v{lo}, s43")
    npre = pq_at // 2
    for tp in range(npre): vperm(tp)
    a.wait("pq")
    a.stamp("pq_ret")
    a("L_pq:")
    a.chk([28, 32], 25, 37)
    a(f"""
    v_xor_b32 v25, s60, v36
    v_or_b32 v37, v37, v25
    v_cmp_ne_u32 vcc, 0, v37
    s_cbranch_vccnz L_pq_retry
L_pq_ok:
    s_mov_b64 exec, -1
    v_pk_add_f32 v[28:29], v[28:29], v[32:33]
    v_pk_add_f32 v[30:31], v[30:31], v[34:35]
    s_nop 1
    v_permlane32_swap_b32 v28, v30
    v_permlane32_swap_b32 v29, v31
    v_pk_add_f32 v[28:29], v[28:29], v[30:31]
    v_cvt_pk_bf16_f32 v28, v28, v29
    ds_write_b32 v24, v28
    """)
    a.setflag(FQ)
    cold("L_pq_retry:\ns_sub_u32 s47, s47, 1\ns_cbranch_scc1 L_pq_ok")
    if pq2:
        cold(f"s_cmp_lg_u32 s47, {SPIN-1}\ns_cbranch_scc1 L_pq_r2\ns_waitcnt vmcnt(0)")
        for i in range(9): cold(f"v_mov_b32 v{28+i}, v{112+i}")
        cold("s_branch L_pq\nL_pq_r2:")
    cold(f"""
    s_cmp_lg_u32 s47, {SPIN-TFALL}
    s_cbranch_scc1 L_pq_nf
    s_mov_b32 s54, 1
    s_mov_b64 exec, -1
    s_mov_b64 s[50:51], vcc
    """)
    cold.waitflag(FP, lambda: cold(f"ds_read_b128 {R4(S)}, v41 offset:{L_QT}"), 0)
    cold("s_mov_b64 vcc, s[50:51]")
    cold.setexec(0x00010001)
    cold.tag(S, TG)
    cold(f"""
    global_store_dword v38, v{TG}, {WG} sc1
    global_store_dwordx4 v5, {R4(S)}, {WG} sc1
L_pq_nf:
    s_mov_b64 exec, vcc
    """)
    cold.toggle(); pollq(cold)
    cold("s_waitcnt vmcnt(0)\ns_branch L_pq")
    a.cnt("#pq")
    def qreads():
        for s in range(4): a(f"ds_read_b128 {R4(QO+4*s)}, v14 offset:{L_Q+64*s}")
    a.waitflag(FQ, qreads, 4)
    a.stamp("q_ok")
    for s in range(4):
        a.lg(3-s)
        for t in range(2):
            a(f"{MF} {R4(S+4*t)}, {R4(KR+16*t+4*s)}, {R4(QO+4*s)}, {'0' if s==0 else R4(S+4*t)}")
    a(f"s_mov_b32 s47, {SPIN}\ns_nop 5")
    for i in range(8): a(f"v_cvt_pk_bf16_f32 v{S+i}, 0, v{S+i}")
    for i in range(0, 8, 2): a(f"v_pk_mul_f32 {R2(S+i)}, {R2(S+i)}, s[48:49] op_sel_hi:[1,0]")
    for i in range(8): a(f"v_cvt_pk_bf16_f32 v{S+i}, 0, v{S+i}")
    a(f"""
    v_max3_f32 v108, v{S}, v{S+1}, v{S+2}
    v_max3_f32 v109, v{S+3}, v{S+4}, v{S+5}
    v_max3_f32 v108, v108, v{S+6}, v{S+7}
    v_max_f32 v108, v108, v109
    """)
    for sw in (16, 32):
        a(f"v_mov_b32 v109, v108\ns_nop 1\nv_permlane{sw}_swap_b32 v108, v109\nv_max_f32 v108, v108, v109")
    a("v_mul_f32 v108, s49, v108")
    for i in range(0, 8, 2):
        a(f"v_pk_fma_f32 {R2(S+i)}, {R2(S+i)}, s[48:49], v[108:109] op_sel:[0,1,0] op_sel_hi:[1,1,0] neg_lo:[0,0,1] neg_hi:[0,0,1]")
    for i in range(8): a(f"v_exp_f32 v{S+i}, v{S+i}")
    a("v_min_u32 v108, -2, v108")
    for i in range(4): a(f"v_cvt_pk_bf16_f32 v{S+i}, v{S+2*i}, v{S+2*i+1}")
    def msk(e):
        for i in range(4): a(f"v_and_b32 v{PM+4*e+i}, v{S+i}, v{MK+e}")
    def pv(e):
        for hf in range(2):
            a(f"{MF} {R4(DD+4*hf)}, {R4(VT+4*(4*hf+e))}, {R4(PM+4*e)}, {'0' if e==0 else R4(DD+4*hf)}")
    msk(0)
    a(f"{MF} {R4(LD)}, {R4(ONE)}, {R4(S)}, 0")
    if npre == 4:
        msk(1); a.stamp("V"); pv(0); msk(2); pv(1); msk(3); pv(2); pv(3)
    else:
        msk(1); msk(2); msk(3)
        for tp in range(npre, 4): vperm(tp)
        a.stamp("V")
        a("s_nop 1")
        for e in range(4): pv(e)
    a(f"""
    s_mov_b64 exec, 0xf
    ds_write_b32 v16, v{LD} offset:{L_L}
    s_mov_b64 exec, -1
    s_nop 3
    ds_write_b128 v15, {R4(DD)} offset:{L_O}
    ds_write_b128 v15, {R4(DD+4)} offset:{L_O+4*OSTR}
    s_mov_b64 exec, 0xf
    ds_write_b32 v16, v108 offset:{L_M}
    s_mov_b64 exec, -1
    """)
    a.stamp("PV")
    a(f"""
    s_cmp_ge_u32 s3, 2
    s_cbranch_scc1 L_nocomb
L_cmb:
    ds_read_b128 {R4(S)}, v18 offset:{L_M}
    ds_read_b128 {R4(S+4)}, v18 offset:{L_L}
    """)
    for w in range(4):
        a(f"ds_read_b128 {R4(PM+4*w)}, v17 offset:{L_O+8*OSTR*w}")
    a.lg(5)
    a(f"""
    v_max3_u32 v110, v{S}, v{S+1}, v{S+2}
    v_max3_f32 v108, v{S}, v{S+1}, v{S+2}
    v_max_u32 v110, v110, v{S+3}
    v_max_f32 v108, v108, v{S+3}
    v_cmp_eq_u32 vcc, -1, v110
    s_cbranch_vccnz L_cmb
    v_pk_add_f32 {R2(S)}, {R2(S)}, v[108:109] op_sel_hi:[1,0] neg_lo:[0,1] neg_hi:[0,1]
    v_pk_add_f32 {R2(S+2)}, {R2(S+2)}, v[108:109] op_sel_hi:[1,0] neg_lo:[0,1] neg_hi:[0,1]
    """)
    for w in range(4): a(f"v_exp_f32 v{S+w}, v{S+w}")
    a.lg(4)
    a(f"""
    v_pk_mul_f32 {R2(S+4)}, {R2(S)}, {R2(S+4)}
    v_pk_fma_f32 {R2(S+4)}, {R2(S+2)}, {R2(S+6)}, {R2(S+4)}
    v_add_f32 v110, v{S+4}, v{S+5}
    v_rcp_f32 v111, v110
    v_log_f32 v110, v110
    s_waitcnt lgkmcnt(0)
    """)
    a.pkmul(DD, PM, S); a.pkmul(DD+2, PM+2, S)
    a(f"v_add_f32 v108, v108, v110\nv_mov_b32 v109, v{TL}")
    for w in range(1, 4):
        a.pkfma(DD, PM+4*w, S+w); a.pkfma(DD+2, PM+4*w+2, S+w)
    a.pkmul(DD, DD, 111); a.pkmul(DD+2, DD+2, 111)
    a.tag(DD)
    a(f"global_store_dwordx4 v19, {R4(DD)}, {WS}")
    a.setexec(0x00010001)
    a(f"""
    global_store_dwordx2 v20, v[108:109], {WS}
    s_mov_b64 exec, -1
    s_cmp_lg_u32 s54, 0
    s_cbranch_scc1 L_fbO
L_nocomb:
    """)
    cold("L_fbO:")
    cold.tag(DD, TG)
    cold(f"v_mov_b32 v109, v{TG}\nglobal_store_dwordx4 v19, {R4(DD)}, {WG} sc1")
    cold.setexec(0x00010001)
    cold(f"global_store_dwordx2 v20, v[108:109], {WG} sc1\ns_mov_b64 exec, -1\ns_branch L_nocomb")
    a.setflag(FS)
    a.stamp("pubO")
    if opts.get("fx", 1): a.waitflag(FX)
    a.stamp("FX")
    LS, OD = 48, 56
    def odata(g):
        for k in range(4): g(f"global_load_dwordx4 {R4(OD+4*k)}, v43, {PB} offset:{2048*k-4096} sc1")
    if not opts.get("spec", 1): a("s_mov_b64 vcc, -1\ns_branch L_po_retry")
    a("L_po:")
    for k in range(2): a(f"global_load_dwordx4 {R4(LS+4*k)}, v21, {PB} offset:{16*k} sc1")
    odata(a)
    if opts.get("fw") == "pre": a.setflag(FY)
    a(f"""
    s_mov_b64 exec, -1
    s_waitcnt vmcnt(4)
    v_xor_b32 v76, s60, v{LS+1}
    v_xor_b32 v77, s60, v{LS+3}
    v_xor_b32 v78, s60, v{LS+5}
    v_or3_b32 v76, v76, v77, v78
    v_xor_b32 v77, s60, v{LS+7}
    v_or_b32 v76, v76, v77
    v_cmp_ne_u32 vcc, 0, v76
    s_cbranch_vccnz L_po_retry
L_po_ok:
    v_max3_f32 v76, v{LS}, v{LS+2}, v{LS+4}
    v_max_f32 v76, v76, v{LS+6}
    s_nop 1
    v_max_f32_dpp v76, v76, v76 row_ror:8 {DPP}
    v_mov_b32 v77, v76
    s_nop 1
    v_permlane16_swap_b32 v76, v77
    v_max_f32 v76, v76, v77
    v_mov_b32 v77, v76
    s_nop 1
    v_permlane32_swap_b32 v76, v77
    v_max_f32 v76, v76, v77
    v_sub_f32 v80, v{LS}, v76
    v_sub_f32 v81, v{LS+2}, v76
    v_sub_f32 v82, v{LS+4}, v76
    v_sub_f32 v83, v{LS+6}, v76
    v_exp_f32 v80, v80
    v_exp_f32 v81, v81
    v_exp_f32 v82, v82
    v_exp_f32 v83, v83
    s_nop 0
    v_pk_add_f32 v[84:85], v[80:81], v[82:83]
    v_add_f32 v84, v84, v85
    v_mov_b32 v85, v84
    s_nop 1
    v_permlane32_swap_b32 v84, v85
    v_add_f32 v84, v84, v85
    v_mov_b32 v85, v84
    s_nop 1
    v_permlane16_swap_b32 v84, v85
    v_add_f32 v84, v84, v85
L_pd:
    s_waitcnt vmcnt(0)
    """)
    a.chk([OD, OD+4, OD+8, OD+12], 76, 79)
    a(f"""
    v_cmp_ne_u32 vcc, 0, v79
    s_cbranch_vccnz L_pd_retry
L_pd_ok:
    """)
    a.stamp("O_ok")
    cold(f"""
L_po_retry:
    s_sub_u32 s47, s47, 1
    s_cbranch_scc1 L_po_giveup
    s_cmp_lg_u32 s54, 0
    s_cbranch_scc1 L_po_fb
    s_mov_b64 exec, vcc
    {"s_sleep %d" % opts["oslp"] if opts.get("oslp") else ""}
    """)
    for k in range(2): cold(f"global_load_dwordx4 {R4(LS+4*k)}, v21, {PB} offset:{16*k} sc1")
    cold(f"""
    s_waitcnt vmcnt(0)
    v_xor_b32 v76, s60, v{LS+1}
    v_xor_b32 v77, s60, v{LS+3}
    v_xor_b32 v78, s60, v{LS+5}
    v_or3_b32 v76, v76, v77, v78
    v_xor_b32 v77, s60, v{LS+7}
    v_or_b32 v76, v76, v77
    v_cmp_ne_u32 vcc, 0, v76
    s_andn2_b64 exec, exec, vcc
    s_cbranch_execz L_po_retry
    """)
    odata(cold)
    cold(f"""
    s_cbranch_vccnz L_po_retry
L_po_giveup:
    s_mov_b64 exec, -1
    s_branch L_po_ok
L_po_fb:
    """)
    cold.toggle()
    cold(f"""
    s_branch L_po
L_pd_retry:
    s_sub_u32 s47, s47, 1
    s_cbranch_scc1 L_pd_ok
    s_mov_b64 exec, vcc
    """)
    odata(cold)
    cold("s_mov_b64 exec, -1\ns_branch L_pd")
    a(f"v_add_f32_dpp v84, v84, v84 row_ror:8 {DPP}")
    a.pkmul(OD, OD, 80); a.pkmul(OD+2, OD+2, 80)
    a("v_rcp_f32 v84, v84")
    for k in range(1, 4):
        a.pkfma(OD, OD+4*k, 80+k); a.pkfma(OD+2, OD+4*k+2, 80+k)
    a(f"""
    s_nop 1
    v_permlane32_swap_b32 v{OD}, v{OD+2}
    v_permlane32_swap_b32 v{OD+1}, v{OD+3}
    v_pk_add_f32 {R2(OD)}, {R2(OD)}, {R2(OD+2)}
    s_nop 1
    v_permlane16_swap_b32 v{OD}, v{OD+1}
    v_add_f32 v{OD}, v{OD}, v{OD+1}
    s_nop 1
    v_add_f32_dpp v{OD}, v{OD}, v{OD} row_ror:8 {DPP}
    v_mul_f32 v{OD}, v{OD}, v84
    v_cvt_pk_bf16_f32 v{OD}, v{OD}, v{OD}
    ds_write_b16 v22, v{OD} offset:{L_OV}
    """)
    a.setflag(FO)
    a.stamp("o_wr")
    a.cnt("#po")
    a("s_branch L_fin" if opts.get("stamps") else "s_endpgm")

    TR, QD = 64, 88
    p(f"""
    s_and_b32 s31, s29, 3
    s_lshl_b32 s31, s31, 2
    s_add_u32 s31, s31, s3
    s_lshl_b32 s31, s31, 18
    s_lshr_b32 s32, s30, 2
    s_lshl_b32 s32, s32, 7
    s_add_u32 s31, s31, s32
    v_and_b32 v43, 16, v1
    v_lshlrev_b32 v43, 1, v43
    v_xor_b32 v43, v43, v13
    v_lshl_add_u32 v3, v12, 13, v43
    v_add_u32 v3, s31, v3
    v_xor_b32 v4, 0x10040, v3
    v_add_u32 v7, 0x20000, v3
    v_xor_b32 v6, 0x30040, v3
    {"s_lshl_b32 s31, s30, 2" + chr(10) + "s_add_u32 s31, s31, s3" + chr(10) + "s_lshl_b32 s31, s31, 12" + chr(10) + "v_add_u32 v3, s31, v2" + chr(10) + "v_add_u32 v4, 1024, v3" + chr(10) + "v_add_u32 v7, 2048, v3" + chr(10) + "v_add_u32 v6, 3072, v3" if "q" in str(opts.get("wlin", "")) else ""}
    s_lshl_b32 m0, s3, 12
    s_setprio 2
    s_waitcnt lgkmcnt(0)
    """)
    p.stamp("karg")
    p.vmem("x", f"global_load_dwordx4 v[16:19], v2, {X}")
    for i in range(4):
        p.vmem(f"wq{i}", f"global_load_lds_dwordx4 v{(3,4,7,6)[i]}, {WQ}{nts('q')}")
        if i < 3: p("s_add_u32 m0, m0, 1024\ns_nop 0")
    p(f"s_load_dword s36, {WS}, 0")
    p("s_barrier")
    p("; HEAD_END")
    consts(p)
    p(f"""
    s_and_b32 s33, s29, 7
    s_lshl_b32 s31, s33, 2
    s_add_u32 s31, s31, s3
    s_lshl_b32 s31, s31, 11
    s_lshl_b32 s32, s52, 6
    s_add_u32 s31, s31, s32
    s_add_u32 s31, s31, {YB}
    v_lshl_add_u32 v39, v10, 4, s31         ; Y voff
    s_lshl_b32 s31, s30, 11
    s_add_u32 s31, s31, {OB}
    s_mov_b32 s32, {0 if opts.get("pre", 1) == 2 else 15}
    s_lshl_b32 s48, s30, 9
    s_add_u32 s48, s48, {GB}
    s_cmp_eq_u32 s3, 1
    s_cselect_b32 s31, s48, s31
    s_cselect_b32 s32, 3, s32
    s_lshl_b32 s48, s30, 8
    s_add_u32 s48, s48, {QB}
    s_cmp_eq_u32 s3, 2
    s_cselect_b32 s31, s48, s31
    s_cselect_b32 s32, 1, s32
    s_lshl_b32 s48, s30, 5
    s_add_u32 s48, s48, {MLB}
    s_cmp_eq_u32 s3, 3
    s_cselect_b32 s31, s48, s31
    s_cselect_b32 s32, 0, s32
    v_and_b32 v44, s32, v1
    v_lshl_add_u32 v44, v44, 7, s31
    v_cmp_gt_u32 vcc, 16, v1
    v_cmp_gt_u32 s[50:51], 32, v1
    s_nop 0
    v_cndmask_b32 v44, v38, v44, vcc
    v_cndmask_b32 v44, v39, v44, s[50:51]
    """)
    if opts.get("pre", 1): p.vmem("pre", f"global_load_dword v{DUM}, v44, {WS}{nts('p')}")
    p(f"""
    s_and_b32 s53, s29, 24
    s_add_u32 s53, s53, s28
    s_lshl_b32 s32, s33, 2
    s_add_u32 s32, s32, s3
    s_mul_i32 s32, s32, {16*3584}
    s_lshl_b32 s31, s53, 7
    s_add_u32 s32, s32, s31
    v_mul_u32_u24 v11, 3584, v12
    v_add3_u32 v11, v11, v43, s32
    v_add_u32 v14, {8*3584}, v11
    v_xor_b32 v14, 64, v14
    v_lshl_add_u32 v37, v12, 10, v43
    s_lshl_b32 s31, s52, 2
    s_add_u32 s31, s31, s3
    s_lshl_b32 s31, s31, 15
    s_lshl_b32 s32, s33, 7
    s_add_u32 s31, s31, s32
    v_add_u32 v36, s31, v37
    s_lshl_b32 s31, s53, 2
    s_add_u32 s31, s31, s3
    s_lshl_b32 s31, s31, 14
    s_add_u32 s31, s31, s32
    v_add_u32 v37, s31, v37
    v_bfe_u32 v3, v1, 2, 2
    v_lshl_add_u32 v3, v10, 3, v3
    v_lshlrev_b32 v3, 7, v3
    v_and_b32 v4, 3, v1
    v_lshl_add_u32 v3, v4, 3, v3
    s_lshl_b32 s31, s3, 5
    v_add_u32 v3, s31, v3
    v_bfe_u32 v4, v1, 3, 2
    v_lshlrev_b32 v4, 5, v4
    v_xor_b32 v3, v3, v4
    s_and_b32 s31, s29, 3
    s_lshl_b32 s31, s31, 8
    v_lshl_add_u32 v4, v10, 4, s31
    s_lshl_b32 s31, s33, 7
    v_lshl_add_u32 v6, v10, 4, s31
    s_lshl_b32 s49, s3, 11
    """)
    wl = str(opts.get("wlin", ""))
    if "g" in wl: p("s_lshl_b32 s31, s30, 2\ns_add_u32 s31, s31, s3\ns_mul_i32 s31, s31, 1792\nv_add_u32 v11, s31, v2\nv_add_u32 v14, 768, v11")
    if "o" in wl: p("s_lshl_b32 s31, s30, 14\ns_lshl_b32 s32, s3, 10\ns_add_u32 s31, s31, s32\ns_and_b32 s32, s30, 1\ns_lshl_b32 s32, s32, 12\ns_and_b32 s31, s31, 0xffff8fff\ns_add_u32 s31, s31, s32\nv_add_u32 v36, s31, v2")
    early = opts.get("early", 0)
    def gu_issue():
        for i in range(2):
            for m, (nm, P) in enumerate((("g", G), ("u", U))):
                p(f"s_add_u32 m0, s49, {L_G + 1024*i + 8192*m}\ns_nop 0")
                p.vmem(f"{nm}{i}", f"global_load_lds_dwordx4 v{11 if i==0 else 14}, {P}{NT}")
    def wd_issue():
        for n in range(2):
            p(f"s_add_u32 m0, s49, {L_WO + 16384 + 1024*n}\ns_nop 0")
            p.vmem(f"w{4+n}", f"global_load_lds_dwordx4 v37, {D}{NT}")
            if n == 0: p("v_xor_b32 v37, 0x2040, v37")
    if early >= 1:
        p("s_cmp_ge_u32 s53, 28\ns_cselect_b64 exec, 1, -1\ns_cbranch_scc0 L_ef\nv_mov_b32 v11, 0\nv_mov_b32 v14, 0\nv_mov_b32 v37, 0\nL_ef:")
        gu_issue()
        if early >= 2: wd_issue()
        p("s_mov_b64 exec, -1")
    p.wait("x")
    p.stamp("x")
    xs = list(range(20, 28))
    for i in range(4):
        p(f"v_lshlrev_b32 v{xs[2*i]}, 16, v{16+i}\nv_and_b32 v{xs[2*i+1]}, 0xffff0000, v{16+i}")
    p("v_readfirstlane_b32 s50, v20\ns_nop 1")
    for i in range(4):
        p(f"v_pk_add_f32 {R2(48+2*i)}, {R2(20+2*i)}, s[50:51] op_sel_hi:[1,0] neg_lo:[0,1] neg_hi:[0,1]")
    p(f"""
    v_pk_mul_f32 v[30:31], v[48:49], v[48:49]
    v_pk_add_f32 v[28:29], v[48:49], v[50:51]
    v_pk_fma_f32 v[30:31], v[50:51], v[50:51], v[30:31]
    v_pk_add_f32 v[28:29], v[28:29], v[52:53]
    v_pk_fma_f32 v[30:31], v[52:53], v[52:53], v[30:31]
    v_pk_add_f32 v[28:29], v[28:29], v[54:55]
    v_pk_fma_f32 v[30:31], v[54:55], v[54:55], v[30:31]
    v_add_f32 v28, v28, v29
    v_add_f32 v29, v30, v31
    s_nop 0
    """)
    for r in (1, 2, 4, 8):
        p(f"v_add_f32_dpp v28, v28, v28 row_ror:{r} {DPP}\nv_add_f32_dpp v29, v29, v29 row_ror:{r} {DPP}\ns_nop 0")
    p(f"""
    s_nop 0
    v_permlane32_swap_b32 v28, v29
    v_add_f32 v28, v28, v29
    v_mov_b32 v29, v28
    s_nop 1
    v_permlane16_swap_b32 v28, v29
    v_add_f32 v28, v28, v29
    v_mul_f32 v28, {hx(f32(1/512))}, v28
    s_nop 0
    v_readlane_b32 s32, v28, 0
    v_readlane_b32 s48, v28, 32
    s_nop 0
    v_mov_b32 v28, s32
    v_fma_f32 v29, -v28, v28, s48
    v_add_f32 v28, s50, v28
    v_max_f32 v29, 0, v29
    v_cvt_pk_bf16_f32 v28, 0, v28
    v_cvt_pk_bf16_f32 v29, 0, v29
    v_add_f32 v29, {hx(f32(1e-5))}, v29
    v_cvt_pk_bf16_f32 v29, 0, v29
    v_sqrt_f32 v31, v29
    """)
    for i in range(4):
        p(f"v_pk_add_f32 {R2(20+2*i)}, {R2(20+2*i)}, v[28:29] op_sel_hi:[1,0] neg_lo:[0,1] neg_hi:[0,1]")
    p("v_cvt_pk_bf16_f32 v29, 0, v31\nv_rcp_f32 v30, v29")
    for i in range(8): p(f"v_cvt_pk_bf16_f32 v{xs[i]}, 0, v{xs[i]}")
    for i in range(4): p.pkmul(20+2*i, 20+2*i, 30)
    for i in range(4):
        p(f"v_cvt_pk_bf16_f32 v{16+i}, v{xs[2*i]}, v{xs[2*i+1]}")
    p(f"ds_write_b128 v2, v[16:19] offset:{L_XN}")
    for i in range(4):
        p(f"ds_read_b128 {R4(20+4*i)}, v4 offset:{L_XN+64*i}")
    p(f"ds_read_b128 v[48:51], v6 offset:{L_XN}\nds_read_b128 v[52:55], v6 offset:{L_XN+64}")
    p.stamp("ln")
    p.wait("wq3")
    p.setflag(F1)
    p("s_waitcnt lgkmcnt(0)")
    tags(p)
    def trr(n, base):
        for s in range(n):
            p(f"ds_read_b64_tr_b16 v[{TR+4*s}:{TR+4*s+1}], v3 offset:{base+4096*s}")
            p(f"ds_read_b64_tr_b16 v[{TR+4*s+2}:{TR+4*s+3}], v3 offset:{base+4096*s+512}")
    p.waitflag(F1, lambda: trr(4, L_WQ), 8)
    p.stamp("S1")
    for s in range(4):
        p.lg(6-2*s)
        p(f"{MF} {R4(QD)}, {R4(TR+4*s)}, {R4(20+4*s)}, {'0' if s==0 else R4(QD)}")
    p.setexec(0x00010001)
    p.vmem("hello", f"global_store_dword v38, v{TL}, {WS}")
    p("s_nop 4")
    p.tag(QD)
    p.vmem("pubq", f"global_store_dwordx4 v5, {R4(QD)}, {WS}")
    p(f"ds_write_b128 v41, {R4(QD)} offset:{L_QT}")
    p("s_mov_b64 exec, -1")
    p.setflag(FP)
    if opts.get("so", 0) & 4:
        if opts["so"] & 8: p.waitflag(FQ)
        p("s_branch L_fin")
    p.stamp("pubq")
    p(f"""
    s_lshl_b32 s31, s30, 2
    s_add_u32 s31, s31, s3
    s_lshl_b32 s31, s31, 7
    s_add_u32 s31, s31, {GB}
    v_and_b32 v18, 1, v1
    v_lshlrev_b32 v18, 6, v18
    v_lshl_add_u32 v18, v10, 4, v18
    v_add_u32 v18, s31, v18
    s_and_b32 s31, s31, 0xfffff1ff
    v_lshl_add_u32 v5, v12, 9, v13
    v_add_u32 v5, s31, v5
    s_mov_b32 s50, 0x00020002
    s_mov_b32 s51, 0x00020002
    v_and_b32 v15, 3, v1
    v_lshlrev_b32 v15, 3, v15
    v_lshl_add_u32 v15, v10, 1, v15
    s_lshl_b32 s31, s2, 5
    v_add_u32 v17, s31, v15
    s_lshl_b32 s31, s3, 5
    v_add_u32 v15, s31, v15
    v_lshlrev_b32 v4, 4, v10
    s_lshl_b32 s31, s2, 11
    s_add_u32 s31, s31, {YB}
    v_add_u32 v13, s31, v2
    s_mov_b32 s47, {SPIN}
    s_lshl_b32 s46, s3, 12
    """)
    hold = opts.get("hold", 4)
    def wo_issue(g):
        for n in range(4):
            if n == 4 - hold:
                if g is p and early < 1 and opts.get("gfirst", 0): gcomp()
                g.waitflag(FS)
                if opts.get("fw") == "pre":
                    g.setflag(FX)
                    if g is p: p.vmem("pg", f"global_load_dwordx4 v[56:59], v5, {PB} sc1")
                    g.waitflag(FY)
            g(f"s_add_u32 m0, s46, {L_WO + 1024*n}\ns_nop 0")
            g.vmem(f"w{n}", f"global_load_lds_dwordx4 v36, {WO}{NT}")
            if n < 3: g(f"v_xor_b32 v36, {hx((0x2040, 0x6040, 0x2040)[n])}, v36")
    LG = {"w": FW, "q": FQ, "v": FV}[opts.get("lg", "w")]
    p("s_cmp_ge_u32 s53, 28\ns_cbranch_scc1 L_noffn")
    def gcomp():
        p.wait("u1")
        p.setflag(FG)
        p.stamp("gu")
        p.waitflag(FG, lambda: trr(4, L_G), 8)
        for m in range(2):
            for s in range(2):
                p.lg(6-2*(2*m+s))
                p(f"{MF} {R4(QD+4*m)}, {R4(TR+8*m+4*s)}, {R4(48+4*s)}, {'0' if s==0 else R4(QD+4*m)}")
        p.setexec(0x00030003)
        p("s_nop 5")
        for i in range(4): p(f"v_cndmask_b32 v{QD+i}, v{QD+i}, v{QD+4+i}, s[50:51]")
        p.tag(QD)
        p.vmem("pubg", f"global_store_dwordx4 v18, {R4(QD)}, {WS}")
        p("s_mov_b64 exec, -1")
        p.stamp("pubg")
    if early >= 1: gcomp()
    p("s_setprio 0")
    if early < 1 and opts.get("gg", "w") == "v":
        p.waitflag(FV)
        if opts.get("ggprio"): p("s_setprio 2")
        gu_issue()
        p("s_setprio 0")
    p.waitflag(LG)
    if early >= 1 and opts.get("pgearly", 0): p.vmem("pg", f"global_load_dwordx4 v[56:59], v5, {PB} sc1")
    if early < 1 and opts.get("gg", "w") == "w": gu_issue()
    if early < 2: wd_issue()
    late_wo = lambda: wo_issue(p)
    if not (early >= 1 and opts.get("pgearly", 0)): wo_issue(p)
    if opts.get("so"): p("s_waitcnt vmcnt(0)\ns_branch L_fin")
    p.stamp("iss")
    if early < 1 and not (opts.get("gfirst", 0) and hold): gcomp()
    if (early >= 1 and opts.get("pgearly", 0)) or opts.get("fw") == "pre":
        p.wait("pg"); p("s_branch L_pg1")
    else:
        if opts.get("fw", "none") != "none": p.wait(opts.get("fw", "none"))
        if opts.get("xdelay"): p(f"s_sleep {opts['xdelay']}")
        p.setflag(FX)
        p.stamp("fw")
    p(f"""
L_pg:
    global_load_dwordx4 v[56:59], v5, {PB} sc1
    s_waitcnt vmcnt(0)
L_pg1:
    """)
    p.chk([56], 60, 63)
    p(f"""
    v_cmp_ne_u32 vcc, 0, v63
    s_cbranch_vccnz L_pg_retry
L_pg_ok:
    s_mov_b64 exec, -1
    """)
    cold(f"""
L_pg_retry:
    s_sub_u32 s47, s47, 1
    s_cbranch_scc1 L_pg_ok
    s_cmp_lg_u32 s47, {SPIN-TFALL}
    s_cbranch_scc1 L_pg_nf
    s_mov_b32 s54, 1
    """)
    cold.setexec(0x00030003)
    cold.tag(QD, TG)
    cold(f"global_store_dwordx4 v18, {R4(QD)}, {WG} sc1\nL_pg_nf:\ns_mov_b64 exec, vcc")
    cold.toggle()
    cold("s_branch L_pg")
    c1 = -2*0.7978845608028654*LOG2E
    p(f"""
    v_permlane32_swap_b32 v56, v58
    v_permlane32_swap_b32 v57, v59
    v_pk_add_f32 v[56:57], v[56:57], v[58:59]
    s_nop 1
    v_permlane16_swap_b32 v56, v57
    v_add_f32 v56, v56, v57
    s_nop 1
    v_add_f32_dpp v56, v56, v56 row_ror:8 {DPP}
    v_cvt_pk_bf16_f32 v56, 0, v56
    v_mul_f32 v57, v56, v56
    v_mul_f32 v57, {hx(f32(0.044715))}, v57
    v_mov_b32_dpp v58, v56 row_ror:4 {DPP}
    v_fma_f32 v57, v57, v56, v56
    v_mul_f32 v57, {hx(f32(c1))}, v57
    v_exp_f32 v57, v57
    s_nop 0
    v_add_f32 v57, 1.0, v57
    v_rcp_f32 v57, v57
    s_nop 0
    v_mul_f32 v56, v56, v57
    v_cvt_pk_bf16_f32 v56, 0, v56
    v_mul_f32 v56, v56, v58
    v_cvt_pk_bf16_f32 v56, v56, v56
    """)
    p.setexec(0x000f000f)
    p(f"ds_write_b16 v15, v56 offset:{L_OV+256}\ns_mov_b64 exec, -1")
    p.stamp("h")
    if early >= 1 and opts.get("pgearly", 0):
        late_wo()
        p.wait(opts.get("fw", "none")); p.setflag(FX); p.stamp("fw")
    p("s_waitcnt vmcnt(0)")
    p.setflag(FD)
    p.stamp("allin")
    def dreads():
        p(f"ds_read_b128 v[48:51], v4 offset:{L_OV+256}\nds_read_b128 v[52:55], v4 offset:{L_OV+320}")
        trr(6, L_WO)
    p.waitflag(FD, dreads, 14)
    p(f"""
    s_waitcnt lgkmcnt(0)
    {MF} {R4(QD)}, {R4(TR+16)}, v[48:51], 0
    {MF} {R4(QD)}, {R4(TR+20)}, v[52:55], {R4(QD)}
L_final:
    """)
    nf = Gen(opts)
    nf("L_noffn:\ns_setprio 0")
    nf.waitflag(LG)
    wo_issue(nf)
    nf("s_waitcnt vmcnt(0)"); nf.setflag(FX)
    if opts.get("so"): nf("s_waitcnt vmcnt(0)\ns_branch L_fin")
    for i in range(4): nf(f"v_mov_b32 v{QD+i}, 0")
    nf("s_waitcnt vmcnt(0)")
    nf.setflag(FD)
    def nreads():
        for s in range(4):
            nf(f"ds_read_b64_tr_b16 v[{TR+4*s}:{TR+4*s+1}], v3 offset:{L_WO+4096*s}")
            nf(f"ds_read_b64_tr_b16 v[{TR+4*s+2}:{TR+4*s+3}], v3 offset:{L_WO+4096*s+512}")
    nf.waitflag(FD, nreads, 8)
    nf("s_branch L_final")
    if opts.get("xe", 1): p(f"v_and_b32 v17, 0x3fe, v17\nglobal_load_ushort v61, v17, {X}")
    def oreads():
        for s in range(4): p(f"ds_read_b128 {R4(20+4*s)}, v4 offset:{L_OV+64*s}")
    p.waitflag(FO, oreads, 4)
    for s in range(4):
        p.lg(3-s)
        p(f"{MF} {R4(QD)}, {R4(TR+4*s)}, {R4(20+4*s)}, {R4(QD)}")
    p.setexec(0x00010001)
    p("s_nop 5")
    p.tag(QD, TG)
    p(f"global_store_dwordx4 v39, {R4(QD)}, {WS} sc1")
    p("s_mov_b64 exec, -1")
    p.stamp("pubY")
    p(f"""
    s_cmp_ge_u32 s2, 32
    s_cbranch_scc1 L_fin
    s_cmp_lg_u32 s3, 0
    s_cbranch_scc1 L_fin
    {"" if opts.get("xe", 1) else "global_load_ushort v61, v17, " + X}
    s_mov_b32 s47, {SPIN}
L_py:
    global_load_dwordx4 v[48:51], v13, {WS} sc1
    global_load_dwordx4 v[52:55], v13, {WS} offset:1024 sc1
    s_waitcnt vmcnt(0)
    """)
    p.chk([48, 52], 56, 59, "s36")
    p(f"""
    v_cmp_ne_u32 vcc, 0, v59
    s_cbranch_vccz L_py_ok
    s_mov_b64 exec, vcc
    s_sub_u32 s47, s47, 1
    s_cbranch_scc0 L_py
L_py_ok:
    s_mov_b64 exec, -1
    v_pk_add_f32 v[48:49], v[48:49], v[52:53]
    v_pk_add_f32 v[50:51], v[50:51], v[54:55]
    v_lshlrev_b32 v61, 16, v61
    s_nop 0
    v_permlane32_swap_b32 v48, v50
    v_permlane32_swap_b32 v49, v51
    v_pk_add_f32 v[48:49], v[48:49], v[50:51]
    s_nop 1
    v_permlane16_swap_b32 v48, v49
    v_add_f32 v48, v48, v49
    s_nop 1
    v_add_f32_dpp v48, v48, v48 row_ror:4 {DPP}
    s_nop 1
    v_add_f32_dpp v48, v48, v48 row_ror:8 {DPP}
    """)
    p.setexec(0x000f000f)
    p(f"""
    v_add_f32 v48, v48, v61
    v_cvt_pk_bf16_f32 v48, v48, v48
    global_store_short v17, v48, {OUT}
    s_cmp_lg_u32 s2, 0
    s_cbranch_scc1 L_fin
    s_mov_b64 exec, 1
    global_store_dword v40, v{TG}, {WS}
L_fin:
    """)
    E = NSTAMP - 1
    if "amp2" in opts:
        p(f"""
        s_memrealtime s[{64+2*E}:{65+2*E}]
        s_cmp_lg_u32 s62, 0
        s_cbranch_scc1 L_end
        s_mov_b64 exec, 1
        s_lshl_b32 s50, s2, 2
        s_add_u32 s50, s50, 0x300000
        v_mov_b32 v3, s50
        v_mov_b32 v4, s64
        global_store_dword v3, v4, {WS} sc1
        s_cmp_lg_u32 s2, 0
        s_cbranch_scc1 L_end
        s_mov_b64 exec, -1
        s_sleep 100
        v_add_u32 v3, 0x300000, v2
        global_load_dwordx4 v[4:7], v3, {WS} sc1
        s_waitcnt vmcnt(0) lgkmcnt(0)
        v_sub_u32 v4, s{64+2*E}, v4
        v_sub_u32 v5, s{64+2*E}, v5
        v_sub_u32 v6, s{64+2*E}, v6
        v_sub_u32 v7, s{64+2*E}, v7
        v_min3_u32 v8, v4, v5, v6
        v_min_u32 v8, v8, v7
        v_max3_u32 v9, v4, v5, v6
        v_max_u32 v9, v9, v7
        v_add3_u32 v4, v4, v5, v6
        v_add_u32 v4, v4, v7
        s_mov_b32 s50, 0
        s_mov_b32 s51, -1
        s_mov_b32 s53, 0
        s_mov_b32 s52, 0
L_a2:
        v_readlane_b32 s31, v4, s52
        v_readlane_b32 s32, v8, s52
        v_readlane_b32 s33, v9, s52
        s_add_u32 s50, s50, s31
        s_min_u32 s51, s51, s32
        s_max_u32 s53, s53, s33
        s_add_u32 s52, s52, 1
        s_cmp_lt_u32 s52, 64
        s_cbranch_scc1 L_a2
        s_mul_i32 s50, s50, {(5,10,0,0)[opts["amp2"]]}
        s_lshr_b32 s50, s50, 8
        s_mul_i32 s51, s51, {(5,0,10,0)[opts["amp2"]]}
        s_mul_i32 s53, s53, {(0,0,0,10)[opts["amp2"]]}
        s_add_u32 s63, s50, s51
        s_add_u32 s63, s63, s53
        s_min_u32 s63, s63, 100000
        s_add_u32 s63, s63, s{64+2*E}
L_amp:
        s_memrealtime s[50:51]
        s_waitcnt lgkmcnt(0)
        s_sub_u32 s61, s50, s63
        s_cmp_lt_i32 s61, 0
        s_cbranch_scc1 L_amp
        """)
    elif "amp" in opts:
        i = opts["amp"]
        p(f"""
        s_memrealtime s[{64+2*E}:{65+2*E}]
        s_waitcnt lgkmcnt(0)
        s_cmp_lg_u32 s2, {opts.get("ampwg", 0)}
        s_cbranch_scc1 L_end
        s_cmp_lg_u32 s62, {opts.get("ampw", 0)}
        s_cbranch_scc1 L_end
        s_sub_u32 s63, s{64+2*i}, s64
        s_mul_i32 s63, s63, 10
        s_min_u32 s63, s63, 100000
        s_add_u32 s63, s63, s{64+2*E}
L_amp:
        s_memrealtime s[50:51]
        s_waitcnt lgkmcnt(0)
        s_sub_u32 s61, s50, s63
        s_cmp_lt_i32 s61, 0
        s_cbranch_scc1 L_amp
        """)
    elif opts.get("stamps"):
        p(f"""
        s_memrealtime s[{64+2*E}:{65+2*E}]
        s_sleep 127
        s_waitcnt lgkmcnt(0)
        s_lshl_b32 s50, s2, 3
        s_add_u32 s50, s50, s62
        s_lshl_b32 s50, s50, 8
        s_add_u32 s50, s50, {STAMP_OFF}
        s_mov_b64 exec, 1
        v_mov_b32 v3, s50
        """)
        for i in ((0, E) if opts.get("light") else range(NSTAMP)):
            p(f"v_mov_b32 v4, s{64+2*i}\nv_mov_b32 v5, s{65+2*i}\nglobal_store_dwordx2 v3, v[4:5], {WS} offset:{8*i}")
    p("s_endpgm")
    al = a.L
    ia = next(i for i, l in enumerate(al) if "HEAD_END" in l)
    ip = next(i for i, l in enumerate(p.L) if "HEAD_END" in l)
    body = (c.L + p.L[:ip] + ["    s_branch L_P2", "L_A1:"] + al[:ia] + ["    s_branch L_A2", "L_P2:"] + p.L[ip+1:]
            + ["L_A2:"] + al[ia+1:] + nf.L + cold.L + ["L_end:", "    s_endpgm"])
    opts["names"] = [f"{p.names[i] if i < len(p.names) else '-'}|{a.names[i] if i < len(a.names) else '-'}" for i in range(E)] + ["end"]
    hdr = open("cdna_kernels/" + NAME + ".s.ref").read().split("; Override")[0]
    return hdr + f"""; @launch grid=(256,1,1) block=(512,1,1) lds={opts.get("lds", LDS_BYTES)}
.amdgcn_target "amdgcn-amd-amdhsa--gfx950"
.text
.globl {NAME}_kernel
.p2align 8
.type {NAME}_kernel,@function
{NAME}_kernel:
""" + "\n".join(body) + f"""
.section .rodata,"a"
.p2align 6
.amdhsa_kernel {NAME}_kernel
  .amdhsa_next_free_vgpr 224
  .amdhsa_next_free_sgpr 102
  .amdhsa_accum_offset 224
  .amdhsa_group_segment_fixed_size 0
  .amdhsa_kernarg_size 96
  .amdhsa_user_sgpr_count 2
  .amdhsa_user_sgpr_kernarg_segment_ptr 1
  .amdhsa_system_sgpr_workgroup_id_x 1
  .amdhsa_float_denorm_mode_32 3
.end_amdhsa_kernel
"""

if __name__ == "__main__":
    out = sys.argv[1]
    opts = {}
    for kv in sys.argv[2:]:
        k, v = kv.split("=")
        try: v = int(v)
        except ValueError: pass
        opts[k] = v
    open(out, "w").write(build(opts))
    if opts.get("stamps") and not opts.get("light"): print(",".join(opts["names"]))
```

```python
import sys, struct
NAME = "parallel_sum__sliding_block_cached__geglu_ffn__decode"
STAMP_OFF = 0x10000000
def f32(x): return struct.unpack("<I", struct.pack("<f", x))[0]
def hx(x): return "0x%08x" % (x & 0xffffffff)
DPP = "row_mask:0xf bank_mask:0xf"
NSTAMP = 17
HB = 0x800; QB = 0x1000; GB = 0x11000; MLB = 0x31000; YB = 0x38000; OB = 0x50000; GOFF = 0x100000
L_WQ = 0x0000; L_G = 0x4000; L_WO = 0x8000; L_XN = 0xE000; L_M = 0xE400; L_L = 0xE440; L_F = 0xE480; L_OV = 0xE540
L_QT = 0xE6C0; L_Q = 0xE800; QSTR = 272; L_O = 0x0000; OSTR = 272
F1, FG, FQ, FW, FP, FV, FD, FO, F1b, FX, FS, FY = [L_F + 16*i for i in range(12)]
LDS_BYTES = 98304
SPIN = 200000; TFALL = 256
LOG2E = 1.4426950408889634
X, K, V, WQ, WO, G, U, D, OUT, WS = "s[4:5]", "s[6:7]", "s[8:9]", "s[10:11]", "s[12:13]", "s[16:17]", "s[18:19]", "s[20:21]", "s[22:23]", "s[26:27]"
WG, PB = "s[56:57]", "s[58:59]"
MF = "v_mfma_f32_16x16x32_bf16"
TL, TG, DUM = 124, 125, 126
def R4(r): return f"v[{r}:{r+3}]"
def R2(r): return f"v[{r}:{r+1}]"
def bc(r):
    return (f"v[{r}:{r+1}]", 0) if r % 2 == 0 else (f"v[{r-1}:{r}]", 1)

class Gen:
    nsync = 0
    def __init__(self, opts):
        self.L = []; self.o = opts; self.vm = []; self.nst = 1; self.names = ["start"]
    def __call__(self, s):
        for l in s.strip("\n").split("\n"):
            l = l.strip()
            if not l: continue
            self.L.append(l if l.endswith(":") else "    " + l)
    def vmem(self, name, s):
        self(s); self.vm.append(name)
    def wait(self, name):
        idx = max(i for i, n in enumerate(self.vm) if n == name)
        self(f"s_waitcnt vmcnt({len(self.vm) - 1 - idx})")
    def lg(self, n): self(f"s_waitcnt lgkmcnt({n})")
    def stamp(self, label=""):
        if not self.o.get("stamps") or self.o.get("light"): return
        i = self.nst; self.nst += 1
        assert i < NSTAMP - 1
        self(f"s_memrealtime s[{64+2*i}:{65+2*i}]   ; stamp {i} {label}")
        self.names.append(label)
    def cnt(self, label):
        if not self.o.get("stamps") or self.o.get("light"): return
        i = self.nst; self.nst += 1
        self(f"s_sub_u32 s31, {SPIN}, s47\ns_mul_i32 s31, s31, 100\ns_add_u32 s{64+2*i}, s64, s31\ns_addc_u32 s{65+2*i}, s65, 0")
        self.names.append(label)
    def setexec(self, m32):
        self(f"s_mov_b32 exec_lo, {hx(m32)}\ns_mov_b32 exec_hi, {hx(m32)}")
    def tag(self, r, tv=TL):
        for i in range(4): self(f"v_perm_b32 v{r+i}, v{r+i}, v{tv}, s{38+i}")
    def chk(self, units, t, acc, ts="s60"):
        for n, r in enumerate(units):
            d = acc if n == 0 else (t + 2 if n % 2 == 1 and n + 1 < len(units) else t)
            self(f"v_perm_b32 v{t}, v{r+1}, v{r}, s44\nv_perm_b32 v{t+1}, v{r+3}, v{r+2}, s45")
            self(f"v_bitop3_b32 v{d}, v{t}, v{t+1}, {ts} bitop3:0x56")
            if n and n % 2 == 0: self(f"v_or3_b32 v{acc}, v{acc}, v{t}, v{t+2}")
            elif n and n + 1 == len(units): self(f"v_or_b32 v{acc}, v{acc}, v{t}")
    def toggle(self):
        self(f"s_and_b32 s31, s47, s54\ns_cselect_b64 {PB}, {WG}, {WS}\ns_cselect_b32 s60, s36, s55")
    def setflag(self, F): self(f"ds_write_b32 v42, v40 offset:{F}")
    def waitflag(self, F, reads=None, nreads=0):
        n = Gen.nsync; Gen.nsync += 1
        self(f"L_ps{n}:\nds_read_b128 v[44:47], v40 offset:{F}")
        if reads: reads()
        self(f"s_waitcnt lgkmcnt({nreads})\nv_or3_b32 v44, v44, v45, v46\nv_or_b32 v44, v44, v47\nv_cmp_ne_u32 vcc, 0, v44\ns_cbranch_vccnz L_ps{n}")
    def pkmul(self, d, s, f):
        src, h = bc(f); self(f"v_pk_mul_f32 {R2(d)}, {R2(s)}, {src} op_sel:[0,{h}] op_sel_hi:[1,{h}]")
    def pkfma(self, d, s, f):
        src, h = bc(f); self(f"v_pk_fma_f32 {R2(d)}, {R2(s)}, {src}, {R2(d)} op_sel:[0,{h},0] op_sel_hi:[1,{h},1]")

def build(opts):
    Gen.nsync = 0
    global YB
    YB = 0xD0000 + opts.get("yb", 0); PRB = 0x1C0000 + opts.get("yb", 0); VB = 0x36000
    vote = opts.get("vote", 0)
    c = Gen(opts); p = Gen(opts); a = Gen(opts); cold = Gen(opts)
    ntm = str(opts.get("nt", "kvwq"))
    if ntm == "1": ntm = "kvwqp"
    nts = lambda ch: " nt" if ch in ntm else ""
    NT = nts("w")
    pace = opts.get("pace", 8)
    def tags(g):
        g(f"""
        s_mul_i32 s36, s36, 0x9E3779B1
        s_add_u32 s36, s36, 0x7F4A7C15
        s_add_u32 s55, s55, 1
        s_mul_i32 s55, s55, 0x85EBCA6B
        s_xor_b32 s55, s55, s36
        s_mov_b32 s60, s55
        v_mov_b32 v{TL}, s55
        v_mov_b32 v{TG}, s36
        """)
    def consts(g):
        g(f"""
        s_getreg_b32 s55, hwreg(HW_REG_XCC_ID, 0, 4)
        s_add_u32 s56, s26, {GOFF}
        s_addc_u32 s57, s27, 0
        s_mov_b64 {PB}, {WS}
        s_mov_b32 s54, 0
        s_lshr_b32 s31, s29, 3
        s_lshl_b32 s52, s28, 2
        s_add_u32 s52, s52, s31                 ; 4g+hh
        s_mov_b32 s38, 0x07060500
        s_mov_b32 s39, 0x07060501
        s_mov_b32 s40, 0x07060502
        s_mov_b32 s41, 0x07060503
        s_mov_b32 s44, 0x0c0c0400
        s_mov_b32 s45, 0x04000c0c
        s_lshl_b32 s31, s3, 2
        v_mov_b32 v42, s31
        v_mov_b32 v40, 0
        s_lshl_b32 s61, s28, 13
        s_add_u32 s61, s61, {QB}
        s_and_b32 s31, s29, 3
        s_lshl_b32 s31, s31, 11
        s_add_u32 s31, s31, s61
        s_and_b32 s32, s29, 28
        s_add_u32 s32, s32, s3
        s_lshl_b32 s32, s32, 6
        s_add_u32 s31, s31, s32
        v_lshl_add_u32 v5, v10, 4, s31
        s_lshl_b32 s31, s30, 2
        s_add_u32 s31, s31, {HB}
        v_mov_b32 v38, s31
        s_lshl_b32 s31, s3, 6
        v_lshl_add_u32 v41, v10, 4, s31
        """)
    if opts.get("stamps"): c("s_memrealtime s[64:65]")
    c(f"""
    s_load_dwordx16 s[4:19], s[0:1], 0
    s_load_dwordx8 s[20:27], s[0:1], 64
    s_cmp_ge_u32 s2, 256
    s_cbranch_scc1 L_end
    """)
    if opts.get("stamps"):
        for i in range(1, NSTAMP): c(f"s_mov_b64 s[{64+2*i}:{65+2*i}], 0")
    c(f"""
    v_lshrrev_b32 v2, 6, v0
    v_and_b32 v1, 63, v0
    v_readfirstlane_b32 s62, v2
    s_and_b32 s28, s2, 7
    s_lshr_b32 s29, s2, 3
    {"s_xor_b32 s29, s29, %d" % opts["jx"] if opts.get("jx") else ""}
    s_lshl_b32 s30, s28, 5
    s_add_u32 s30, s30, s29                 ; p
    v_lshlrev_b32 v2, 4, v1                 ; lane*16
    v_lshrrev_b32 v12, 3, v1                ; lane>>3
    v_and_b32 v13, 0x70, v2                 ; (lane&7)*16
    v_and_b32 v9, 15, v1
    v_lshrrev_b32 v10, 4, v1
    s_and_b32 s3, s62, 3
    s_cmp_ge_u32 s62, 4
    s_cbranch_scc1 L_A1
    """)
    KR, VR, VT = 128, 160, 192
    QO, S, PM, DD = 48, 64, 72, 88
    ONE, LD, MK = 96, 100, 104
    order = opts.get("ord", "i.q.t.w.j").split(".")
    width = {"i":2, "q":2, "t":1, "w":2, "j":5, "jl":3, "jh":2}
    sh = {}; b_ = 8
    for f_ in order: sh[f_] = b_; b_ += width[f_]
    assert b_ == 20
    KMAP = f"s_lshl_b32 s31, s3, {sh['w']}\n"
    if "j" in sh: KMAP += f"s_lshl_b32 s32, s29, {sh['j']}\ns_add_u32 s31, s31, s32\n"
    else: KMAP += f"s_and_b32 s32, s29, 7\ns_lshl_b32 s32, s32, {sh['jl']}\ns_add_u32 s31, s31, s32\ns_lshr_b32 s32, s29, 3\ns_lshl_b32 s32, s32, {sh['jh']}\ns_add_u32 s31, s31, s32\n"
    opts.setdefault("xm", 7)
    if opts.get("xm"): KMAP += f"s_xor_b32 s33, s29, s28\ns_and_b32 s33, s33, {opts['xm']}\ns_lshl_b32 s33, s33, {sh['t']}\ns_xor_b32 s31, s31, s33\n"
    KMAP += f'''s_lshl_b32 s32, s28, 24
    s_add_u32 s31, s31, s32
    s_add_u32 s31, s31, {61440*256}
    v_and_b32 v7, 3, v9
    v_lshlrev_b32 v7, {sh["i"]}, v7
    v_lshrrev_b32 v8, 2, v9
    v_lshl_add_u32 v7, v8, {sh["q"]}, v7
    v_lshl_add_u32 v7, v10, 4, v7
    v_add_u32 v7, s31, v7
    v_xor_b32 v26, {1 << sh["t"]}, v7
    v_lshlrev_b32 v8, {sh["q"]}, v10
    v_lshl_add_u32 v8, v9, 4, v8
    v_add_u32 v8, s31, v8                   ; V voff'''
    a(f"""
    s_getpc_b64 s[34:35]
L_pc:
    s_lshl_b32 s31, s29, 2
    s_add_u32 s31, s31, s3
    s_lshl_b32 s31, s31, 7
    s_min_u32 s31, s31, L_end-L_pc
    v_mov_b32 v14, s31
    s_mov_b64 exec, 1
    global_load_dword v{DUM}, v14, s[34:35]
    s_mov_b64 exec, -1
    v_lshlrev_b32 v14, 2, v1
    v_mov_b32 v15, -1
    ds_write_b32 v14, v15 offset:{L_M}
    ds_write_b32 v14, v15 offset:{L_M+64}
    {KMAP}
    s_setprio 1
    s_waitcnt lgkmcnt(0)
    """)
    a.stamp("karg")
    a(f"s_load_dword s36, {WS}, 0")
    a("s_barrier")
    if opts.get("headk", 1) == 0: a("; HEAD_END")
    consts(a)
    a(f"""
    s_lshl_b32 s31, s3, 9
    s_add_u32 s31, s31, s61
    s_add_u32 s31, s31, 4096
    v_and_b32 v14, 0x1f0, v2
    v_lshrrev_b32 v6, 5, v1
    v_lshl_add_u32 v6, v6, 11, v14
    v_add_u32 v6, s31, v6
    s_lshl_b32 s31, s28, 7
    s_add_u32 s31, s31, {HB}
    v_lshrrev_b32 v14, 2, v14
    v_add_u32 v39, s31, v14
    """)
    if opts.get("kdelay", 0): a(f"s_sleep {opts.get('kdelay', 0)}")
    if opts.get("alt", 0): seq = "K00 K01 V4 V5 K02 K03 V6 V7 K10 K11 V0 V1 K12 K13 V2 V3".split()
    else: seq = "K00 K01 K02 K03 K10 K11 K12 K13 V0 V1 V2 V3 V4 V5 V6 V7".split()
    def kv(nm):
        if nm[0] == "K":
            t, s = int(nm[1]), int(nm[2])
            if opts.get("klin"):
                a(f"v_xor_b32 v27, {hx((t << sh['t']) + (s << sh['i']))}, v8")
                a.vmem(nm, f"global_load_dwordx4 {R4(KR+16*t+4*s)}, v27, {K}{nts('k')}")
            else: a.vmem(nm, f"global_load_dwordx4 {R4(KR+16*t+4*s)}, v{(7,26)[t]}, {K} offset:{64*s}{nts('k')}")
        else:
            t = int(nm[1])
            off = ((t >> 2) << sh["t"]) + ((t & 3) << sh["i"])
            if t: a(f"v_xor_b32 v27, {hx(off)}, v8")
            a.vmem(nm, f"global_load_dwordx4 {R4(VR+4*t)}, v{27 if t else 8}, {V}{nts('v')}")
    n0 = opts.get('n0', 6)
    for nm in seq[:n0]: kv(nm)
    a.stamp("K_iss")
    if opts.get("headk", 1): a("; HEAD_END")
    def prep():
        for r in range(ONE, ONE+4): a(f"v_mov_b32 v{r}, 0x3f803f80")
        a("v_bfe_u32 v14, v1, 2, 2")
        for e in range(4): a(f"v_cmp_eq_u32 s[50:51], {e}, v14\ns_nop 1\nv_cndmask_b32 v{MK+e}, 0, -1, s[50:51]")
        a(f"""
        s_mov_b32 s42, 0x05040100
        s_mov_b32 s43, 0x07060302
        s_mul_i32 s31, s3, {QSTR}
        s_add_u32 s31, s31, {L_Q}
        v_and_b32 v24, 31, v1
        v_lshl_add_u32 v24, v24, 3, s31
        v_lshrrev_b32 v14, 5, v1
        v_lshl_add_u32 v24, v14, 2, v24
        v_and_b32 v17, 3, v1
        v_mul_u32_u24 v17, {QSTR}, v17
        v_lshl_add_u32 v14, v10, 4, v17
        s_mov_b32 s48, {hx(f32(128**-0.5))}
        s_mov_b32 s49, {hx(f32(LOG2E))}
        s_mul_i32 s31, s3, {8*OSTR}
        v_mul_u32_u24 v15, {OSTR}, v10
        v_lshl_add_u32 v15, v9, 4, v15
        v_add_u32 v15, s31, v15
        v_add_u32 v16, v42, v2
        v_and_b32 v18, 12, v1
        v_add_u32 v18, v18, v10
        v_lshl_add_u32 v17, v18, 4, v17
        s_mul_i32 s31, s3, {4*OSTR}
        v_add_u32 v17, s31, v17
        v_lshlrev_b32 v18, 4, v10
        s_lshl_b32 s31, s30, 3
        s_add_u32 s31, s31, s3
        s_lshl_b32 s31, s31, 8
        s_add_u32 s31, s31, {OB}
        v_lshlrev_b32 v19, 9, v10
        v_lshl_add_u32 v19, v9, 4, v19
        v_add_u32 v19, s31, v19                  ; O voff
        s_lshl_b32 s31, s28, 10
        s_lshl_b32 s32, s29, 3
        s_add_u32 s31, s31, s32
        s_add_u32 s31, s31, {MLB}
        v_lshl_add_u32 v20, v10, 8, s31
        s_lshl_b32 s31, s28, 16
        s_and_b32 s32, s29, 24
        s_lshl_b32 s32, s32, 6
        s_add_u32 s31, s31, s32
        s_lshl_b32 s32, s3, 7
        s_add_u32 s31, s31, s32
        s_add_u32 s31, s31, {OB+4096}
        v_lshl_add_u32 v43, v12, 13, v13
        v_add_u32 v43, s31, v43
        s_lshl_b32 s31, s52, 8
        s_add_u32 s31, s31, {MLB}
        v_lshl_add_u32 v21, v12, 5, s31
        v_and_b32 v22, 3, v1
        v_lshlrev_b32 v22, 6, v22
        v_lshl_add_u32 v22, v10, 4, v22
        v_bfe_u32 v23, v1, 2, 1
        v_lshl_add_u32 v22, v23, 1, v22
        v_add_u32 v22, v42, v22
        s_mov_b32 s47, {SPIN}
        s_waitcnt lgkmcnt(0)
        """)
        tags(a)
    assert QSTR == OSTR
    prep()
    if vote:
        a(f"""
        s_lshl_b32 s31, s30, 2
        s_add_u32 s31, s31, s3
        s_and_b32 s32, s31, 63
        s_lshl_b32 s32, s32, 7
        s_lshr_b32 s33, s31, 6
        s_lshl_b32 s33, s33, 14
        s_add_u32 s32, s32, s33
        s_add_u32 s32, s32, {PRB}
        s_and_b32 s33, s3, 1
        s_lshl_b32 s46, s33, 13
        s_xor_b32 s32, s32, s46
        s_xor_b32 s46, s32, 8192
        s_memtime s[50:51]
        s_load_dword s53, {WS}, s32
        s_waitcnt lgkmcnt(0)
        s_memtime s[14:15]
        s_load_dword s53, {WS}, s46
        s_waitcnt lgkmcnt(0)
        s_memtime s[24:25]
        s_lshl_b32 s31, s31, 2
        s_add_u32 s31, s31, {VB}
        v_mov_b32 v25, s31
        s_waitcnt lgkmcnt(0)
        s_sub_u32 s50, s14, s50
        s_sub_u32 s51, s24, s14
        s_cmp_gt_u32 s50, s51
        s_cselect_b32 s50, 1, 0
        s_xor_b32 s50, s50, s33
        s_xor_b32 s50, s50, s55
        v_mov_b32 v37, s50
        s_mov_b64 exec, 1
        """)
        a.vmem("vote", f"global_store_dword v25, v37, {WS}")
        a("s_mov_b64 exec, -1")
    def pollq(g, r=28):
        g(f"global_load_dwordx4 {R4(r)}, v6, {PB} offset:-4096 sc1\nglobal_load_dwordx4 {R4(r+4)}, v6, {PB} sc1\nglobal_load_dword v{r+8}, v39, {PB} sc1")
    if n0 < 8:
        a.waitflag(FP)
        for nm in seq[n0:8]: kv(nm)
    pq_at = opts.get("pq_at", 4)
    def dopoll():
        a.setflag(FV)
        a.waitflag(FV)
        pollq(a); a.vm += ["pq0", "pq1", "pq"]
        a.stamp("pq_iss")
    a("s_mov_b64 vcc, -1")
    for t in range(8):
        if opts.get("gate", 0) == t: a.waitflag(FP)
        if 8 + t >= pace and opts.get("gate", 0) < 0:
            a(f"""
            s_cbranch_vccz L_pa{t}
            s_waitcnt vmcnt({pace-1})
            ds_read_b128 v[44:47], v40 offset:{FP}
            s_waitcnt lgkmcnt(0)
            v_or3_b32 v44, v44, v45, v46
            v_or_b32 v44, v44, v47
            v_cmp_ne_u32 vcc, 0, v44
L_pa{t}:
            """)
        if t == pq_at: dopoll()
        kv(seq[8+t])
    a.stamp("V_iss")
    if opts.get("so"):
        a.setflag(FV); a.setflag(FW)
        a("s_waitcnt vmcnt(0)")
        a.setflag(FQ)
        a("s_branch L_fin")
    if pq_at == 8: dopoll()
    pq2 = opts.get("pq2", 2)
    if pq2:
        if pq2 == 2:
            a.setflag(F1b); a.waitflag(F1b)
        pollq(a, 112); a.vm += ["pr0", "pr1", "pr"]
    a.setflag(FW)
    def vperm(tp):
        a.wait(f"V{2*tp+1}")
        for d in range(4):
            lo = VR + 8*tp + d; hi = lo + 4
            a(f"v_perm_b32 v{VT+4*(2*d)+tp}, v{hi}, v{lo}, s42")
            a(f"v_perm_b32 v{VT+4*(2*d+1)+tp}, v{hi}, v{lo}, s43")
    npre = pq_at // 2
    for tp in range(npre): vperm(tp)
    a.wait("pq")
    a.stamp("pq_ret")
    a("L_pq:")
    a.chk([28, 32], 25, 37)
    a(f"""
    v_xor_b32 v25, s60, v36
    v_or_b32 v37, v37, v25
    v_cmp_ne_u32 vcc, 0, v37
    s_cbranch_vccnz L_pq_retry
L_pq_ok:
    s_mov_b64 exec, -1
    v_pk_add_f32 v[28:29], v[28:29], v[32:33]
    v_pk_add_f32 v[30:31], v[30:31], v[34:35]
    s_nop 1
    v_permlane32_swap_b32 v28, v30
    v_permlane32_swap_b32 v29, v31
    v_pk_add_f32 v[28:29], v[28:29], v[30:31]
    v_cvt_pk_bf16_f32 v28, v28, v29
    ds_write_b32 v24, v28
    """)
    a.setflag(FQ)
    cold("L_pq_retry:\ns_sub_u32 s47, s47, 1\ns_cbranch_scc1 L_pq_ok")
    if pq2:
        cold(f"s_cmp_lg_u32 s47, {SPIN-1}\ns_cbranch_scc1 L_pq_r2\ns_waitcnt vmcnt(0)")
        for i in range(9): cold(f"v_mov_b32 v{28+i}, v{112+i}")
        cold("s_branch L_pq\nL_pq_r2:")
    cold(f"""
    s_cmp_lg_u32 s47, {SPIN-TFALL}
    s_cbranch_scc1 L_pq_nf
    s_mov_b32 s54, 1
    s_mov_b64 exec, -1
    s_mov_b64 s[50:51], vcc
    """)
    cold.waitflag(FP, lambda: cold(f"ds_read_b128 {R4(S)}, v41 offset:{L_QT}"), 0)
    cold("s_mov_b64 vcc, s[50:51]")
    cold.setexec(0x00010001)
    cold.tag(S, TG)
    cold(f"""
    global_store_dword v38, v{TG}, {WG} sc1
    global_store_dwordx4 v5, {R4(S)}, {WG} sc1
L_pq_nf:
    s_mov_b64 exec, vcc
    """)
    cold.toggle(); pollq(cold)
    cold("s_waitcnt vmcnt(0)\ns_branch L_pq")
    a.cnt("#pq")
    def qreads():
        for s in range(4): a(f"ds_read_b128 {R4(QO+4*s)}, v14 offset:{L_Q+64*s}")
    a.waitflag(FQ, qreads, 4)
    a.stamp("q_ok")
    for s in range(4):
        a.lg(3-s)
        for t in range(2):
            a(f"{MF} {R4(S+4*t)}, {R4(KR+16*t+4*s)}, {R4(QO+4*s)}, {'0' if s==0 else R4(S+4*t)}")
    a(f"s_mov_b32 s47, {SPIN}\ns_nop 5")
    for i in range(8): a(f"v_cvt_pk_bf16_f32 v{S+i}, 0, v{S+i}")
    for i in range(0, 8, 2): a(f"v_pk_mul_f32 {R2(S+i)}, {R2(S+i)}, s[48:49] op_sel_hi:[1,0]")
    for i in range(8): a(f"v_cvt_pk_bf16_f32 v{S+i}, 0, v{S+i}")
    a(f"""
    v_max3_f32 v108, v{S}, v{S+1}, v{S+2}
    v_max3_f32 v109, v{S+3}, v{S+4}, v{S+5}
    v_max3_f32 v108, v108, v{S+6}, v{S+7}
    v_max_f32 v108, v108, v109
    """)
    for sw in (16, 32):
        a(f"v_mov_b32 v109, v108\ns_nop 1\nv_permlane{sw}_swap_b32 v108, v109\nv_max_f32 v108, v108, v109")
    a("v_mul_f32 v108, s49, v108")
    for i in range(0, 8, 2):
        a(f"v_pk_fma_f32 {R2(S+i)}, {R2(S+i)}, s[48:49], v[108:109] op_sel:[0,1,0] op_sel_hi:[1,1,0] neg_lo:[0,0,1] neg_hi:[0,0,1]")
    for i in range(8): a(f"v_exp_f32 v{S+i}, v{S+i}")
    a("v_min_u32 v108, -2, v108")
    for i in range(4): a(f"v_cvt_pk_bf16_f32 v{S+i}, v{S+2*i}, v{S+2*i+1}")
    def msk(e):
        for i in range(4): a(f"v_and_b32 v{PM+4*e+i}, v{S+i}, v{MK+e}")
    def pv(e):
        for hf in range(2):
            a(f"{MF} {R4(DD+4*hf)}, {R4(VT+4*(4*hf+e))}, {R4(PM+4*e)}, {'0' if e==0 else R4(DD+4*hf)}")
    msk(0)
    a(f"{MF} {R4(LD)}, {R4(ONE)}, {R4(S)}, 0")
    if npre == 4:
        msk(1); a.stamp("V"); pv(0); msk(2); pv(1); msk(3); pv(2); pv(3)
    else:
        msk(1); msk(2); msk(3)
        for tp in range(npre, 4): vperm(tp)
        a.stamp("V")
        a("s_nop 1")
        for e in range(4): pv(e)
    a(f"""
    s_mov_b64 exec, 0xf
    ds_write_b32 v16, v{LD} offset:{L_L}
    s_mov_b64 exec, -1
    s_nop 3
    ds_write_b128 v15, {R4(DD)} offset:{L_O}
    ds_write_b128 v15, {R4(DD+4)} offset:{L_O+4*OSTR}
    s_mov_b64 exec, 0xf
    ds_write_b32 v16, v108 offset:{L_M}
    s_mov_b64 exec, -1
    """)
    a.stamp("PV")
    a(f"""
    s_cmp_ge_u32 s3, 2
    s_cbranch_scc1 L_nocomb
L_cmb:
    ds_read_b128 {R4(S)}, v18 offset:{L_M}
    ds_read_b128 {R4(S+4)}, v18 offset:{L_L}
    """)
    for w in range(4):
        a(f"ds_read_b128 {R4(PM+4*w)}, v17 offset:{L_O+8*OSTR*w}")
    a.lg(5)
    a(f"""
    v_max3_u32 v110, v{S}, v{S+1}, v{S+2}
    v_max3_f32 v108, v{S}, v{S+1}, v{S+2}
    v_max_u32 v110, v110, v{S+3}
    v_max_f32 v108, v108, v{S+3}
    v_cmp_eq_u32 vcc, -1, v110
    s_cbranch_vccnz L_cmb
    v_pk_add_f32 {R2(S)}, {R2(S)}, v[108:109] op_sel_hi:[1,0] neg_lo:[0,1] neg_hi:[0,1]
    v_pk_add_f32 {R2(S+2)}, {R2(S+2)}, v[108:109] op_sel_hi:[1,0] neg_lo:[0,1] neg_hi:[0,1]
    """)
    for w in range(4): a(f"v_exp_f32 v{S+w}, v{S+w}")
    a.lg(4)
    a(f"""
    v_pk_mul_f32 {R2(S+4)}, {R2(S)}, {R2(S+4)}
    v_pk_fma_f32 {R2(S+4)}, {R2(S+2)}, {R2(S+6)}, {R2(S+4)}
    v_add_f32 v110, v{S+4}, v{S+5}
    v_rcp_f32 v111, v110
    v_log_f32 v110, v110
    s_waitcnt lgkmcnt(0)
    """)
    a.pkmul(DD, PM, S); a.pkmul(DD+2, PM+2, S)
    a(f"v_add_f32 v108, v108, v110\nv_mov_b32 v109, v{TL}")
    for w in range(1, 4):
        a.pkfma(DD, PM+4*w, S+w); a.pkfma(DD+2, PM+4*w+2, S+w)
    a.pkmul(DD, DD, 111); a.pkmul(DD+2, DD+2, 111)
    a.tag(DD)
    a(f"global_store_dwordx4 v19, {R4(DD)}, {WS}")
    a.setexec(0x00010001)
    a(f"""
    global_store_dwordx2 v20, v[108:109], {WS}
    s_mov_b64 exec, -1
    s_cmp_lg_u32 s54, 0
    s_cbranch_scc1 L_fbO
L_nocomb:
    """)
    cold("L_fbO:")
    cold.tag(DD, TG)
    cold(f"v_mov_b32 v109, v{TG}\nglobal_store_dwordx4 v19, {R4(DD)}, {WG} sc1")
    cold.setexec(0x00010001)
    cold(f"global_store_dwordx2 v20, v[108:109], {WG} sc1\ns_mov_b64 exec, -1\ns_branch L_nocomb")
    a.setflag(FS)
    a.stamp("pubO")
    if opts.get("fx", 1): a.waitflag(FX)
    a.stamp("FX")
    LS, OD = 48, 56
    def odata(g):
        for k in range(4): g(f"global_load_dwordx4 {R4(OD+4*k)}, v43, {PB} offset:{2048*k-4096} sc1")
    if not opts.get("spec", 1): a("s_mov_b64 vcc, -1\ns_branch L_po_retry")
    a("L_po:")
    for k in range(2): a(f"global_load_dwordx4 {R4(LS+4*k)}, v21, {PB} offset:{16*k} sc1")
    odata(a)
    if opts.get("fw") == "pre": a.setflag(FY)
    a(f"""
    s_mov_b64 exec, -1
    s_waitcnt vmcnt(4)
    v_xor_b32 v76, s60, v{LS+1}
    v_xor_b32 v77, s60, v{LS+3}
    v_xor_b32 v78, s60, v{LS+5}
    v_or3_b32 v76, v76, v77, v78
    v_xor_b32 v77, s60, v{LS+7}
    v_or_b32 v76, v76, v77
    v_cmp_ne_u32 vcc, 0, v76
    s_cbranch_vccnz L_po_retry
L_po_ok:
    v_max3_f32 v76, v{LS}, v{LS+2}, v{LS+4}
    v_max_f32 v76, v76, v{LS+6}
    s_nop 1
    v_max_f32_dpp v76, v76, v76 row_ror:8 {DPP}
    v_mov_b32 v77, v76
    s_nop 1
    v_permlane16_swap_b32 v76, v77
    v_max_f32 v76, v76, v77
    v_mov_b32 v77, v76
    s_nop 1
    v_permlane32_swap_b32 v76, v77
    v_max_f32 v76, v76, v77
    v_sub_f32 v80, v{LS}, v76
    v_sub_f32 v81, v{LS+2}, v76
    v_sub_f32 v82, v{LS+4}, v76
    v_sub_f32 v83, v{LS+6}, v76
    v_exp_f32 v80, v80
    v_exp_f32 v81, v81
    v_exp_f32 v82, v82
    v_exp_f32 v83, v83
    s_nop 0
    v_pk_add_f32 v[84:85], v[80:81], v[82:83]
    v_add_f32 v84, v84, v85
    v_mov_b32 v85, v84
    s_nop 1
    v_permlane32_swap_b32 v84, v85
    v_add_f32 v84, v84, v85
    v_mov_b32 v85, v84
    s_nop 1
    v_permlane16_swap_b32 v84, v85
    v_add_f32 v84, v84, v85
L_pd:
    s_waitcnt vmcnt(0)
    """)
    a.chk([OD, OD+4, OD+8, OD+12], 76, 79)
    a(f"""
    v_cmp_ne_u32 vcc, 0, v79
    s_cbranch_vccnz L_pd_retry
L_pd_ok:
    """)
    a.stamp("O_ok")
    cold(f"""
L_po_retry:
    s_sub_u32 s47, s47, 1
    s_cbranch_scc1 L_po_giveup
    s_cmp_lg_u32 s54, 0
    s_cbranch_scc1 L_po_fb
    s_mov_b64 exec, vcc
    {"s_sleep %d" % opts["oslp"] if opts.get("oslp") else ""}
    """)
    for k in range(2): cold(f"global_load_dwordx4 {R4(LS+4*k)}, v21, {PB} offset:{16*k} sc1")
    cold(f"""
    s_waitcnt vmcnt(0)
    v_xor_b32 v76, s60, v{LS+1}
    v_xor_b32 v77, s60, v{LS+3}
    v_xor_b32 v78, s60, v{LS+5}
    v_or3_b32 v76, v76, v77, v78
    v_xor_b32 v77, s60, v{LS+7}
    v_or_b32 v76, v76, v77
    v_cmp_ne_u32 vcc, 0, v76
    s_andn2_b64 exec, exec, vcc
    s_cbranch_execz L_po_retry
    """)
    odata(cold)
    cold(f"""
    s_cbranch_vccnz L_po_retry
L_po_giveup:
    s_mov_b64 exec, -1
    s_branch L_po_ok
L_po_fb:
    """)
    cold.toggle()
    cold(f"""
    s_branch L_po
L_pd_retry:
    s_sub_u32 s47, s47, 1
    s_cbranch_scc1 L_pd_ok
    s_mov_b64 exec, vcc
    """)
    odata(cold)
    cold("s_mov_b64 exec, -1\ns_branch L_pd")
    a(f"v_add_f32_dpp v84, v84, v84 row_ror:8 {DPP}")
    a.pkmul(OD, OD, 80); a.pkmul(OD+2, OD+2, 80)
    a("v_rcp_f32 v84, v84")
    for k in range(1, 4):
        a.pkfma(OD, OD+4*k, 80+k); a.pkfma(OD+2, OD+4*k+2, 80+k)
    a(f"""
    s_nop 1
    v_permlane32_swap_b32 v{OD}, v{OD+2}
    v_permlane32_swap_b32 v{OD+1}, v{OD+3}
    v_pk_add_f32 {R2(OD)}, {R2(OD)}, {R2(OD+2)}
    s_nop 1
    v_permlane16_swap_b32 v{OD}, v{OD+1}
    v_add_f32 v{OD}, v{OD}, v{OD+1}
    s_nop 1
    v_add_f32_dpp v{OD}, v{OD}, v{OD} row_ror:8 {DPP}
    v_mul_f32 v{OD}, v{OD}, v84
    v_cvt_pk_bf16_f32 v{OD}, v{OD}, v{OD}
    ds_write_b16 v22, v{OD} offset:{L_OV}
    """)
    a.setflag(FO)
    a.stamp("o_wr")
    a.cnt("#po")
    a("s_branch L_fin" if opts.get("stamps") else "s_endpgm")

    TR, QD = 64, 88
    p(f"""
    s_and_b32 s31, s29, 3
    s_lshl_b32 s31, s31, 2
    s_add_u32 s31, s31, s3
    s_lshl_b32 s31, s31, 18
    s_lshr_b32 s32, s30, 2
    s_lshl_b32 s32, s32, 7
    s_add_u32 s31, s31, s32
    v_and_b32 v43, 16, v1
    v_lshlrev_b32 v43, 1, v43
    v_xor_b32 v43, v43, v13
    v_lshl_add_u32 v3, v12, 13, v43
    v_add_u32 v3, s31, v3
    v_xor_b32 v4, 0x10040, v3
    v_add_u32 v7, 0x20000, v3
    v_xor_b32 v6, 0x30040, v3
    {"s_lshl_b32 s31, s30, 2" + chr(10) + "s_add_u32 s31, s31, s3" + chr(10) + "s_lshl_b32 s31, s31, 12" + chr(10) + "v_add_u32 v3, s31, v2" + chr(10) + "v_add_u32 v4, 1024, v3" + chr(10) + "v_add_u32 v7, 2048, v3" + chr(10) + "v_add_u32 v6, 3072, v3" if "q" in str(opts.get("wlin", "")) else ""}
    s_lshl_b32 m0, s3, 12
    s_setprio 2
    s_waitcnt lgkmcnt(0)
    """)
    p.stamp("karg")
    p.vmem("x", f"global_load_dwordx4 v[16:19], v2, {X}")
    for i in range(4):
        p.vmem(f"wq{i}", f"global_load_lds_dwordx4 v{(3,4,7,6)[i]}, {WQ}{nts('q')}")
        if i < 3: p("s_add_u32 m0, m0, 1024\ns_nop 0")
    p(f"s_load_dword s36, {WS}, 0")
    p("s_barrier")
    p("; HEAD_END")
    consts(p)
    p(f"""
    s_and_b32 s33, s29, 7
    s_lshl_b32 s31, s33, {3 if vote else 2}
    s_add_u32 s31, s31, s3
    s_lshl_b32 s31, s31, 11
    s_lshl_b32 s32, s52, 6
    s_add_u32 s31, s31, s32
    s_add_u32 s31, s31, {YB}
    v_lshl_add_u32 v39, v10, 4, s31         ; Y voff
    {"v_and_b32 v44, 1, v1" if vote else ""}
    {"v_lshl_add_u32 v39, v44, 13, v39" if vote else ""}
    s_lshl_b32 s31, s30, 11
    s_add_u32 s31, s31, {OB}
    s_mov_b32 s32, {0 if opts.get("pre", 1) == 2 else 15}
    s_lshl_b32 s48, s30, 9
    s_add_u32 s48, s48, {GB}
    s_cmp_eq_u32 s3, 1
    s_cselect_b32 s31, s48, s31
    s_cselect_b32 s32, 3, s32
    s_lshl_b32 s48, s30, 8
    s_add_u32 s48, s48, {QB}
    s_cmp_eq_u32 s3, 2
    s_cselect_b32 s31, s48, s31
    s_cselect_b32 s32, 1, s32
    s_lshl_b32 s48, s30, 5
    s_add_u32 s48, s48, {MLB}
    s_cmp_eq_u32 s3, 3
    s_cselect_b32 s31, s48, s31
    s_cselect_b32 s32, 0, s32
    v_and_b32 v44, s32, v1
    v_lshl_add_u32 v44, v44, 7, s31
    v_cmp_gt_u32 vcc, 16, v1
    v_cmp_gt_u32 s[50:51], 32, v1
    s_nop 0
    v_cndmask_b32 v44, v38, v44, vcc
    v_cndmask_b32 v44, v39, v44, s[50:51]
    """)
    if opts.get("pre", 1): p.vmem("pre", f"global_load_dword v{DUM}, v44, {WS}{nts('p')}")
    p(f"""
    s_and_b32 s53, s29, 24
    s_add_u32 s53, s53, s28
    s_lshl_b32 s32, s33, 2
    s_add_u32 s32, s32, s3
    s_mul_i32 s32, s32, {16*3584}
    s_lshl_b32 s31, s53, 7
    s_add_u32 s32, s32, s31
    v_mul_u32_u24 v11, 3584, v12
    v_add3_u32 v11, v11, v43, s32
    v_add_u32 v14, {8*3584}, v11
    v_xor_b32 v14, 64, v14
    v_lshl_add_u32 v37, v12, 10, v43
    s_lshl_b32 s31, s52, 2
    s_add_u32 s31, s31, s3
    s_lshl_b32 s31, s31, 15
    s_lshl_b32 s32, s33, 7
    s_add_u32 s31, s31, s32
    v_add_u32 v36, s31, v37
    s_lshl_b32 s31, s53, 2
    s_add_u32 s31, s31, s3
    s_lshl_b32 s31, s31, 14
    s_add_u32 s31, s31, s32
    v_add_u32 v37, s31, v37
    v_bfe_u32 v3, v1, 2, 2
    v_lshl_add_u32 v3, v10, 3, v3
    v_lshlrev_b32 v3, 7, v3
    v_and_b32 v4, 3, v1
    v_lshl_add_u32 v3, v4, 3, v3
    s_lshl_b32 s31, s3, 5
    v_add_u32 v3, s31, v3
    v_bfe_u32 v4, v1, 3, 2
    v_lshlrev_b32 v4, 5, v4
    v_xor_b32 v3, v3, v4
    s_and_b32 s31, s29, 3
    s_lshl_b32 s31, s31, 8
    v_lshl_add_u32 v4, v10, 4, s31
    s_lshl_b32 s31, s33, 7
    v_lshl_add_u32 v6, v10, 4, s31
    s_lshl_b32 s49, s3, 11
    """)
    wl = str(opts.get("wlin", ""))
    if "g" in wl: p("s_lshl_b32 s31, s30, 2\ns_add_u32 s31, s31, s3\ns_mul_i32 s31, s31, 1792\nv_add_u32 v11, s31, v2\nv_add_u32 v14, 768, v11")
    if "o" in wl: p("s_lshl_b32 s31, s30, 14\ns_lshl_b32 s32, s3, 10\ns_add_u32 s31, s31, s32\ns_and_b32 s32, s30, 1\ns_lshl_b32 s32, s32, 12\ns_and_b32 s31, s31, 0xffff8fff\ns_add_u32 s31, s31, s32\nv_add_u32 v36, s31, v2")
    early = opts.get("early", 0)
    def gu_issue():
        for i in range(2):
            for m, (nm, P) in enumerate((("g", G), ("u", U))):
                p(f"s_add_u32 m0, s49, {L_G + 1024*i + 8192*m}\ns_nop 0")
                p.vmem(f"{nm}{i}", f"global_load_lds_dwordx4 v{11 if i==0 else 14}, {P}{NT}")
    def wd_issue():
        for n in range(2):
            p(f"s_add_u32 m0, s49, {L_WO + 16384 + 1024*n}\ns_nop 0")
            p.vmem(f"w{4+n}", f"global_load_lds_dwordx4 v37, {D}{NT}")
            if n == 0: p("v_xor_b32 v37, 0x2040, v37")
    if early >= 1:
        p("s_cmp_ge_u32 s53, 28\ns_cselect_b64 exec, 1, -1\ns_cbranch_scc0 L_ef\nv_mov_b32 v11, 0\nv_mov_b32 v14, 0\nv_mov_b32 v37, 0\nL_ef:")
        gu_issue()
        if early >= 2: wd_issue()
        p("s_mov_b64 exec, -1")
    p.wait("x")
    p.stamp("x")
    xs = list(range(20, 28))
    for i in range(4):
        p(f"v_lshlrev_b32 v{xs[2*i]}, 16, v{16+i}\nv_and_b32 v{xs[2*i+1]}, 0xffff0000, v{16+i}")
    p("v_readfirstlane_b32 s50, v20\ns_nop 1")
    for i in range(4):
        p(f"v_pk_add_f32 {R2(48+2*i)}, {R2(20+2*i)}, s[50:51] op_sel_hi:[1,0] neg_lo:[0,1] neg_hi:[0,1]")
    p(f"""
    v_pk_mul_f32 v[30:31], v[48:49], v[48:49]
    v_pk_add_f32 v[28:29], v[48:49], v[50:51]
    v_pk_fma_f32 v[30:31], v[50:51], v[50:51], v[30:31]
    v_pk_add_f32 v[28:29], v[28:29], v[52:53]
    v_pk_fma_f32 v[30:31], v[52:53], v[52:53], v[30:31]
    v_pk_add_f32 v[28:29], v[28:29], v[54:55]
    v_pk_fma_f32 v[30:31], v[54:55], v[54:55], v[30:31]
    v_add_f32 v28, v28, v29
    v_add_f32 v29, v30, v31
    s_nop 0
    """)
    for r in (1, 2, 4, 8):
        p(f"v_add_f32_dpp v28, v28, v28 row_ror:{r} {DPP}\nv_add_f32_dpp v29, v29, v29 row_ror:{r} {DPP}\ns_nop 0")
    p(f"""
    s_nop 0
    v_permlane32_swap_b32 v28, v29
    v_add_f32 v28, v28, v29
    v_mov_b32 v29, v28
    s_nop 1
    v_permlane16_swap_b32 v28, v29
    v_add_f32 v28, v28, v29
    v_mul_f32 v28, {hx(f32(1/512))}, v28
    s_nop 0
    v_readlane_b32 s32, v28, 0
    v_readlane_b32 s48, v28, 32
    s_nop 0
    v_mov_b32 v28, s32
    v_fma_f32 v29, -v28, v28, s48
    v_add_f32 v28, s50, v28
    v_max_f32 v29, 0, v29
    v_cvt_pk_bf16_f32 v28, 0, v28
    v_cvt_pk_bf16_f32 v29, 0, v29
    v_add_f32 v29, {hx(f32(1e-5))}, v29
    v_cvt_pk_bf16_f32 v29, 0, v29
    v_sqrt_f32 v31, v29
    """)
    for i in range(4):
        p(f"v_pk_add_f32 {R2(20+2*i)}, {R2(20+2*i)}, v[28:29] op_sel_hi:[1,0] neg_lo:[0,1] neg_hi:[0,1]")
    p("v_cvt_pk_bf16_f32 v29, 0, v31\nv_rcp_f32 v30, v29")
    for i in range(8): p(f"v_cvt_pk_bf16_f32 v{xs[i]}, 0, v{xs[i]}")
    for i in range(4): p.pkmul(20+2*i, 20+2*i, 30)
    for i in range(4):
        p(f"v_cvt_pk_bf16_f32 v{16+i}, v{xs[2*i]}, v{xs[2*i+1]}")
    p(f"ds_write_b128 v2, v[16:19] offset:{L_XN}")
    for i in range(4):
        p(f"ds_read_b128 {R4(20+4*i)}, v4 offset:{L_XN+64*i}")
    p(f"ds_read_b128 v[48:51], v6 offset:{L_XN}\nds_read_b128 v[52:55], v6 offset:{L_XN+64}")
    p.stamp("ln")
    p.wait("wq3")
    p.setflag(F1)
    p("s_waitcnt lgkmcnt(0)")
    tags(p)
    def trr(n, base):
        for s in range(n):
            p(f"ds_read_b64_tr_b16 v[{TR+4*s}:{TR+4*s+1}], v3 offset:{base+4096*s}")
            p(f"ds_read_b64_tr_b16 v[{TR+4*s+2}:{TR+4*s+3}], v3 offset:{base+4096*s+512}")
    p.waitflag(F1, lambda: trr(4, L_WQ), 8)
    p.stamp("S1")
    for s in range(4):
        p.lg(6-2*s)
        p(f"{MF} {R4(QD)}, {R4(TR+4*s)}, {R4(20+4*s)}, {'0' if s==0 else R4(QD)}")
    p.setexec(0x00010001)
    p.vmem("hello", f"global_store_dword v38, v{TL}, {WS}")
    p("s_nop 4")
    p.tag(QD)
    p.vmem("pubq", f"global_store_dwordx4 v5, {R4(QD)}, {WS}")
    p(f"ds_write_b128 v41, {R4(QD)} offset:{L_QT}")
    p("s_mov_b64 exec, -1")
    if opts.get("gg") == "p":
        p("s_cmp_ge_u32 s53, 28\ns_cbranch_scc1 L_sg")
        gu_issue()
        p("L_sg:")
        early = 1
    p.setflag(FP)
    if opts.get("so", 0) & 4:
        if opts["so"] & 8: p.waitflag(FQ)
        p("s_branch L_fin")
    p.stamp("pubq")
    p(f"""
    s_lshl_b32 s31, s30, 2
    s_add_u32 s31, s31, s3
    s_lshl_b32 s31, s31, 7
    s_add_u32 s31, s31, {GB}
    v_and_b32 v18, 1, v1
    v_lshlrev_b32 v18, 6, v18
    v_lshl_add_u32 v18, v10, 4, v18
    v_add_u32 v18, s31, v18
    s_and_b32 s31, s31, 0xfffff1ff
    v_lshl_add_u32 v5, v12, 9, v13
    v_add_u32 v5, s31, v5
    s_mov_b32 s50, 0x00020002
    s_mov_b32 s51, 0x00020002
    v_and_b32 v15, 3, v1
    v_lshlrev_b32 v15, 3, v15
    v_lshl_add_u32 v15, v10, 1, v15
    s_lshl_b32 s31, s2, 5
    v_add_u32 v17, s31, v15
    s_lshl_b32 s31, s3, 5
    v_add_u32 v15, s31, v15
    v_lshlrev_b32 v4, 4, v10
    s_and_b32 s31, s2, {28 if vote else 0}
    s_add_u32 s31, s31, s2
    s_lshl_b32 s31, s31, 11
    s_add_u32 s31, s31, {YB}
    v_add_u32 v13, s31, v2
    s_mov_b32 s47, {SPIN}
    s_lshl_b32 s46, s3, 12
    """)
    hold = opts.get("hold", 4)
    def wo_issue(g):
        for n in range(4):
            if n == 4 - hold:
                if g is p and early < 1 and opts.get("gfirst", 0): gcomp()
                g.waitflag(FS)
                if opts.get("fw") == "pre":
                    g.setflag(FX)
                    if g is p: p.vmem("pg", f"global_load_dwordx4 v[56:59], v5, {PB} sc1")
                    g.waitflag(FY)
            g(f"s_add_u32 m0, s46, {L_WO + 1024*n}\ns_nop 0")
            g.vmem(f"w{n}", f"global_load_lds_dwordx4 v36, {WO}{NT}")
            if n < 3: g(f"v_xor_b32 v36, {hx((0x2040, 0x6040, 0x2040)[n])}, v36")
    LG = {"w": FW, "q": FQ, "v": FV}[opts.get("lg", "w")]
    sp1 = opts.get("sp1", 0); sp2 = opts.get("sp2", 0); spd = opts.get("spd", 0)
    def spf(g, lo, hi, base="s[14:15]"):
        for r in range(lo, hi): g(f"s_load_dword s63, {base}, {1024*r}")
    spf(p, 0, sp1)
    p("s_cmp_ge_u32 s53, 28\ns_cbranch_scc1 L_noffn")
    def gcomp():
        p.wait("u1")
        p.setflag(FG)
        p.stamp("gu")
        p.waitflag(FG, lambda: trr(4, L_G), 8)
        for m in range(2):
            for s in range(2):
                p.lg(6-2*(2*m+s))
                p(f"{MF} {R4(QD+4*m)}, {R4(TR+8*m+4*s)}, {R4(48+4*s)}, {'0' if s==0 else R4(QD+4*m)}")
        p.setexec(0x00030003)
        p("s_nop 5")
        for i in range(4): p(f"v_cndmask_b32 v{QD+i}, v{QD+i}, v{QD+4+i}, s[50:51]")
        p.tag(QD)
        p.vmem("pubg", f"global_store_dwordx4 v18, {R4(QD)}, {WS}")
        p("s_mov_b64 exec, -1")
        p.stamp("pubg")
    if early >= 1: gcomp()
    p("s_setprio 0")
    if early < 1 and opts.get("gg", "w") == "v":
        p.waitflag(FV)
        if opts.get("ggprio"): p("s_setprio 2")
        gu_issue()
        p("s_setprio 0")
    p.waitflag(LG)
    if early >= 1 and opts.get("pgearly", 0): p.vmem("pg", f"global_load_dwordx4 v[56:59], v5, {PB} sc1")
    if early < 1 and opts.get("gg", "w") == "w": gu_issue()
    if early < 2 and not spd: wd_issue()
    spf(p, sp1, min(32, sp1+sp2))
    if spd: spf(p, 0, 16, "s[34:35]")
    late_wo = lambda: wo_issue(p)
    if not (early >= 1 and opts.get("pgearly", 0)): wo_issue(p)
    if spd: wd_issue()
    if opts.get("so"): p("s_waitcnt vmcnt(0)\ns_branch L_fin")
    p.stamp("iss")
    if early < 1 and not (opts.get("gfirst", 0) and hold): gcomp()
    if (early >= 1 and opts.get("pgearly", 0)) or opts.get("fw") == "pre":
        p.wait("pg"); p("s_branch L_pg1")
    else:
        if opts.get("fw", "none") != "none": p.wait(opts.get("fw", "none"))
        if opts.get("xdelay"): p(f"s_sleep {opts['xdelay']}")
        p.setflag(FX)
        p.stamp("fw")
    hfirst = (early >= 1 and opts.get("pgearly", 0)) or opts.get("fw") == "pre"
    if opts.get("fin", 1) and not hfirst:
        p("s_waitcnt vmcnt(0)")
        p(f"global_load_dwordx4 v[56:59], v5, {PB} sc1")
        p.setflag(FD)
        p.waitflag(FD, lambda: trr(6, L_WO), 12)
        p("s_branch L_pg0")
    p(f"""
L_pg:
    global_load_dwordx4 v[56:59], v5, {PB} sc1
L_pg0:
    s_waitcnt vmcnt(0)
L_pg1:
    """)
    p.chk([56], 60, 63)
    p(f"""
    v_cmp_ne_u32 vcc, 0, v63
    s_cbranch_vccnz L_pg_retry
L_pg_ok:
    s_mov_b64 exec, -1
    """)
    cold(f"""
L_pg_retry:
    s_sub_u32 s47, s47, 1
    s_cbranch_scc1 L_pg_ok
    s_cmp_lg_u32 s47, {SPIN-TFALL}
    s_cbranch_scc1 L_pg_nf
    s_mov_b32 s54, 1
    """)
    cold.setexec(0x00030003)
    cold.tag(QD, TG)
    cold(f"global_store_dwordx4 v18, {R4(QD)}, {WG} sc1\nL_pg_nf:\ns_mov_b64 exec, vcc")
    cold.toggle()
    cold("s_branch L_pg")
    c1 = -2*0.7978845608028654*LOG2E
    p(f"""
    v_permlane32_swap_b32 v56, v58
    v_permlane32_swap_b32 v57, v59
    v_pk_add_f32 v[56:57], v[56:57], v[58:59]
    s_nop 1
    v_permlane16_swap_b32 v56, v57
    v_add_f32 v56, v56, v57
    s_nop 1
    v_add_f32_dpp v56, v56, v56 row_ror:8 {DPP}
    v_cvt_pk_bf16_f32 v56, 0, v56
    v_mul_f32 v57, v56, v56
    v_mul_f32 v57, {hx(f32(0.044715))}, v57
    v_mov_b32_dpp v58, v56 row_ror:4 {DPP}
    v_fma_f32 v57, v57, v56, v56
    v_mul_f32 v57, {hx(f32(c1))}, v57
    v_exp_f32 v57, v57
    s_nop 0
    v_add_f32 v57, 1.0, v57
    v_rcp_f32 v57, v57
    s_nop 0
    v_mul_f32 v56, v56, v57
    v_cvt_pk_bf16_f32 v56, 0, v56
    v_mul_f32 v56, v56, v58
    v_cvt_pk_bf16_f32 v56, v56, v56
    """)
    p.setexec(0x000f000f)
    p(f"ds_write_b16 v15, v56 offset:{L_OV+256}\ns_mov_b64 exec, -1")
    p.stamp("h")
    if early >= 1 and opts.get("pgearly", 0):
        late_wo()
        if opts.get("fw", "none") != "none": p.wait(opts["fw"])
        p.setflag(FX); p.stamp("fw")
    if opts.get("fin", 1) == 0 or hfirst:
        p("s_waitcnt vmcnt(0)")
        p.setflag(FD)
        p.stamp("allin")
        def dreads():
            p(f"ds_read_b128 v[48:51], v4 offset:{L_OV+256}\nds_read_b128 v[52:55], v4 offset:{L_OV+320}")
            trr(6, L_WO)
        p.waitflag(FD, dreads, 14)
        p(f"""
        s_waitcnt lgkmcnt(0)
        {MF} {R4(QD)}, {R4(TR+16)}, v[48:51], 0
        {MF} {R4(QD)}, {R4(TR+20)}, v[52:55], {R4(QD)}
L_final:
        """)
    else:
        p.setflag(FY)
        p.stamp("allin")
        p.waitflag(FY, lambda: p(f"ds_read_b128 v[48:51], v4 offset:{L_OV+256}\nds_read_b128 v[52:55], v4 offset:{L_OV+320}"), 2)
        p(f"""
        s_waitcnt lgkmcnt(0)
        {MF} {R4(QD)}, {R4(TR+16)}, v[48:51], 0
        {MF} {R4(QD)}, {R4(TR+20)}, v[52:55], {R4(QD)}
L_final:
        """)
    nf = Gen(opts)
    nf("L_noffn:\ns_setprio 0")
    nf.waitflag(LG)
    spf(nf, sp1, min(32, sp1+sp2))
    wo_issue(nf)
    nf("s_waitcnt vmcnt(0)"); nf.setflag(FX)
    if opts.get("so"): nf("s_waitcnt vmcnt(0)\ns_branch L_fin")
    for i in range(4): nf(f"v_mov_b32 v{QD+i}, 0")
    nf("s_waitcnt vmcnt(0)")
    nf.setflag(FD)
    def nreads():
        for s in range(4):
            nf(f"ds_read_b64_tr_b16 v[{TR+4*s}:{TR+4*s+1}], v3 offset:{L_WO+4096*s}")
            nf(f"ds_read_b64_tr_b16 v[{TR+4*s+2}:{TR+4*s+3}], v3 offset:{L_WO+4096*s+512}")
    nf.waitflag(FD, nreads, 8)
    nf("s_branch L_final")
    if opts.get("xe", 1): p(f"v_and_b32 v17, 0x3fe, v17\nglobal_load_ushort v61, v17, {X}")
    if vote: p(f"s_lshl_b32 s31, s28, 9\ns_add_u32 s31, s31, {VB}\nv_lshl_add_u32 v19, v1, 3, s31\nglobal_load_dwordx2 v[62:63], v19, {WS} sc1")
    def oreads():
        for s in range(4): p(f"ds_read_b128 {R4(20+4*s)}, v4 offset:{L_OV+64*s}")
    p.waitflag(FO, oreads, 4)
    for s in range(4):
        p.lg(3-s)
        p(f"{MF} {R4(QD)}, {R4(TR+4*s)}, {R4(20+4*s)}, {R4(QD)}")
    p.setexec(0x00030003 if vote else 0x00010001)
    p("s_nop 5")
    p.tag(QD, TG)
    p(f"global_store_dwordx4 v39, {R4(QD)}, {WS} sc1")
    p("s_mov_b64 exec, -1")
    p.stamp("pubY")
    VOTE = "" if not vote else f'''s_xor_b32 s32, s55, 1
    s_waitcnt vmcnt(1)
    v_cmp_eq_u32 vcc, s32, v62
    v_cmp_eq_u32 s[50:51], s32, v63
    s_bcnt1_i32_b64 s31, vcc
    s_bcnt1_i32_b64 s32, s[50:51]
    s_add_u32 s31, s31, s32
    {"v_mov_b32 v62, s31" + chr(10) + "s_lshl_b32 s32, s2, 2" + chr(10) + "v_mov_b32 v63, s32" + chr(10) + "global_store_dword v63, v62, s[24:25]" if opts.get("vdbg") else ""}
    s_cmp_gt_u32 s31, 64
    s_cselect_b32 s31, 8192, 0
    v_add_u32 v13, s31, v13'''
    p(f"""
    s_cmp_ge_u32 s2, 32
    s_cbranch_scc1 L_fin
    s_cmp_lg_u32 s3, 0
    s_cbranch_scc1 L_fin
    {"" if opts.get("xe", 1) else "global_load_ushort v61, v17, " + X}
    s_mov_b32 s47, {SPIN}
    {VOTE}
L_py:
    global_load_dwordx4 v[48:51], v13, {WS} sc1
    global_load_dwordx4 v[52:55], v13, {WS} offset:1024 sc1
    s_waitcnt vmcnt(0)
    """)
    p.chk([48, 52], 56, 59, "s36")
    p(f"""
    v_cmp_ne_u32 vcc, 0, v59
    s_cbranch_vccz L_py_ok
    s_mov_b64 exec, vcc
    s_sub_u32 s47, s47, 1
    s_cbranch_scc0 L_py
L_py_ok:
    s_mov_b64 exec, -1
    v_pk_add_f32 v[48:49], v[48:49], v[52:53]
    v_pk_add_f32 v[50:51], v[50:51], v[54:55]
    v_lshlrev_b32 v61, 16, v61
    s_nop 0
    v_permlane32_swap_b32 v48, v50
    v_permlane32_swap_b32 v49, v51
    v_pk_add_f32 v[48:49], v[48:49], v[50:51]
    s_nop 1
    v_permlane16_swap_b32 v48, v49
    v_add_f32 v48, v48, v49
    s_nop 1
    v_add_f32_dpp v48, v48, v48 row_ror:4 {DPP}
    s_nop 1
    v_add_f32_dpp v48, v48, v48 row_ror:8 {DPP}
    """)
    p.setexec(0x000f000f)
    p(f"""
    v_add_f32 v48, v48, v61
    v_cvt_pk_bf16_f32 v48, v48, v48
    global_store_short v17, v48, {OUT}
    s_cmp_lg_u32 s2, 0
    s_cbranch_scc1 L_fin
    s_mov_b64 exec, 1
    global_store_dword v40, v{TG}, {WS}
L_fin:
    """)
    E = NSTAMP - 1
    if "amp2" in opts:
        p(f"""
        s_memrealtime s[{64+2*E}:{65+2*E}]
        s_cmp_lg_u32 s62, 0
        s_cbranch_scc1 L_end
        s_mov_b64 exec, 1
        s_lshl_b32 s50, s2, 2
        s_add_u32 s50, s50, 0x300000
        v_mov_b32 v3, s50
        v_mov_b32 v4, s64
        global_store_dword v3, v4, {WS} sc1
        s_cmp_lg_u32 s2, 0
        s_cbranch_scc1 L_end
        s_mov_b64 exec, -1
        s_sleep 100
        v_add_u32 v3, 0x300000, v2
        global_load_dwordx4 v[4:7], v3, {WS} sc1
        s_waitcnt vmcnt(0) lgkmcnt(0)
        v_sub_u32 v4, s{64+2*E}, v4
        v_sub_u32 v5, s{64+2*E}, v5
        v_sub_u32 v6, s{64+2*E}, v6
        v_sub_u32 v7, s{64+2*E}, v7
        v_min3_u32 v8, v4, v5, v6
        v_min_u32 v8, v8, v7
        v_max3_u32 v9, v4, v5, v6
        v_max_u32 v9, v9, v7
        v_add3_u32 v4, v4, v5, v6
        v_add_u32 v4, v4, v7
        s_mov_b32 s50, 0
        s_mov_b32 s51, -1
        s_mov_b32 s53, 0
        s_mov_b32 s52, 0
L_a2:
        v_readlane_b32 s31, v4, s52
        v_readlane_b32 s32, v8, s52
        v_readlane_b32 s33, v9, s52
        s_add_u32 s50, s50, s31
        s_min_u32 s51, s51, s32
        s_max_u32 s53, s53, s33
        s_add_u32 s52, s52, 1
        s_cmp_lt_u32 s52, 64
        s_cbranch_scc1 L_a2
        s_mul_i32 s50, s50, {(5,10,0,0)[opts["amp2"]]}
        s_lshr_b32 s50, s50, 8
        s_mul_i32 s51, s51, {(5,0,10,0)[opts["amp2"]]}
        s_mul_i32 s53, s53, {(0,0,0,10)[opts["amp2"]]}
        s_add_u32 s63, s50, s51
        s_add_u32 s63, s63, s53
        s_min_u32 s63, s63, 100000
        s_add_u32 s63, s63, s{64+2*E}
L_amp:
        s_memrealtime s[50:51]
        s_waitcnt lgkmcnt(0)
        s_sub_u32 s61, s50, s63
        s_cmp_lt_i32 s61, 0
        s_cbranch_scc1 L_amp
        """)
    elif "amp" in opts:
        i = opts["amp"]
        p(f"""
        s_memrealtime s[{64+2*E}:{65+2*E}]
        s_waitcnt lgkmcnt(0)
        s_cmp_lg_u32 s2, {opts.get("ampwg", 0)}
        s_cbranch_scc1 L_end
        s_cmp_lg_u32 s62, {opts.get("ampw", 0)}
        s_cbranch_scc1 L_end
        s_sub_u32 s63, s{64+2*i}, s64
        s_mul_i32 s63, s63, 10
        s_min_u32 s63, s63, 100000
        s_add_u32 s63, s63, s{64+2*E}
L_amp:
        s_memrealtime s[50:51]
        s_waitcnt lgkmcnt(0)
        s_sub_u32 s61, s50, s63
        s_cmp_lt_i32 s61, 0
        s_cbranch_scc1 L_amp
        """)
    elif opts.get("stamps"):
        p(f"""
        s_memrealtime s[{64+2*E}:{65+2*E}]
        s_sleep 127
        s_waitcnt lgkmcnt(0)
        s_lshl_b32 s50, s2, 3
        s_add_u32 s50, s50, s62
        s_lshl_b32 s50, s50, 8
        s_add_u32 s50, s50, {STAMP_OFF}
        s_mov_b64 exec, 1
        v_mov_b32 v3, s50
        """)
        for i in ((0, E) if opts.get("light") else range(NSTAMP)):
            p(f"v_mov_b32 v4, s{64+2*i}\nv_mov_b32 v5, s{65+2*i}\nglobal_store_dwordx2 v3, v[4:5], {WS} offset:{8*i}")
    p("s_endpgm")
    al = a.L
    ia = next(i for i, l in enumerate(al) if "HEAD_END" in l)
    ip = next(i for i, l in enumerate(p.L) if "HEAD_END" in l)
    body = (c.L + p.L[:ip] + ["    s_branch L_P2", "L_A1:"] + al[:ia] + ["    s_branch L_A2", "L_P2:"] + p.L[ip+1:]
            + ["L_A2:"] + al[ia+1:] + nf.L + cold.L + ["L_end:", "    s_endpgm"])
    opts["names"] = [f"{p.names[i] if i < len(p.names) else '-'}|{a.names[i] if i < len(a.names) else '-'}" for i in range(E)] + ["end"]
    hdr = open("cdna_kernels/" + NAME + ".s.ref").read().split("; Override")[0]
    return hdr + f"""; @launch grid=(256,1,1) block=(512,1,1) lds={opts.get("lds", LDS_BYTES)}
.amdgcn_target "amdgcn-amd-amdhsa--gfx950"
.text
.globl {NAME}_kernel
.p2align 8
.type {NAME}_kernel,@function
{NAME}_kernel:
""" + "\n".join(body) + f"""
.section .rodata,"a"
.p2align 6
.amdhsa_kernel {NAME}_kernel
  .amdhsa_next_free_vgpr 224
  .amdhsa_next_free_sgpr 102
  .amdhsa_accum_offset 224
  .amdhsa_group_segment_fixed_size 0
  .amdhsa_kernarg_size 96
  .amdhsa_user_sgpr_count 2
  .amdhsa_user_sgpr_kernarg_segment_ptr 1
  .amdhsa_system_sgpr_workgroup_id_x 1
  .amdhsa_float_denorm_mode_32 3
.end_amdhsa_kernel
"""

if __name__ == "__main__":
    out = sys.argv[1]
    opts = {}
    for kv in sys.argv[2:]:
        k, v = kv.split("=")
        try: v = int(v)
        except ValueError: pass
        opts[k] = v
    open(out, "w").write(build(opts))
    if opts.get("stamps") and not opts.get("light"): print(",".join(opts["names"]))
```

```python
import sys, struct
NAME = "parallel_sum__sliding_block_cached__geglu_ffn__decode"
STAMP_OFF = 0x10000000
def f32(x): return struct.unpack("<I", struct.pack("<f", x))[0]
def hx(x): return "0x%08x" % (x & 0xffffffff)
DPP = "row_mask:0xf bank_mask:0xf"
NSTAMP = 17
HB = 0x800; QB = 0x1000; GB = 0x11000; MLB = 0x31000; YB = 0x38000; OB = 0x50000; GOFF = 0x100000
L_WQ = 0x0000; L_G = 0x4000; L_WO = 0x8000; L_XN = 0xE000; L_M = 0xE400; L_L = 0xE440; L_F = 0xE480; L_OV = 0xE540
L_QT = 0xE6C0; L_Q = 0xE800; QSTR = 272; L_O = 0x0000; OSTR = 272
F1, FG, FQ, FW, FP, FV, FD, FO, F1b, FX, FS, FY = [L_F + 16*i for i in range(12)]
LDS_BYTES = 98304
SPIN = 200000; TFALL = 256
LOG2E = 1.4426950408889634
X, K, V, WQ, WO, G, U, D, OUT, WS = "s[4:5]", "s[6:7]", "s[8:9]", "s[10:11]", "s[12:13]", "s[16:17]", "s[18:19]", "s[20:21]", "s[22:23]", "s[26:27]"
WG, PB = "s[56:57]", "s[58:59]"
MF = "v_mfma_f32_16x16x32_bf16"
TL, TG, DUM = 124, 125, 126
def R4(r): return f"v[{r}:{r+3}]"
def R2(r): return f"v[{r}:{r+1}]"
def bc(r):
    return (f"v[{r}:{r+1}]", 0) if r % 2 == 0 else (f"v[{r-1}:{r}]", 1)

DOC = '''; ---------------------------------------------------------------------------------------------
;   waves 0-3 ("P"): LayerNorm, a 128x64 tile of wq, 64x64 tiles of w_gate / w_up, a 128x64 tile of wo
; epoch word found in d_ws).  q / gate-up / o partials use plain stores with a tag bound to the XCC id
; ---------------------------------------------------------------------------------------------
'''

class Gen:
    nsync = 0
    def __init__(self, opts):
        self.L = []; self.o = opts; self.vm = []; self.nst = 1; self.names = ["start"]
    def __call__(self, s):
        for l in s.strip("\n").split("\n"):
            l = l.strip()
            if not l: continue
            self.L.append(l if l.endswith(":") else "    " + l)
    def vmem(self, name, s):
        self(s); self.vm.append(name)
    def wait(self, name):
        idx = max(i for i, n in enumerate(self.vm) if n == name)
        self(f"s_waitcnt vmcnt({len(self.vm) - 1 - idx})")
    def lg(self, n): self(f"s_waitcnt lgkmcnt({n})")
    def stamp(self, label=""):
        if not self.o.get("stamps") or self.o.get("light"): return
        i = self.nst; self.nst += 1
        assert i < NSTAMP - 1
        self(f"s_memrealtime s[{64+2*i}:{65+2*i}]   ; stamp {i} {label}")
        self.names.append(label)
    def cnt(self, label):
        if not self.o.get("stamps") or self.o.get("light"): return
        i = self.nst; self.nst += 1
        self(f"s_sub_u32 s31, {SPIN}, s47\ns_mul_i32 s31, s31, 100\ns_add_u32 s{64+2*i}, s64, s31\ns_addc_u32 s{65+2*i}, s65, 0")
        self.names.append(label)
    def setexec(self, m32):
        self(f"s_mov_b32 exec_lo, {hx(m32)}\ns_mov_b32 exec_hi, {hx(m32)}")
    def tag(self, r, tv=TL):
        for i in range(4): self(f"v_perm_b32 v{r+i}, v{r+i}, v{tv}, s{38+i}")
    def chk(self, units, t, acc, ts="s60"):
        for n, r in enumerate(units):
            d = acc if n == 0 else (t + 2 if n % 2 == 1 and n + 1 < len(units) else t)
            self(f"v_perm_b32 v{t}, v{r+1}, v{r}, s44\nv_perm_b32 v{t+1}, v{r+3}, v{r+2}, s45")
            self(f"v_bitop3_b32 v{d}, v{t}, v{t+1}, {ts} bitop3:0x56")
            if n and n % 2 == 0: self(f"v_or3_b32 v{acc}, v{acc}, v{t}, v{t+2}")
            elif n and n + 1 == len(units): self(f"v_or_b32 v{acc}, v{acc}, v{t}")
    def toggle(self):
        self(f"s_and_b32 s31, s47, s54\ns_cselect_b64 {PB}, {WG}, {WS}\ns_cselect_b32 s60, s36, s55")
    def setflag(self, F): self(f"ds_write_b32 v42, v40 offset:{F}")
    def waitflag(self, F, reads=None, nreads=0):
        n = Gen.nsync; Gen.nsync += 1
        self(f"L_ps{n}:\nds_read_b128 v[44:47], v40 offset:{F}")
        if reads: reads()
        self(f"s_waitcnt lgkmcnt({nreads})\nv_or3_b32 v44, v44, v45, v46\nv_or_b32 v44, v44, v47\nv_cmp_ne_u32 vcc, 0, v44\ns_cbranch_vccnz L_ps{n}")
    def pkmul(self, d, s, f):
        src, h = bc(f); self(f"v_pk_mul_f32 {R2(d)}, {R2(s)}, {src} op_sel:[0,{h}] op_sel_hi:[1,{h}]")
    def pkfma(self, d, s, f):
        src, h = bc(f); self(f"v_pk_fma_f32 {R2(d)}, {R2(s)}, {src}, {R2(d)} op_sel:[0,{h},0] op_sel_hi:[1,{h},1]")

def build(opts):
    Gen.nsync = 0
    global YB
    YB = 0xD0000 + opts.get("yb", 0); PRB = 0x1C0000 + opts.get("yb", 0); VB = 0x36000
    vote = opts.get("vote", 0)
    c = Gen(opts); p = Gen(opts); a = Gen(opts); cold = Gen(opts)
    ntm = str(opts.get("nt", "kvwq"))
    if ntm == "1": ntm = "kvwqp"
    nts = lambda ch: " nt" if ch in ntm else ""
    NT = nts("w")
    pace = opts.get("pace", 8)
    def tags(g):
        g(f"""
        s_mul_i32 s36, s36, 0x9E3779B1
        s_add_u32 s36, s36, 0x7F4A7C15
        s_add_u32 s55, s55, 1
        s_mul_i32 s55, s55, 0x85EBCA6B
        s_xor_b32 s55, s55, s36
        s_mov_b32 s60, s55
        v_mov_b32 v{TL}, s55
        v_mov_b32 v{TG}, s36
        """)
    def consts(g):
        g(f"""
        s_getreg_b32 s55, hwreg(HW_REG_XCC_ID, 0, 4)
        s_add_u32 s56, s26, {GOFF}
        s_addc_u32 s57, s27, 0
        s_mov_b64 {PB}, {WS}
        s_mov_b32 s54, 0
        s_lshr_b32 s31, s29, 3
        s_lshl_b32 s52, s28, 2
        s_add_u32 s52, s52, s31                 ; 4g+hh
        s_mov_b32 s38, 0x07060500
        s_mov_b32 s39, 0x07060501
        s_mov_b32 s40, 0x07060502
        s_mov_b32 s41, 0x07060503
        s_mov_b32 s44, 0x0c0c0400
        s_mov_b32 s45, 0x04000c0c
        s_lshl_b32 s31, s3, 2
        v_mov_b32 v42, s31
        v_mov_b32 v40, 0
        s_lshl_b32 s61, s28, 13
        s_add_u32 s61, s61, {QB}
        s_and_b32 s31, s29, 3
        s_lshl_b32 s31, s31, 11
        s_add_u32 s31, s31, s61
        s_and_b32 s32, s29, 28
        s_add_u32 s32, s32, s3
        s_lshl_b32 s32, s32, 6
        s_add_u32 s31, s31, s32
        v_lshl_add_u32 v5, v10, 4, s31
        s_lshl_b32 s31, s30, 2
        s_add_u32 s31, s31, {HB}
        v_mov_b32 v38, s31
        s_lshl_b32 s31, s3, 6
        v_lshl_add_u32 v41, v10, 4, s31
        """)
    if opts.get("stamps"): c("s_memrealtime s[64:65]")
    c(f"""
    s_load_dwordx16 s[4:19], s[0:1], 0
    s_load_dwordx8 s[20:27], s[0:1], 64
    s_cmp_ge_u32 s2, 256
    s_cbranch_scc1 L_end
    """)
    if opts.get("stamps"):
        for i in range(1, NSTAMP): c(f"s_mov_b64 s[{64+2*i}:{65+2*i}], 0")
    c(f"""
    v_lshrrev_b32 v2, 6, v0
    v_and_b32 v1, 63, v0
    v_readfirstlane_b32 s62, v2
    s_and_b32 s28, s2, 7
    s_lshr_b32 s29, s2, 3
    {"s_xor_b32 s29, s29, %d" % opts["jx"] if opts.get("jx") else ""}
    s_lshl_b32 s30, s28, 5
    s_add_u32 s30, s30, s29                 ; p
    v_lshlrev_b32 v2, 4, v1                 ; lane*16
    v_lshrrev_b32 v12, 3, v1                ; lane>>3
    v_and_b32 v13, 0x70, v2                 ; (lane&7)*16
    v_and_b32 v9, 15, v1
    v_lshrrev_b32 v10, 4, v1
    s_and_b32 s3, s62, 3
    s_cmp_ge_u32 s62, 4
    s_cbranch_scc1 L_A1
    """)
    KR, VR, VT = 128, 160, 192
    QO, S, PM, DD = 48, 64, 72, 88
    ONE, LD, MK = 96, 100, 104
    order = opts.get("ord", "i.q.t.w.j").split(".")
    width = {"i":2, "q":2, "t":1, "w":2, "j":5, "jl":3, "jh":2}
    sh = {}; b_ = 8
    for f_ in order: sh[f_] = b_; b_ += width[f_]
    assert b_ == 20
    KMAP = f"s_lshl_b32 s31, s3, {sh['w']}\n"
    if "j" in sh: KMAP += f"s_lshl_b32 s32, s29, {sh['j']}\ns_add_u32 s31, s31, s32\n"
    else: KMAP += f"s_and_b32 s32, s29, 7\ns_lshl_b32 s32, s32, {sh['jl']}\ns_add_u32 s31, s31, s32\ns_lshr_b32 s32, s29, 3\ns_lshl_b32 s32, s32, {sh['jh']}\ns_add_u32 s31, s31, s32\n"
    opts.setdefault("xm", 7)
    if opts.get("xm"): KMAP += f"s_xor_b32 s33, s29, s28\ns_and_b32 s33, s33, {opts['xm']}\ns_lshl_b32 s33, s33, {sh['t']}\ns_xor_b32 s31, s31, s33\n"
    KMAP += f'''s_lshl_b32 s32, s28, 24
    s_add_u32 s31, s31, s32
    s_add_u32 s31, s31, {61440*256}
    v_and_b32 v7, 3, v9
    v_lshlrev_b32 v7, {sh["i"]}, v7
    v_lshrrev_b32 v8, 2, v9
    v_lshl_add_u32 v7, v8, {sh["q"]}, v7
    v_lshl_add_u32 v7, v10, 4, v7
    v_add_u32 v7, s31, v7
    v_xor_b32 v26, {1 << sh["t"]}, v7
    v_lshlrev_b32 v8, {sh["q"]}, v10
    v_lshl_add_u32 v8, v9, 4, v8
    v_add_u32 v8, s31, v8                   ; V voff'''
    a(f"""
    s_getpc_b64 s[34:35]
L_pc:
    s_lshl_b32 s31, s29, 2
    s_add_u32 s31, s31, s3
    s_lshl_b32 s31, s31, 7
    s_min_u32 s31, s31, L_end-L_pc
    v_mov_b32 v14, s31
    s_mov_b64 exec, 1
    global_load_dword v{DUM}, v14, s[34:35]
    s_mov_b64 exec, -1
    v_lshlrev_b32 v14, 2, v1
    v_mov_b32 v15, -1
    ds_write_b32 v14, v15 offset:{L_M}
    ds_write_b32 v14, v15 offset:{L_M+64}
    {KMAP}
    s_setprio 1
    s_waitcnt lgkmcnt(0)
    """)
    a.stamp("karg")
    a(f"s_load_dword s36, {WS}, 0")
    a("s_barrier")
    if opts.get("headk", 1) == 0: a("; HEAD_END")
    consts(a)
    a(f"""
    s_lshl_b32 s31, s3, 9
    s_add_u32 s31, s31, s61
    s_add_u32 s31, s31, 4096
    v_and_b32 v14, 0x1f0, v2
    v_lshrrev_b32 v6, 5, v1
    v_lshl_add_u32 v6, v6, 11, v14
    v_add_u32 v6, s31, v6
    s_lshl_b32 s31, s28, 7
    s_add_u32 s31, s31, {HB}
    v_lshrrev_b32 v14, 2, v14
    v_add_u32 v39, s31, v14
    """)
    if opts.get("kdelay", 0): a(f"s_sleep {opts.get('kdelay', 0)}")
    if opts.get("alt", 0): seq = "K00 K01 V4 V5 K02 K03 V6 V7 K10 K11 V0 V1 K12 K13 V2 V3".split()
    else: seq = "K00 K01 K02 K03 K10 K11 K12 K13 V0 V1 V2 V3 V4 V5 V6 V7".split()
    def kv(nm):
        if nm[0] == "K":
            t, s = int(nm[1]), int(nm[2])
            if opts.get("klin"):
                a(f"v_xor_b32 v27, {hx((t << sh['t']) + (s << sh['i']))}, v8")
                a.vmem(nm, f"global_load_dwordx4 {R4(KR+16*t+4*s)}, v27, {K}{nts('k')}")
            else: a.vmem(nm, f"global_load_dwordx4 {R4(KR+16*t+4*s)}, v{(7,26)[t]}, {K} offset:{64*s}{nts('k')}")
        else:
            t = int(nm[1])
            off = ((t >> 2) << sh["t"]) + ((t & 3) << sh["i"])
            if t: a(f"v_xor_b32 v27, {hx(off)}, v8")
            a.vmem(nm, f"global_load_dwordx4 {R4(VR+4*t)}, v{27 if t else 8}, {V}{nts('v')}")
    n0 = opts.get('n0', 6)
    for nm in seq[:n0]: kv(nm)
    a.stamp("K_iss")
    if opts.get("headk", 1): a("; HEAD_END")
    def prep():
        for r in range(ONE, ONE+4): a(f"v_mov_b32 v{r}, 0x3f803f80")
        a("v_bfe_u32 v14, v1, 2, 2")
        for e in range(4): a(f"v_cmp_eq_u32 s[50:51], {e}, v14\ns_nop 1\nv_cndmask_b32 v{MK+e}, 0, -1, s[50:51]")
        a(f"""
        s_mov_b32 s42, 0x05040100
        s_mov_b32 s43, 0x07060302
        s_mul_i32 s31, s3, {QSTR}
        s_add_u32 s31, s31, {L_Q}
        v_and_b32 v24, 31, v1
        v_lshl_add_u32 v24, v24, 3, s31
        v_lshrrev_b32 v14, 5, v1
        v_lshl_add_u32 v24, v14, 2, v24
        v_and_b32 v17, 3, v1
        v_mul_u32_u24 v17, {QSTR}, v17
        v_lshl_add_u32 v14, v10, 4, v17
        s_mov_b32 s48, {hx(f32(128**-0.5))}
        s_mov_b32 s49, {hx(f32(LOG2E))}
        s_mul_i32 s31, s3, {8*OSTR}
        v_mul_u32_u24 v15, {OSTR}, v10
        v_lshl_add_u32 v15, v9, 4, v15
        v_add_u32 v15, s31, v15
        v_add_u32 v16, v42, v2
        v_and_b32 v18, 12, v1
        v_add_u32 v18, v18, v10
        v_lshl_add_u32 v17, v18, 4, v17
        s_mul_i32 s31, s3, {4*OSTR}
        v_add_u32 v17, s31, v17
        v_lshlrev_b32 v18, 4, v10
        s_lshl_b32 s31, s30, 3
        s_add_u32 s31, s31, s3
        s_lshl_b32 s31, s31, 8
        s_add_u32 s31, s31, {OB}
        v_lshlrev_b32 v19, 9, v10
        v_lshl_add_u32 v19, v9, 4, v19
        v_add_u32 v19, s31, v19                  ; O voff
        s_lshl_b32 s31, s28, 10
        s_lshl_b32 s32, s29, 3
        s_add_u32 s31, s31, s32
        s_add_u32 s31, s31, {MLB}
        v_lshl_add_u32 v20, v10, 8, s31
        s_lshl_b32 s31, s28, 16
        s_and_b32 s32, s29, 24
        s_lshl_b32 s32, s32, 6
        s_add_u32 s31, s31, s32
        s_lshl_b32 s32, s3, 7
        s_add_u32 s31, s31, s32
        s_add_u32 s31, s31, {OB+4096}
        v_lshl_add_u32 v43, v12, 13, v13
        v_add_u32 v43, s31, v43
        s_lshl_b32 s31, s52, 8
        s_add_u32 s31, s31, {MLB}
        v_lshl_add_u32 v21, v12, 5, s31
        v_and_b32 v22, 3, v1
        v_lshlrev_b32 v22, 6, v22
        v_lshl_add_u32 v22, v10, 4, v22
        v_bfe_u32 v23, v1, 2, 1
        v_lshl_add_u32 v22, v23, 1, v22
        v_add_u32 v22, v42, v22
        s_mov_b32 s47, {SPIN}
        s_waitcnt lgkmcnt(0)
        """)
        tags(a)
    assert QSTR == OSTR
    prep()
    if vote:
        a(f"""
        s_lshl_b32 s31, s30, 2
        s_add_u32 s31, s31, s3
        s_and_b32 s32, s31, 63
        s_lshl_b32 s32, s32, 7
        s_lshr_b32 s33, s31, 6
        s_lshl_b32 s33, s33, 14
        s_add_u32 s32, s32, s33
        s_add_u32 s32, s32, {PRB}
        s_and_b32 s33, s3, 1
        s_lshl_b32 s46, s33, 13
        s_xor_b32 s32, s32, s46
        s_xor_b32 s46, s32, 8192
        s_memtime s[50:51]
        s_load_dword s53, {WS}, s32
        s_waitcnt lgkmcnt(0)
        s_memtime s[14:15]
        s_load_dword s53, {WS}, s46
        s_waitcnt lgkmcnt(0)
        s_memtime s[24:25]
        s_lshl_b32 s31, s31, 2
        s_add_u32 s31, s31, {VB}
        v_mov_b32 v25, s31
        s_waitcnt lgkmcnt(0)
        s_sub_u32 s50, s14, s50
        s_sub_u32 s51, s24, s14
        s_cmp_gt_u32 s50, s51
        s_cselect_b32 s50, 1, 0
        s_xor_b32 s50, s50, s33
        s_xor_b32 s50, s50, s55
        v_mov_b32 v37, s50
        s_mov_b64 exec, 1
        """)
        a.vmem("vote", f"global_store_dword v25, v37, {WS}")
        a("s_mov_b64 exec, -1")
    def pollq(g, r=28):
        g(f"global_load_dwordx4 {R4(r)}, v6, {PB} offset:-4096 sc1\nglobal_load_dwordx4 {R4(r+4)}, v6, {PB} sc1\nglobal_load_dword v{r+8}, v39, {PB} sc1")
    if n0 < 8:
        a.waitflag(FP)
        for nm in seq[n0:8]: kv(nm)
    pq_at = opts.get("pq_at", 4)
    def dopoll():
        a.setflag(FV)
        a.waitflag(FV)
        pollq(a); a.vm += ["pq0", "pq1", "pq"]
        a.stamp("pq_iss")
    a("s_mov_b64 vcc, -1")
    for t in range(8):
        if opts.get("gate", 0) == t: a.waitflag(FP)
        if 8 + t >= pace and opts.get("gate", 0) < 0:
            a(f"""
            s_cbranch_vccz L_pa{t}
            s_waitcnt vmcnt({pace-1})
            ds_read_b128 v[44:47], v40 offset:{FP}
            s_waitcnt lgkmcnt(0)
            v_or3_b32 v44, v44, v45, v46
            v_or_b32 v44, v44, v47
            v_cmp_ne_u32 vcc, 0, v44
L_pa{t}:
            """)
        if t == pq_at: dopoll()
        kv(seq[8+t])
    a.stamp("V_iss")
    if opts.get("so"):
        a.setflag(FV); a.setflag(FW)
        a("s_waitcnt vmcnt(0)")
        a.setflag(FQ)
        a("s_branch L_fin")
    if pq_at == 8: dopoll()
    pq2 = opts.get("pq2", 2)
    if pq2:
        if pq2 == 2:
            a.setflag(F1b); a.waitflag(F1b)
        pollq(a, 112); a.vm += ["pr0", "pr1", "pr"]
    a.setflag(FW)
    def vperm(tp):
        a.wait(f"V{2*tp+1}")
        for d in range(4):
            lo = VR + 8*tp + d; hi = lo + 4
            a(f"v_perm_b32 v{VT+4*(2*d)+tp}, v{hi}, v{lo}, s42")
            a(f"v_perm_b32 v{VT+4*(2*d+1)+tp}, v{hi}, v{lo}, s43")
    npre = pq_at // 2
    for tp in range(npre): vperm(tp)
    a.wait("pq")
    a.stamp("pq_ret")
    a("L_pq:")
    a.chk([28, 32], 25, 37)
    a(f"""
    v_xor_b32 v25, s60, v36
    v_or_b32 v37, v37, v25
    v_cmp_ne_u32 vcc, 0, v37
    s_cbranch_vccnz L_pq_retry
L_pq_ok:
    s_mov_b64 exec, -1
    v_pk_add_f32 v[28:29], v[28:29], v[32:33]
    v_pk_add_f32 v[30:31], v[30:31], v[34:35]
    s_nop 1
    v_permlane32_swap_b32 v28, v30
    v_permlane32_swap_b32 v29, v31
    v_pk_add_f32 v[28:29], v[28:29], v[30:31]
    v_cvt_pk_bf16_f32 v28, v28, v29
    ds_write_b32 v24, v28
    """)
    a.setflag(FQ)
    cold("L_pq_retry:\ns_sub_u32 s47, s47, 1\ns_cbranch_scc1 L_pq_ok")
    if pq2:
        cold(f"s_cmp_lg_u32 s47, {SPIN-1}\ns_cbranch_scc1 L_pq_r2\ns_waitcnt vmcnt(0)")
        for i in range(9): cold(f"v_mov_b32 v{28+i}, v{112+i}")
        cold("s_branch L_pq\nL_pq_r2:")
    cold(f"""
    s_cmp_lg_u32 s47, {SPIN-TFALL}
    s_cbranch_scc1 L_pq_nf
    s_mov_b32 s54, 1
    s_mov_b64 exec, -1
    s_mov_b64 s[50:51], vcc
    """)
    cold.waitflag(FP, lambda: cold(f"ds_read_b128 {R4(S)}, v41 offset:{L_QT}"), 0)
    cold("s_mov_b64 vcc, s[50:51]")
    cold.setexec(0x00010001)
    cold.tag(S, TG)
    cold(f"""
    global_store_dword v38, v{TG}, {WG} sc1
    global_store_dwordx4 v5, {R4(S)}, {WG} sc1
L_pq_nf:
    s_mov_b64 exec, vcc
    """)
    cold.toggle(); pollq(cold)
    cold("s_waitcnt vmcnt(0)\ns_branch L_pq")
    a.cnt("#pq")
    def qreads():
        for s in range(4): a(f"ds_read_b128 {R4(QO+4*s)}, v14 offset:{L_Q+64*s}")
    a.waitflag(FQ, qreads, 4)
    a.stamp("q_ok")
    for s in range(4):
        a.lg(3-s)
        for t in range(2):
            a(f"{MF} {R4(S+4*t)}, {R4(KR+16*t+4*s)}, {R4(QO+4*s)}, {'0' if s==0 else R4(S+4*t)}")
    a(f"s_mov_b32 s47, {SPIN}\ns_nop 5")
    for i in range(8): a(f"v_cvt_pk_bf16_f32 v{S+i}, 0, v{S+i}")
    for i in range(0, 8, 2): a(f"v_pk_mul_f32 {R2(S+i)}, {R2(S+i)}, s[48:49] op_sel_hi:[1,0]")
    for i in range(8): a(f"v_cvt_pk_bf16_f32 v{S+i}, 0, v{S+i}")
    a(f"""
    v_max3_f32 v108, v{S}, v{S+1}, v{S+2}
    v_max3_f32 v109, v{S+3}, v{S+4}, v{S+5}
    v_max3_f32 v108, v108, v{S+6}, v{S+7}
    v_max_f32 v108, v108, v109
    """)
    for sw in (16, 32):
        a(f"v_mov_b32 v109, v108\ns_nop 1\nv_permlane{sw}_swap_b32 v108, v109\nv_max_f32 v108, v108, v109")
    a("v_mul_f32 v108, s49, v108")
    for i in range(0, 8, 2):
        a(f"v_pk_fma_f32 {R2(S+i)}, {R2(S+i)}, s[48:49], v[108:109] op_sel:[0,1,0] op_sel_hi:[1,1,0] neg_lo:[0,0,1] neg_hi:[0,0,1]")
    for i in range(8): a(f"v_exp_f32 v{S+i}, v{S+i}")
    a("v_min_u32 v108, -2, v108")
    for i in range(4): a(f"v_cvt_pk_bf16_f32 v{S+i}, v{S+2*i}, v{S+2*i+1}")
    def msk(e):
        for i in range(4): a(f"v_and_b32 v{PM+4*e+i}, v{S+i}, v{MK+e}")
    def pv(e):
        for hf in range(2):
            a(f"{MF} {R4(DD+4*hf)}, {R4(VT+4*(4*hf+e))}, {R4(PM+4*e)}, {'0' if e==0 else R4(DD+4*hf)}")
    msk(0)
    a(f"{MF} {R4(LD)}, {R4(ONE)}, {R4(S)}, 0")
    if npre == 4:
        msk(1); a.stamp("V"); pv(0); msk(2); pv(1); msk(3); pv(2); pv(3)
    else:
        msk(1); msk(2); msk(3)
        for tp in range(npre, 4): vperm(tp)
        a.stamp("V")
        a("s_nop 1")
        for e in range(4): pv(e)
    a(f"""
    s_mov_b64 exec, 0xf
    ds_write_b32 v16, v{LD} offset:{L_L}
    s_mov_b64 exec, -1
    s_nop 3
    ds_write_b128 v15, {R4(DD)} offset:{L_O}
    ds_write_b128 v15, {R4(DD+4)} offset:{L_O+4*OSTR}
    s_mov_b64 exec, 0xf
    ds_write_b32 v16, v108 offset:{L_M}
    s_mov_b64 exec, -1
    """)
    a.stamp("PV")
    a(f"""
    s_cmp_ge_u32 s3, 2
    s_cbranch_scc1 L_nocomb
L_cmb:
    ds_read_b128 {R4(S)}, v18 offset:{L_M}
    ds_read_b128 {R4(S+4)}, v18 offset:{L_L}
    """)
    for w in range(4):
        a(f"ds_read_b128 {R4(PM+4*w)}, v17 offset:{L_O+8*OSTR*w}")
    a.lg(5)
    a(f"""
    v_max3_u32 v110, v{S}, v{S+1}, v{S+2}
    v_max3_f32 v108, v{S}, v{S+1}, v{S+2}
    v_max_u32 v110, v110, v{S+3}
    v_max_f32 v108, v108, v{S+3}
    v_cmp_eq_u32 vcc, -1, v110
    s_cbranch_vccnz L_cmb
    v_pk_add_f32 {R2(S)}, {R2(S)}, v[108:109] op_sel_hi:[1,0] neg_lo:[0,1] neg_hi:[0,1]
    v_pk_add_f32 {R2(S+2)}, {R2(S+2)}, v[108:109] op_sel_hi:[1,0] neg_lo:[0,1] neg_hi:[0,1]
    """)
    for w in range(4): a(f"v_exp_f32 v{S+w}, v{S+w}")
    a.lg(4)
    a(f"""
    v_pk_mul_f32 {R2(S+4)}, {R2(S)}, {R2(S+4)}
    v_pk_fma_f32 {R2(S+4)}, {R2(S+2)}, {R2(S+6)}, {R2(S+4)}
    v_add_f32 v110, v{S+4}, v{S+5}
    v_rcp_f32 v111, v110
    v_log_f32 v110, v110
    s_waitcnt lgkmcnt(0)
    """)
    a.pkmul(DD, PM, S); a.pkmul(DD+2, PM+2, S)
    a(f"v_add_f32 v108, v108, v110\nv_mov_b32 v109, v{TL}")
    for w in range(1, 4):
        a.pkfma(DD, PM+4*w, S+w); a.pkfma(DD+2, PM+4*w+2, S+w)
    a.pkmul(DD, DD, 111); a.pkmul(DD+2, DD+2, 111)
    a.tag(DD)
    a(f"global_store_dwordx4 v19, {R4(DD)}, {WS}")
    a.setexec(0x00010001)
    a(f"""
    global_store_dwordx2 v20, v[108:109], {WS}
    s_mov_b64 exec, -1
    s_cmp_lg_u32 s54, 0
    s_cbranch_scc1 L_fbO
L_nocomb:
    """)
    cold("L_fbO:")
    cold.tag(DD, TG)
    cold(f"v_mov_b32 v109, v{TG}\nglobal_store_dwordx4 v19, {R4(DD)}, {WG} sc1")
    cold.setexec(0x00010001)
    cold(f"global_store_dwordx2 v20, v[108:109], {WG} sc1\ns_mov_b64 exec, -1\ns_branch L_nocomb")
    a.setflag(FS)
    a.stamp("pubO")
    if opts.get("fx", 1): a.waitflag(FX)
    a.stamp("FX")
    LS, OD = 48, 56
    def odata(g):
        for k in range(4): g(f"global_load_dwordx4 {R4(OD+4*k)}, v43, {PB} offset:{2048*k-4096} sc1")
    if not opts.get("spec", 1): a("s_mov_b64 vcc, -1\ns_branch L_po_retry")
    a("L_po:")
    for k in range(2): a(f"global_load_dwordx4 {R4(LS+4*k)}, v21, {PB} offset:{16*k} sc1")
    odata(a)
    if opts.get("fw") == "pre": a.setflag(FY)
    a(f"""
    s_mov_b64 exec, -1
    s_waitcnt vmcnt(4)
    v_xor_b32 v76, s60, v{LS+1}
    v_xor_b32 v77, s60, v{LS+3}
    v_xor_b32 v78, s60, v{LS+5}
    v_or3_b32 v76, v76, v77, v78
    v_xor_b32 v77, s60, v{LS+7}
    v_or_b32 v76, v76, v77
    v_cmp_ne_u32 vcc, 0, v76
    s_cbranch_vccnz L_po_retry
L_po_ok:
    v_max3_f32 v76, v{LS}, v{LS+2}, v{LS+4}
    v_max_f32 v76, v76, v{LS+6}
    s_nop 1
    v_max_f32_dpp v76, v76, v76 row_ror:8 {DPP}
    v_mov_b32 v77, v76
    s_nop 1
    v_permlane16_swap_b32 v76, v77
    v_max_f32 v76, v76, v77
    v_mov_b32 v77, v76
    s_nop 1
    v_permlane32_swap_b32 v76, v77
    v_max_f32 v76, v76, v77
    v_sub_f32 v80, v{LS}, v76
    v_sub_f32 v81, v{LS+2}, v76
    v_sub_f32 v82, v{LS+4}, v76
    v_sub_f32 v83, v{LS+6}, v76
    v_exp_f32 v80, v80
    v_exp_f32 v81, v81
    v_exp_f32 v82, v82
    v_exp_f32 v83, v83
    s_nop 0
    v_pk_add_f32 v[84:85], v[80:81], v[82:83]
    v_add_f32 v84, v84, v85
    v_mov_b32 v85, v84
    s_nop 1
    v_permlane32_swap_b32 v84, v85
    v_add_f32 v84, v84, v85
    v_mov_b32 v85, v84
    s_nop 1
    v_permlane16_swap_b32 v84, v85
    v_add_f32 v84, v84, v85
L_pd:
    s_waitcnt vmcnt(0)
    """)
    a.chk([OD, OD+4, OD+8, OD+12], 76, 79)
    a(f"""
    v_cmp_ne_u32 vcc, 0, v79
    s_cbranch_vccnz L_pd_retry
L_pd_ok:
    """)
    a.stamp("O_ok")
    cold(f"""
L_po_retry:
    s_sub_u32 s47, s47, 1
    s_cbranch_scc1 L_po_giveup
    s_cmp_lg_u32 s54, 0
    s_cbranch_scc1 L_po_fb
    s_mov_b64 exec, vcc
    {"s_sleep %d" % opts["oslp"] if opts.get("oslp") else ""}
    """)
    for k in range(2): cold(f"global_load_dwordx4 {R4(LS+4*k)}, v21, {PB} offset:{16*k} sc1")
    cold(f"""
    s_waitcnt vmcnt(0)
    v_xor_b32 v76, s60, v{LS+1}
    v_xor_b32 v77, s60, v{LS+3}
    v_xor_b32 v78, s60, v{LS+5}
    v_or3_b32 v76, v76, v77, v78
    v_xor_b32 v77, s60, v{LS+7}
    v_or_b32 v76, v76, v77
    v_cmp_ne_u32 vcc, 0, v76
    s_andn2_b64 exec, exec, vcc
    s_cbranch_execz L_po_retry
    """)
    odata(cold)
    cold(f"""
    s_cbranch_vccnz L_po_retry
L_po_giveup:
    s_mov_b64 exec, -1
    s_branch L_po_ok
L_po_fb:
    """)
    cold.toggle()
    cold(f"""
    s_branch L_po
L_pd_retry:
    s_sub_u32 s47, s47, 1
    s_cbranch_scc1 L_pd_ok
    s_mov_b64 exec, vcc
    """)
    odata(cold)
    cold("s_mov_b64 exec, -1\ns_branch L_pd")
    a(f"v_add_f32_dpp v84, v84, v84 row_ror:8 {DPP}")
    a.pkmul(OD, OD, 80); a.pkmul(OD+2, OD+2, 80)
    a("v_rcp_f32 v84, v84")
    for k in range(1, 4):
        a.pkfma(OD, OD+4*k, 80+k); a.pkfma(OD+2, OD+4*k+2, 80+k)
    a(f"""
    s_nop 1
    v_permlane32_swap_b32 v{OD}, v{OD+2}
    v_permlane32_swap_b32 v{OD+1}, v{OD+3}
    v_pk_add_f32 {R2(OD)}, {R2(OD)}, {R2(OD+2)}
    s_nop 1
    v_permlane16_swap_b32 v{OD}, v{OD+1}
    v_add_f32 v{OD}, v{OD}, v{OD+1}
    s_nop 1
    v_add_f32_dpp v{OD}, v{OD}, v{OD} row_ror:8 {DPP}
    v_mul_f32 v{OD}, v{OD}, v84
    v_cvt_pk_bf16_f32 v{OD}, v{OD}, v{OD}
    ds_write_b16 v22, v{OD} offset:{L_OV}
    """)
    a.setflag(FO)
    a.stamp("o_wr")
    a.cnt("#po")
    a("s_branch L_fin" if opts.get("stamps") else "s_endpgm")

    TR, QD = 64, 88
    p(f"""
    s_and_b32 s31, s29, 3
    s_lshl_b32 s31, s31, 2
    s_add_u32 s31, s31, s3
    s_lshl_b32 s31, s31, 18
    s_lshr_b32 s32, s30, 2
    s_lshl_b32 s32, s32, 7
    s_add_u32 s31, s31, s32
    v_and_b32 v43, 16, v1
    v_lshlrev_b32 v43, 1, v43
    v_xor_b32 v43, v43, v13
    v_lshl_add_u32 v3, v12, 13, v43
    v_add_u32 v3, s31, v3
    v_xor_b32 v4, 0x10040, v3
    v_add_u32 v7, 0x20000, v3
    v_xor_b32 v6, 0x30040, v3
    {"s_lshl_b32 s31, s30, 2" + chr(10) + "s_add_u32 s31, s31, s3" + chr(10) + "s_lshl_b32 s31, s31, 12" + chr(10) + "v_add_u32 v3, s31, v2" + chr(10) + "v_add_u32 v4, 1024, v3" + chr(10) + "v_add_u32 v7, 2048, v3" + chr(10) + "v_add_u32 v6, 3072, v3" if "q" in str(opts.get("wlin", "")) else ""}
    s_lshl_b32 m0, s3, 12
    s_setprio 2
    s_waitcnt lgkmcnt(0)
    """)
    p.stamp("karg")
    p.vmem("x", f"global_load_dwordx4 v[16:19], v2, {X}")
    for i in range(4):
        p.vmem(f"wq{i}", f"global_load_lds_dwordx4 v{(3,4,7,6)[i]}, {WQ}{nts('q')}")
        if i < 3: p("s_add_u32 m0, m0, 1024\ns_nop 0")
    p(f"s_load_dword s36, {WS}, 0")
    p("s_barrier")
    p("; HEAD_END")
    consts(p)
    p(f"""
    s_and_b32 s33, s29, 7
    s_lshl_b32 s31, s33, {3 if vote else 2}
    s_add_u32 s31, s31, s3
    s_lshl_b32 s31, s31, 11
    s_lshl_b32 s32, s52, 6
    s_add_u32 s31, s31, s32
    s_add_u32 s31, s31, {YB}
    v_lshl_add_u32 v39, v10, 4, s31         ; Y voff
    {"v_and_b32 v44, 1, v1" if vote else ""}
    {"v_lshl_add_u32 v39, v44, 13, v39" if vote else ""}
    s_lshl_b32 s31, s30, 11
    s_add_u32 s31, s31, {OB}
    s_mov_b32 s32, {0 if opts.get("pre", 1) == 2 else 15}
    s_lshl_b32 s48, s30, 9
    s_add_u32 s48, s48, {GB}
    s_cmp_eq_u32 s3, 1
    s_cselect_b32 s31, s48, s31
    s_cselect_b32 s32, 3, s32
    s_lshl_b32 s48, s30, 8
    s_add_u32 s48, s48, {QB}
    s_cmp_eq_u32 s3, 2
    s_cselect_b32 s31, s48, s31
    s_cselect_b32 s32, 1, s32
    s_lshl_b32 s48, s30, 5
    s_add_u32 s48, s48, {MLB}
    s_cmp_eq_u32 s3, 3
    s_cselect_b32 s31, s48, s31
    s_cselect_b32 s32, 0, s32
    v_and_b32 v44, s32, v1
    v_lshl_add_u32 v44, v44, 7, s31
    v_cmp_gt_u32 vcc, 16, v1
    v_cmp_gt_u32 s[50:51], 32, v1
    s_nop 0
    v_cndmask_b32 v44, v38, v44, vcc
    v_cndmask_b32 v44, v39, v44, s[50:51]
    """)
    if opts.get("pre", 1): p.vmem("pre", f"global_load_dword v{DUM}, v44, {WS}{nts('p')}")
    p(f"""
    s_and_b32 s53, s29, 24
    s_add_u32 s53, s53, s28
    s_lshl_b32 s32, s33, 2
    s_add_u32 s32, s32, s3
    s_mul_i32 s32, s32, {16*3584}
    s_lshl_b32 s31, s53, 7
    s_add_u32 s32, s32, s31
    v_mul_u32_u24 v11, 3584, v12
    v_add3_u32 v11, v11, v43, s32
    v_add_u32 v14, {8*3584}, v11
    v_xor_b32 v14, 64, v14
    v_lshl_add_u32 v37, v12, 10, v43
    s_lshl_b32 s31, s52, 2
    s_add_u32 s31, s31, s3
    s_lshl_b32 s31, s31, 15
    s_lshl_b32 s32, s33, 7
    s_add_u32 s31, s31, s32
    v_add_u32 v36, s31, v37
    s_lshl_b32 s31, s53, 2
    s_add_u32 s31, s31, s3
    s_lshl_b32 s31, s31, 14
    s_add_u32 s31, s31, s32
    v_add_u32 v37, s31, v37
    v_bfe_u32 v3, v1, 2, 2
    v_lshl_add_u32 v3, v10, 3, v3
    v_lshlrev_b32 v3, 7, v3
    v_and_b32 v4, 3, v1
    v_lshl_add_u32 v3, v4, 3, v3
    s_lshl_b32 s31, s3, 5
    v_add_u32 v3, s31, v3
    v_bfe_u32 v4, v1, 3, 2
    v_lshlrev_b32 v4, 5, v4
    v_xor_b32 v3, v3, v4
    s_and_b32 s31, s29, 3
    s_lshl_b32 s31, s31, 8
    v_lshl_add_u32 v4, v10, 4, s31
    s_lshl_b32 s31, s33, 7
    v_lshl_add_u32 v6, v10, 4, s31
    s_lshl_b32 s49, s3, 11
    """)
    wl = str(opts.get("wlin", ""))
    if "g" in wl: p("s_lshl_b32 s31, s30, 2\ns_add_u32 s31, s31, s3\ns_mul_i32 s31, s31, 1792\nv_add_u32 v11, s31, v2\nv_add_u32 v14, 768, v11")
    if "o" in wl: p("s_lshl_b32 s31, s30, 14\ns_lshl_b32 s32, s3, 10\ns_add_u32 s31, s31, s32\ns_and_b32 s32, s30, 1\ns_lshl_b32 s32, s32, 12\ns_and_b32 s31, s31, 0xffff8fff\ns_add_u32 s31, s31, s32\nv_add_u32 v36, s31, v2")
    early = opts.get("early", 0)
    def gu_issue():
        for i in range(2):
            for m, (nm, P) in enumerate((("g", G), ("u", U))):
                p(f"s_add_u32 m0, s49, {L_G + 1024*i + 8192*m}\ns_nop 0")
                p.vmem(f"{nm}{i}", f"global_load_lds_dwordx4 v{11 if i==0 else 14}, {P}{NT}")
    def wd_issue():
        for n in range(2):
            p(f"s_add_u32 m0, s49, {L_WO + 16384 + 1024*n}\ns_nop 0")
            p.vmem(f"w{4+n}", f"global_load_lds_dwordx4 v37, {D}{NT}")
            if n == 0: p("v_xor_b32 v37, 0x2040, v37")
    if early >= 1:
        p("s_cmp_ge_u32 s53, 28\ns_cselect_b64 exec, 1, -1\ns_cbranch_scc0 L_ef\nv_mov_b32 v11, 0\nv_mov_b32 v14, 0\nv_mov_b32 v37, 0\nL_ef:")
        gu_issue()
        if early >= 2: wd_issue()
        p("s_mov_b64 exec, -1")
    p.wait("x")
    p.stamp("x")
    xs = list(range(20, 28))
    for i in range(4):
        p(f"v_lshlrev_b32 v{xs[2*i]}, 16, v{16+i}\nv_and_b32 v{xs[2*i+1]}, 0xffff0000, v{16+i}")
    p("v_readfirstlane_b32 s50, v20\ns_nop 1")
    for i in range(4):
        p(f"v_pk_add_f32 {R2(48+2*i)}, {R2(20+2*i)}, s[50:51] op_sel_hi:[1,0] neg_lo:[0,1] neg_hi:[0,1]")
    p(f"""
    v_pk_mul_f32 v[30:31], v[48:49], v[48:49]
    v_pk_add_f32 v[28:29], v[48:49], v[50:51]
    v_pk_fma_f32 v[30:31], v[50:51], v[50:51], v[30:31]
    v_pk_add_f32 v[28:29], v[28:29], v[52:53]
    v_pk_fma_f32 v[30:31], v[52:53], v[52:53], v[30:31]
    v_pk_add_f32 v[28:29], v[28:29], v[54:55]
    v_pk_fma_f32 v[30:31], v[54:55], v[54:55], v[30:31]
    v_add_f32 v28, v28, v29
    v_add_f32 v29, v30, v31
    s_nop 0
    """)
    for r in (1, 2, 4, 8):
        p(f"v_add_f32_dpp v28, v28, v28 row_ror:{r} {DPP}\nv_add_f32_dpp v29, v29, v29 row_ror:{r} {DPP}\ns_nop 0")
    p(f"""
    s_nop 0
    v_permlane32_swap_b32 v28, v29
    v_add_f32 v28, v28, v29
    v_mov_b32 v29, v28
    s_nop 1
    v_permlane16_swap_b32 v28, v29
    v_add_f32 v28, v28, v29
    v_mul_f32 v28, {hx(f32(1/512))}, v28
    s_nop 0
    v_readlane_b32 s32, v28, 0
    v_readlane_b32 s48, v28, 32
    s_nop 0
    v_mov_b32 v28, s32
    v_fma_f32 v29, -v28, v28, s48
    v_add_f32 v28, s50, v28
    v_max_f32 v29, 0, v29
    v_cvt_pk_bf16_f32 v28, 0, v28
    v_cvt_pk_bf16_f32 v29, 0, v29
    v_add_f32 v29, {hx(f32(1e-5))}, v29
    v_cvt_pk_bf16_f32 v29, 0, v29
    v_sqrt_f32 v31, v29
    """)
    for i in range(4):
        p(f"v_pk_add_f32 {R2(20+2*i)}, {R2(20+2*i)}, v[28:29] op_sel_hi:[1,0] neg_lo:[0,1] neg_hi:[0,1]")
    p("v_cvt_pk_bf16_f32 v29, 0, v31\nv_rcp_f32 v30, v29")
    for i in range(8): p(f"v_cvt_pk_bf16_f32 v{xs[i]}, 0, v{xs[i]}")
    for i in range(4): p.pkmul(20+2*i, 20+2*i, 30)
    for i in range(4):
        p(f"v_cvt_pk_bf16_f32 v{16+i}, v{xs[2*i]}, v{xs[2*i+1]}")
    p(f"ds_write_b128 v2, v[16:19] offset:{L_XN}")
    for i in range(4):
        p(f"ds_read_b128 {R4(20+4*i)}, v4 offset:{L_XN+64*i}")
    p(f"ds_read_b128 v[48:51], v6 offset:{L_XN}\nds_read_b128 v[52:55], v6 offset:{L_XN+64}")
    p.stamp("ln")
    p.wait("wq3")
    p.setflag(F1)
    p("s_waitcnt lgkmcnt(0)")
    tags(p)
    def trr(n, base):
        for s in range(n):
            p(f"ds_read_b64_tr_b16 v[{TR+4*s}:{TR+4*s+1}], v3 offset:{base+4096*s}")
            p(f"ds_read_b64_tr_b16 v[{TR+4*s+2}:{TR+4*s+3}], v3 offset:{base+4096*s+512}")
    p.waitflag(F1, lambda: trr(4, L_WQ), 8)
    p.stamp("S1")
    for s in range(4):
        p.lg(6-2*s)
        p(f"{MF} {R4(QD)}, {R4(TR+4*s)}, {R4(20+4*s)}, {'0' if s==0 else R4(QD)}")
    p.setexec(0x00010001)
    p.vmem("hello", f"global_store_dword v38, v{TL}, {WS}")
    p("s_nop 4")
    p.tag(QD)
    p.vmem("pubq", f"global_store_dwordx4 v5, {R4(QD)}, {WS}")
    p(f"ds_write_b128 v41, {R4(QD)} offset:{L_QT}")
    p("s_mov_b64 exec, -1")
    if opts.get("gg") == "p":
        p("s_cmp_ge_u32 s53, 28\ns_cbranch_scc1 L_sg")
        gu_issue()
        p("L_sg:")
        early = 1
    p.setflag(FP)
    if opts.get("so", 0) & 4:
        if opts["so"] & 8: p.waitflag(FQ)
        p("s_branch L_fin")
    p.stamp("pubq")
    p(f"""
    s_lshl_b32 s31, s30, 2
    s_add_u32 s31, s31, s3
    s_lshl_b32 s31, s31, 7
    s_add_u32 s31, s31, {GB}
    v_and_b32 v18, 1, v1
    v_lshlrev_b32 v18, 6, v18
    v_lshl_add_u32 v18, v10, 4, v18
    v_add_u32 v18, s31, v18
    s_and_b32 s31, s31, 0xfffff1ff
    v_lshl_add_u32 v5, v12, 9, v13
    v_add_u32 v5, s31, v5
    s_mov_b32 s50, 0x00020002
    s_mov_b32 s51, 0x00020002
    v_and_b32 v15, 3, v1
    v_lshlrev_b32 v15, 3, v15
    v_lshl_add_u32 v15, v10, 1, v15
    s_lshl_b32 s31, s2, 5
    v_add_u32 v17, s31, v15
    s_lshl_b32 s31, s3, 5
    v_add_u32 v15, s31, v15
    v_lshlrev_b32 v4, 4, v10
    s_and_b32 s31, s2, {28 if vote else 0}
    s_add_u32 s31, s31, s2
    s_lshl_b32 s31, s31, 11
    s_add_u32 s31, s31, {YB}
    v_add_u32 v13, s31, v2
    s_mov_b32 s47, {SPIN}
    s_lshl_b32 s46, s3, 12
    """)
    hold = opts.get("hold", 4)
    def wo_issue(g):
        for n in range(4):
            if n == 4 - hold:
                if g is p and early < 1 and opts.get("gfirst", 0): gcomp()
                g.waitflag(FS)
                if opts.get("fw") == "pre":
                    g.setflag(FX)
                    if g is p: p.vmem("pg", f"global_load_dwordx4 v[56:59], v5, {PB} sc1")
                    g.waitflag(FY)
            g(f"s_add_u32 m0, s46, {L_WO + 1024*n}\ns_nop 0")
            g.vmem(f"w{n}", f"global_load_lds_dwordx4 v36, {WO}{NT}")
            if n < 3: g(f"v_xor_b32 v36, {hx((0x2040, 0x6040, 0x2040)[n])}, v36")
    LG = {"w": FW, "q": FQ, "v": FV}[opts.get("lg", "w")]
    sp1 = opts.get("sp1", 0); sp2 = opts.get("sp2", 0); spd = opts.get("spd", 0)
    def spf(g, lo, hi, base="s[14:15]"):
        for r in range(lo, hi): g(f"s_load_dword s63, {base}, {1024*r}")
    spf(p, 0, sp1)
    p("s_cmp_ge_u32 s53, 28\ns_cbranch_scc1 L_noffn")
    def gcomp():
        p.wait("u1")
        p.setflag(FG)
        p.stamp("gu")
        p.waitflag(FG, lambda: trr(4, L_G), 8)
        for m in range(2):
            for s in range(2):
                p.lg(6-2*(2*m+s))
                p(f"{MF} {R4(QD+4*m)}, {R4(TR+8*m+4*s)}, {R4(48+4*s)}, {'0' if s==0 else R4(QD+4*m)}")
        p.setexec(0x00030003)
        p("s_nop 5")
        for i in range(4): p(f"v_cndmask_b32 v{QD+i}, v{QD+i}, v{QD+4+i}, s[50:51]")
        p.tag(QD)
        p.vmem("pubg", f"global_store_dwordx4 v18, {R4(QD)}, {WS}")
        p("s_mov_b64 exec, -1")
        p.stamp("pubg")
    if early >= 1: gcomp()
    p("s_setprio 0")
    if early < 1 and opts.get("gg", "w") == "v":
        p.waitflag(FV)
        if opts.get("ggprio"): p("s_setprio 2")
        gu_issue()
        p("s_setprio 0")
    p.waitflag(LG)
    if early >= 1 and opts.get("pgearly", 0): p.vmem("pg", f"global_load_dwordx4 v[56:59], v5, {PB} sc1")
    if early < 1 and opts.get("gg", "w") == "w": gu_issue()
    if early < 2 and not spd: wd_issue()
    spf(p, sp1, min(32, sp1+sp2))
    if spd: spf(p, 0, 16, "s[34:35]")
    late_wo = lambda: wo_issue(p)
    if not (early >= 1 and opts.get("pgearly", 0)): wo_issue(p)
    if spd: wd_issue()
    if opts.get("so"): p("s_waitcnt vmcnt(0)\ns_branch L_fin")
    p.stamp("iss")
    if early < 1 and not (opts.get("gfirst", 0) and hold): gcomp()
    if (early >= 1 and opts.get("pgearly", 0)) or opts.get("fw") == "pre":
        p.wait("pg"); p("s_branch L_pg1")
    else:
        if opts.get("fw", "none") != "none": p.wait(opts.get("fw", "none"))
        if opts.get("xdelay"): p(f"s_sleep {opts['xdelay']}")
        p.setflag(FX)
        p.stamp("fw")
    hfirst = (early >= 1 and opts.get("pgearly", 0)) or opts.get("fw") == "pre"
    if opts.get("fin", 1) and not hfirst:
        p("s_waitcnt vmcnt(0)")
        p(f"global_load_dwordx4 v[56:59], v5, {PB} sc1")
        p.setflag(FD)
        p.waitflag(FD, lambda: trr(6, L_WO), 12)
        p("s_branch L_pg0")
    p(f"""
L_pg:
    global_load_dwordx4 v[56:59], v5, {PB} sc1
L_pg0:
    s_waitcnt vmcnt(0)
L_pg1:
    """)
    p.chk([56], 60, 63)
    p(f"""
    v_cmp_ne_u32 vcc, 0, v63
    s_cbranch_vccnz L_pg_retry
L_pg_ok:
    s_mov_b64 exec, -1
    """)
    cold(f"""
L_pg_retry:
    s_sub_u32 s47, s47, 1
    s_cbranch_scc1 L_pg_ok
    s_cmp_lg_u32 s47, {SPIN-TFALL}
    s_cbranch_scc1 L_pg_nf
    s_mov_b32 s54, 1
    """)
    cold.setexec(0x00030003)
    cold.tag(QD, TG)
    cold(f"global_store_dwordx4 v18, {R4(QD)}, {WG} sc1\nL_pg_nf:\ns_mov_b64 exec, vcc")
    cold.toggle()
    cold("s_branch L_pg")
    c1 = -2*0.7978845608028654*LOG2E
    p(f"""
    v_permlane32_swap_b32 v56, v58
    v_permlane32_swap_b32 v57, v59
    v_pk_add_f32 v[56:57], v[56:57], v[58:59]
    s_nop 1
    v_permlane16_swap_b32 v56, v57
    v_add_f32 v56, v56, v57
    s_nop 1
    v_add_f32_dpp v56, v56, v56 row_ror:8 {DPP}
    v_cvt_pk_bf16_f32 v56, 0, v56
    v_mul_f32 v57, v56, v56
    v_mul_f32 v57, {hx(f32(0.044715))}, v57
    v_mov_b32_dpp v58, v56 row_ror:4 {DPP}
    v_fma_f32 v57, v57, v56, v56
    v_mul_f32 v57, {hx(f32(c1))}, v57
    v_exp_f32 v57, v57
    s_nop 0
    v_add_f32 v57, 1.0, v57
    v_rcp_f32 v57, v57
    s_nop 0
    v_mul_f32 v56, v56, v57
    v_cvt_pk_bf16_f32 v56, 0, v56
    v_mul_f32 v56, v56, v58
    v_cvt_pk_bf16_f32 v56, v56, v56
    """)
    p.setexec(0x000f000f)
    p(f"ds_write_b16 v15, v56 offset:{L_OV+256}\ns_mov_b64 exec, -1")
    p.stamp("h")
    if early >= 1 and opts.get("pgearly", 0):
        late_wo()
        if opts.get("fw", "none") != "none": p.wait(opts["fw"])
        p.setflag(FX); p.stamp("fw")
    if opts.get("fin", 1) == 0 or hfirst:
        p("s_waitcnt vmcnt(0)")
        p.setflag(FD)
        p.stamp("allin")
        def dreads():
            p(f"ds_read_b128 v[48:51], v4 offset:{L_OV+256}\nds_read_b128 v[52:55], v4 offset:{L_OV+320}")
            trr(6, L_WO)
        p.waitflag(FD, dreads, 14)
        p(f"""
        s_waitcnt lgkmcnt(0)
        {MF} {R4(QD)}, {R4(TR+16)}, v[48:51], 0
        {MF} {R4(QD)}, {R4(TR+20)}, v[52:55], {R4(QD)}
L_final:
        """)
    else:
        p.setflag(FY)
        p.stamp("allin")
        p.waitflag(FY, lambda: p(f"ds_read_b128 v[48:51], v4 offset:{L_OV+256}\nds_read_b128 v[52:55], v4 offset:{L_OV+320}"), 2)
        p(f"""
        s_waitcnt lgkmcnt(0)
        {MF} {R4(QD)}, {R4(TR+16)}, v[48:51], 0
        {MF} {R4(QD)}, {R4(TR+20)}, v[52:55], {R4(QD)}
L_final:
        """)
    nf = Gen(opts)
    nf("L_noffn:\ns_setprio 0")
    nf.waitflag(LG)
    spf(nf, sp1, min(32, sp1+sp2))
    wo_issue(nf)
    nf("s_waitcnt vmcnt(0)"); nf.setflag(FX)
    if opts.get("so"): nf("s_waitcnt vmcnt(0)\ns_branch L_fin")
    for i in range(4): nf(f"v_mov_b32 v{QD+i}, 0")
    nf("s_waitcnt vmcnt(0)")
    nf.setflag(FD)
    def nreads():
        for s in range(4):
            nf(f"ds_read_b64_tr_b16 v[{TR+4*s}:{TR+4*s+1}], v3 offset:{L_WO+4096*s}")
            nf(f"ds_read_b64_tr_b16 v[{TR+4*s+2}:{TR+4*s+3}], v3 offset:{L_WO+4096*s+512}")
    nf.waitflag(FD, nreads, 8)
    nf("s_branch L_final")
    if opts.get("xe", 1): p(f"v_and_b32 v17, 0x3fe, v17\nglobal_load_ushort v61, v17, {X}")
    if vote: p(f"s_lshl_b32 s31, s28, 9\ns_add_u32 s31, s31, {VB}\nv_lshl_add_u32 v19, v1, 3, s31\nglobal_load_dwordx2 v[62:63], v19, {WS} sc1")
    def oreads():
        for s in range(4): p(f"ds_read_b128 {R4(20+4*s)}, v4 offset:{L_OV+64*s}")
    p.waitflag(FO, oreads, 4)
    for s in range(4):
        p.lg(3-s)
        p(f"{MF} {R4(QD)}, {R4(TR+4*s)}, {R4(20+4*s)}, {R4(QD)}")
    p.setexec(0x00030003 if vote else 0x00010001)
    p("s_nop 5")
    p.tag(QD, TG)
    p(f"global_store_dwordx4 v39, {R4(QD)}, {WS} sc1")
    p("s_mov_b64 exec, -1")
    p.stamp("pubY")
    VOTE = "" if not vote else f'''s_xor_b32 s32, s55, 1
    s_waitcnt vmcnt(1)
    v_cmp_eq_u32 vcc, s32, v62
    v_cmp_eq_u32 s[50:51], s32, v63
    s_bcnt1_i32_b64 s31, vcc
    s_bcnt1_i32_b64 s32, s[50:51]
    s_add_u32 s31, s31, s32
    {"v_mov_b32 v62, s31" + chr(10) + "s_lshl_b32 s32, s2, 2" + chr(10) + "v_mov_b32 v63, s32" + chr(10) + "global_store_dword v63, v62, s[24:25]" if opts.get("vdbg") else ""}
    s_cmp_gt_u32 s31, 64
    s_cselect_b32 s31, 8192, 0
    v_add_u32 v13, s31, v13'''
    p(f"""
    s_cmp_ge_u32 s2, 32
    s_cbranch_scc1 L_fin
    s_cmp_lg_u32 s3, 0
    s_cbranch_scc1 L_fin
    {"" if opts.get("xe", 1) else "global_load_ushort v61, v17, " + X}
    s_mov_b32 s47, {SPIN}
    {VOTE}
L_py:
    global_load_dwordx4 v[48:51], v13, {WS} sc1
    global_load_dwordx4 v[52:55], v13, {WS} offset:1024 sc1
    s_waitcnt vmcnt(0)
    """)
    p.chk([48, 52], 56, 59, "s36")
    p(f"""
    v_cmp_ne_u32 vcc, 0, v59
    s_cbranch_vccz L_py_ok
    s_mov_b64 exec, vcc
    s_sub_u32 s47, s47, 1
    s_cbranch_scc0 L_py
L_py_ok:
    s_mov_b64 exec, -1
    v_pk_add_f32 v[48:49], v[48:49], v[52:53]
    v_pk_add_f32 v[50:51], v[50:51], v[54:55]
    v_lshlrev_b32 v61, 16, v61
    s_nop 0
    v_permlane32_swap_b32 v48, v50
    v_permlane32_swap_b32 v49, v51
    v_pk_add_f32 v[48:49], v[48:49], v[50:51]
    s_nop 1
    v_permlane16_swap_b32 v48, v49
    v_add_f32 v48, v48, v49
    s_nop 1
    v_add_f32_dpp v48, v48, v48 row_ror:4 {DPP}
    s_nop 1
    v_add_f32_dpp v48, v48, v48 row_ror:8 {DPP}
    """)
    p.setexec(0x000f000f)
    p(f"""
    v_add_f32 v48, v48, v61
    v_cvt_pk_bf16_f32 v48, v48, v48
    global_store_short v17, v48, {OUT}
    s_cmp_lg_u32 s2, 0
    s_cbranch_scc1 L_fin
    s_mov_b64 exec, 1
    global_store_dword v40, v{TG}, {WS}
L_fin:
    """)
    E = NSTAMP - 1
    if "amp2" in opts:
        p(f"""
        s_memrealtime s[{64+2*E}:{65+2*E}]
        s_cmp_lg_u32 s62, 0
        s_cbranch_scc1 L_end
        s_mov_b64 exec, 1
        s_lshl_b32 s50, s2, 2
        s_add_u32 s50, s50, 0x300000
        v_mov_b32 v3, s50
        v_mov_b32 v4, s64
        global_store_dword v3, v4, {WS} sc1
        s_cmp_lg_u32 s2, 0
        s_cbranch_scc1 L_end
        s_mov_b64 exec, -1
        s_sleep 100
        v_add_u32 v3, 0x300000, v2
        global_load_dwordx4 v[4:7], v3, {WS} sc1
        s_waitcnt vmcnt(0) lgkmcnt(0)
        v_sub_u32 v4, s{64+2*E}, v4
        v_sub_u32 v5, s{64+2*E}, v5
        v_sub_u32 v6, s{64+2*E}, v6
        v_sub_u32 v7, s{64+2*E}, v7
        v_min3_u32 v8, v4, v5, v6
        v_min_u32 v8, v8, v7
        v_max3_u32 v9, v4, v5, v6
        v_max_u32 v9, v9, v7
        v_add3_u32 v4, v4, v5, v6
        v_add_u32 v4, v4, v7
        s_mov_b32 s50, 0
        s_mov_b32 s51, -1
        s_mov_b32 s53, 0
        s_mov_b32 s52, 0
L_a2:
        v_readlane_b32 s31, v4, s52
        v_readlane_b32 s32, v8, s52
        v_readlane_b32 s33, v9, s52
        s_add_u32 s50, s50, s31
        s_min_u32 s51, s51, s32
        s_max_u32 s53, s53, s33
        s_add_u32 s52, s52, 1
        s_cmp_lt_u32 s52, 64
        s_cbranch_scc1 L_a2
        s_mul_i32 s50, s50, {(5,10,0,0)[opts["amp2"]]}
        s_lshr_b32 s50, s50, 8
        s_mul_i32 s51, s51, {(5,0,10,0)[opts["amp2"]]}
        s_mul_i32 s53, s53, {(0,0,0,10)[opts["amp2"]]}
        s_add_u32 s63, s50, s51
        s_add_u32 s63, s63, s53
        s_min_u32 s63, s63, 100000
        s_add_u32 s63, s63, s{64+2*E}
L_amp:
        s_memrealtime s[50:51]
        s_waitcnt lgkmcnt(0)
        s_sub_u32 s61, s50, s63
        s_cmp_lt_i32 s61, 0
        s_cbranch_scc1 L_amp
        """)
    elif "amp" in opts:
        i = opts["amp"]
        p(f"""
        s_memrealtime s[{64+2*E}:{65+2*E}]
        s_waitcnt lgkmcnt(0)
        s_cmp_lg_u32 s2, {opts.get("ampwg", 0)}
        s_cbranch_scc1 L_end
        s_cmp_lg_u32 s62, {opts.get("ampw", 0)}
        s_cbranch_scc1 L_end
        s_sub_u32 s63, s{64+2*i}, s64
        s_mul_i32 s63, s63, 10
        s_min_u32 s63, s63, 100000
        s_add_u32 s63, s63, s{64+2*E}
L_amp:
        s_memrealtime s[50:51]
        s_waitcnt lgkmcnt(0)
        s_sub_u32 s61, s50, s63
        s_cmp_lt_i32 s61, 0
        s_cbranch_scc1 L_amp
        """)
    elif opts.get("stamps"):
        p(f"""
        s_memrealtime s[{64+2*E}:{65+2*E}]
        s_sleep 127
        s_waitcnt lgkmcnt(0)
        s_lshl_b32 s50, s2, 3
        s_add_u32 s50, s50, s62
        s_lshl_b32 s50, s50, 8
        s_add_u32 s50, s50, {STAMP_OFF}
        s_mov_b64 exec, 1
        v_mov_b32 v3, s50
        """)
        for i in ((0, E) if opts.get("light") else range(NSTAMP)):
            p(f"v_mov_b32 v4, s{64+2*i}\nv_mov_b32 v5, s{65+2*i}\nglobal_store_dwordx2 v3, v[4:5], {WS} offset:{8*i}")
    p("s_endpgm")
    al = a.L
    ia = next(i for i, l in enumerate(al) if "HEAD_END" in l)
    ip = next(i for i, l in enumerate(p.L) if "HEAD_END" in l)
    body = (c.L + p.L[:ip] + ["    s_branch L_P2", "L_A1:"] + al[:ia] + ["    s_branch L_A2", "L_P2:"] + p.L[ip+1:]
            + ["L_A2:"] + al[ia+1:] + nf.L + cold.L + ["L_end:", "    s_endpgm"])
    opts["names"] = [f"{p.names[i] if i < len(p.names) else '-'}|{a.names[i] if i < len(a.names) else '-'}" for i in range(E)] + ["end"]
    hdr = open("cdna_kernels/" + NAME + ".s.ref").read().split("; Override")[0]
    return hdr + f"""; @launch grid=(256,1,1) block=(512,1,1) lds={opts.get("lds", LDS_BYTES)}
""" + DOC + f""".amdgcn_target "amdgcn-amd-amdhsa--gfx950"
.text
.globl {NAME}_kernel
.p2align 8
.type {NAME}_kernel,@function
{NAME}_kernel:
""" + "\n".join(body) + f"""
.section .rodata,"a"
.p2align 6
.amdhsa_kernel {NAME}_kernel
  .amdhsa_next_free_vgpr 224
  .amdhsa_next_free_sgpr 102
  .amdhsa_accum_offset 224
  .amdhsa_group_segment_fixed_size 0
  .amdhsa_kernarg_size 96
  .amdhsa_user_sgpr_count 2
  .amdhsa_user_sgpr_kernarg_segment_ptr 1
  .amdhsa_system_sgpr_workgroup_id_x 1
  .amdhsa_float_denorm_mode_32 3
.end_amdhsa_kernel
"""

if __name__ == "__main__":
    out = sys.argv[1]
    opts = {}
    for kv in sys.argv[2:]:
        k, v = kv.split("=")
        try: v = int(v)
        except ValueError: pass
        opts[k] = v
    open(out, "w").write(build(opts))
    if opts.get("stamps") and not opts.get("light"): print(",".join(opts["names"]))
```

```python
import sys, struct
NAME = "parallel_sum__sliding_block_cached__geglu_ffn__decode"
STAMP_OFF = 0x10000000
def f32(x): return struct.unpack("<I", struct.pack("<f", x))[0]
def hx(x): return "0x%08x" % (x & 0xffffffff)
DPP = "row_mask:0xf bank_mask:0xf"
NSTAMP = 17
HB = 0x800; QB = 0x1000; GB = 0x11000; MLB = 0x31000; YB = 0x38000; OB = 0x50000; GOFF = 0x100000
L_WQ = 0x0000; L_G = 0x4000; L_WO = 0x8000; L_XN = 0xE000; L_M = 0xE400; L_L = 0xE440; L_F = 0xE480; L_OV = 0xE540
L_QT = 0xE6C0; L_Q = 0xE800; QSTR = 272; L_O = 0x0000; OSTR = 272
F1, FG, FQ, FW, FP, FV, FD, FO, F1b, FX, FS, FY = [L_F + 16*i for i in range(12)]
LDS_BYTES = 98304
SPIN = 200000; TFALL = 256
LOG2E = 1.4426950408889634
X, K, V, WQ, WO, G, U, D, OUT, WS = "s[4:5]", "s[6:7]", "s[8:9]", "s[10:11]", "s[12:13]", "s[16:17]", "s[18:19]", "s[20:21]", "s[22:23]", "s[26:27]"
WG, PB = "s[56:57]", "s[58:59]"
MF = "v_mfma_f32_16x16x32_bf16"
TL, TG, DUM = 124, 125, 126
def R4(r): return f"v[{r}:{r+3}]"
def R2(r): return f"v[{r}:{r+1}]"
def bc(r):
    return (f"v[{r}:{r+1}]", 0) if r % 2 == 0 else (f"v[{r-1}:{r}]", 1)

DOC = '''; ---------------------------------------------------------------------------------------------
;   waves 0-3 ("P"): LayerNorm, a 128x64 tile of wq, 64x64 tiles of w_gate / w_up, a 128x64 tile of wo
; epoch word found in d_ws).  q / gate-up / o partials use plain stores with a tag bound to the XCC id
; ---------------------------------------------------------------------------------------------
'''

class Gen:
    nsync = 0
    def __init__(self, opts):
        self.L = []; self.o = opts; self.vm = []; self.nst = 1; self.names = ["start"]
    def __call__(self, s):
        for l in s.strip("\n").split("\n"):
            l = l.strip()
            if not l: continue
            self.L.append(l if l.endswith(":") else "    " + l)
    def vmem(self, name, s):
        self(s); self.vm.append(name)
    def wait(self, name):
        idx = max(i for i, n in enumerate(self.vm) if n == name)
        self(f"s_waitcnt vmcnt({len(self.vm) - 1 - idx})")
    def lg(self, n): self(f"s_waitcnt lgkmcnt({n})")
    def stamp(self, label=""):
        if not self.o.get("stamps") or self.o.get("light"): return
        i = self.nst; self.nst += 1
        assert i < NSTAMP - 1
        self(f"s_memrealtime s[{64+2*i}:{65+2*i}]   ; stamp {i} {label}")
        self.names.append(label)
    def cnt(self, label):
        if not self.o.get("stamps") or self.o.get("light"): return
        i = self.nst; self.nst += 1
        self(f"s_sub_u32 s31, {SPIN}, s47\ns_mul_i32 s31, s31, 100\ns_add_u32 s{64+2*i}, s64, s31\ns_addc_u32 s{65+2*i}, s65, 0")
        self.names.append(label)
    def setexec(self, m32):
        self(f"s_mov_b32 exec_lo, {hx(m32)}\ns_mov_b32 exec_hi, {hx(m32)}")
    def tag(self, r, tv=TL):
        for i in range(4): self(f"v_perm_b32 v{r+i}, v{r+i}, v{tv}, s{38+i}")
    def chk(self, units, t, acc, ts=None):
        regs = [r + i for r in units for i in range(4)]
        for r in regs: self(f"v_xor_b32 v{r}, s{98 + (r - units[0]) % 4}, v{r}")
        self(f"v_or3_b32 v{acc}, v{regs[0]}, v{regs[1]}, v{regs[2]}")
        rest = regs[3:]
        if len(rest) > 5:
            self(f"v_or3_b32 v{t}, v{rest[0]}, v{rest[1]}, v{rest[2]}"); rest = rest[3:]
            k = 0
            while len(rest) > 2:
                d = (acc, t)[k & 1]; k += 1
                self(f"v_or3_b32 v{d}, v{d}, v{rest[0]}, v{rest[1]}"); rest = rest[2:]
            rest = rest + [t]
        while len(rest) >= 2:
            self(f"v_or3_b32 v{acc}, v{acc}, v{rest[0]}, v{rest[1]}"); rest = rest[2:]
        if rest: self(f"v_bitop3_b32 v{acc}, v{acc}, v{rest[0]}, s44 bitop3:0xa8")
        else: self(f"v_and_b32 v{acc}, 0xff, v{acc}")
    def tagbytes(self, src):
        for i in range(4): self(f"s_bfe_u32 s{98+i}, {src}, {hx((8 << 16) | (8*i))}")
    def toggle(self):
        self(f"s_and_b32 s31, s47, s54\ns_cselect_b64 {PB}, {WG}, {WS}\ns_cselect_b32 s60, s36, s55")
        self.tagbytes("s60")
    def setflag(self, F): self(f"ds_write_b32 v42, v40 offset:{F}")
    def waitflag(self, F, reads=None, nreads=0):
        n = Gen.nsync; Gen.nsync += 1
        self(f"L_ps{n}:\nds_read_b128 v[44:47], v40 offset:{F}")
        if reads: reads()
        self(f"s_waitcnt lgkmcnt({nreads})\nv_or3_b32 v44, v44, v45, v46\nv_or_b32 v44, v44, v47\nv_cmp_ne_u32 vcc, 0, v44\ns_cbranch_vccnz L_ps{n}")
    def pkmul(self, d, s, f):
        src, h = bc(f); self(f"v_pk_mul_f32 {R2(d)}, {R2(s)}, {src} op_sel:[0,{h}] op_sel_hi:[1,{h}]")
    def pkfma(self, d, s, f):
        src, h = bc(f); self(f"v_pk_fma_f32 {R2(d)}, {R2(s)}, {src}, {R2(d)} op_sel:[0,{h},0] op_sel_hi:[1,{h},1]")

def build(opts):
    Gen.nsync = 0
    global YB
    YB = 0xD0000 + opts.get("yb", 0); PRB = 0x1C0000 + opts.get("yb", 0); VB = 0x36000
    vote = opts.get("vote", 1)
    c = Gen(opts); p = Gen(opts); a = Gen(opts); cold = Gen(opts)
    ntm = str(opts.get("nt", "kvwq"))
    if ntm == "1": ntm = "kvwqp"
    nts = lambda ch: " nt" if ch in ntm else ""
    NT = nts("w")
    pace = opts.get("pace", 8)
    def tags(g):
        g(f"""
        s_mul_i32 s36, s36, 0x9E3779B1
        s_add_u32 s36, s36, 0x7F4A7C15
        s_add_u32 s55, s55, 1
        s_mul_i32 s55, s55, 0x85EBCA6B
        s_xor_b32 s55, s55, s36
        s_mov_b32 s60, s55
        v_mov_b32 v{TL}, s55
        v_mov_b32 v{TG}, s36
        """)
        g.tagbytes("s55")
    def consts(g):
        g(f"""
        s_getreg_b32 s55, hwreg(HW_REG_XCC_ID, 0, 4)
        s_add_u32 s56, s26, {GOFF}
        s_addc_u32 s57, s27, 0
        s_mov_b64 {PB}, {WS}
        s_mov_b32 s54, 0
        s_lshr_b32 s31, s29, 3
        s_lshl_b32 s52, s28, 2
        s_add_u32 s52, s52, s31                 ; 4g+hh
        s_mov_b32 s38, 0x07060500
        s_mov_b32 s39, 0x07060501
        s_mov_b32 s40, 0x07060502
        s_mov_b32 s41, 0x07060503
        s_movk_i32 s44, 0xff
        s_lshl_b32 s31, s3, 2
        v_mov_b32 v42, s31
        v_mov_b32 v40, 0
        s_lshl_b32 s61, s28, 13
        s_add_u32 s61, s61, {QB}
        s_and_b32 s31, s29, 3
        s_lshl_b32 s31, s31, 11
        s_add_u32 s31, s31, s61
        s_and_b32 s32, s29, 28
        s_add_u32 s32, s32, s3
        s_lshl_b32 s32, s32, 6
        s_add_u32 s31, s31, s32
        v_lshl_add_u32 v5, v10, 4, s31
        s_lshl_b32 s31, s30, 2
        s_add_u32 s31, s31, {HB}
        v_mov_b32 v38, s31
        s_lshl_b32 s31, s3, 6
        v_lshl_add_u32 v41, v10, 4, s31
        """)
    if opts.get("stamps"): c("s_memrealtime s[64:65]")
    c(f"""
    s_load_dwordx16 s[4:19], s[0:1], 0
    s_load_dwordx8 s[20:27], s[0:1], 64
    s_cmp_ge_u32 s2, 256
    s_cbranch_scc1 L_end
    """)
    if opts.get("stamps"):
        for i in range(1, NSTAMP): c(f"s_mov_b64 s[{64+2*i}:{65+2*i}], 0")
    c(f"""
    v_lshrrev_b32 v2, 6, v0
    v_and_b32 v1, 63, v0
    v_readfirstlane_b32 s62, v2
    s_and_b32 s28, s2, 7
    s_lshr_b32 s29, s2, 3
    {"s_xor_b32 s29, s29, %d" % opts["jx"] if opts.get("jx") else ""}
    s_lshl_b32 s30, s28, 5
    s_add_u32 s30, s30, s29                 ; p
    v_lshlrev_b32 v2, 4, v1                 ; lane*16
    v_lshrrev_b32 v12, 3, v1                ; lane>>3
    v_and_b32 v13, 0x70, v2                 ; (lane&7)*16
    v_and_b32 v9, 15, v1
    v_lshrrev_b32 v10, 4, v1
    s_and_b32 s3, s62, 3
    s_cmp_ge_u32 s62, 4
    s_cbranch_scc1 L_A1
    """)
    KR, VR, VT = 128, 160, 192
    QO, S, PM, DD = 48, 64, 72, 88
    ONE, LD, MK = 96, 100, 104
    order = opts.get("ord", "i.q.t.w.j").split(".")
    width = {"i":2, "q":2, "t":1, "w":2, "j":5, "jl":3, "jh":2}
    sh = {}; b_ = 8
    for f_ in order: sh[f_] = b_; b_ += width[f_]
    assert b_ == 20
    KMAP = f"s_lshl_b32 s31, s3, {sh['w']}\n"
    if "j" in sh: KMAP += f"s_lshl_b32 s32, s29, {sh['j']}\ns_add_u32 s31, s31, s32\n"
    else: KMAP += f"s_and_b32 s32, s29, 7\ns_lshl_b32 s32, s32, {sh['jl']}\ns_add_u32 s31, s31, s32\ns_lshr_b32 s32, s29, 3\ns_lshl_b32 s32, s32, {sh['jh']}\ns_add_u32 s31, s31, s32\n"
    opts.setdefault("xm", 7)
    if opts.get("xm"): KMAP += f"s_xor_b32 s33, s29, s28\ns_and_b32 s33, s33, {opts['xm']}\ns_lshl_b32 s33, s33, {sh['t']}\ns_xor_b32 s31, s31, s33\n"
    KMAP += f'''s_lshl_b32 s32, s28, 24
    s_add_u32 s31, s31, s32
    s_add_u32 s31, s31, {61440*256}
    v_and_b32 v7, 3, v9
    v_lshlrev_b32 v7, {sh["i"]}, v7
    v_lshrrev_b32 v8, 2, v9
    v_lshl_add_u32 v7, v8, {sh["q"]}, v7
    v_lshl_add_u32 v7, v10, 4, v7
    v_add_u32 v7, s31, v7
    v_xor_b32 v26, {1 << sh["t"]}, v7
    v_lshlrev_b32 v8, {sh["q"]}, v10
    v_lshl_add_u32 v8, v9, 4, v8
    v_add_u32 v8, s31, v8                   ; V voff'''
    a(f"""
    s_getpc_b64 s[34:35]
L_pc:
    s_lshl_b32 s31, s29, 2
    s_add_u32 s31, s31, s3
    s_lshl_b32 s31, s31, 7
    s_min_u32 s31, s31, L_end-L_pc
    v_mov_b32 v14, s31
    s_mov_b64 exec, 1
    global_load_dword v{DUM}, v14, s[34:35]
    s_mov_b64 exec, -1
    v_lshlrev_b32 v14, 2, v1
    v_mov_b32 v15, -1
    ds_write_b32 v14, v15 offset:{L_M}
    ds_write_b32 v14, v15 offset:{L_M+64}
    {KMAP}
    s_setprio 1
    s_waitcnt lgkmcnt(0)
    """)
    a.stamp("karg")
    a(f"s_load_dword s36, {WS}, 0")
    a("s_barrier")
    if opts.get("headk", 1) == 0: a("; HEAD_END")
    consts(a)
    a(f"""
    s_lshl_b32 s31, s3, 9
    s_add_u32 s31, s31, s61
    s_add_u32 s31, s31, 4096
    v_and_b32 v14, 0x1f0, v2
    v_lshrrev_b32 v6, 5, v1
    v_lshl_add_u32 v6, v6, 11, v14
    v_add_u32 v6, s31, v6
    s_lshl_b32 s31, s28, 7
    s_add_u32 s31, s31, {HB}
    v_lshrrev_b32 v14, 2, v14
    v_add_u32 v39, s31, v14
    """)
    if opts.get("kdelay", 0): a(f"s_sleep {opts.get('kdelay', 0)}")
    if opts.get("alt", 0): seq = "K00 K01 V4 V5 K02 K03 V6 V7 K10 K11 V0 V1 K12 K13 V2 V3".split()
    else: seq = "K00 K01 K02 K03 K10 K11 K12 K13 V0 V1 V2 V3 V4 V5 V6 V7".split()
    def kv(nm):
        if nm[0] == "K":
            t, s = int(nm[1]), int(nm[2])
            if opts.get("klin"):
                a(f"v_xor_b32 v27, {hx((t << sh['t']) + (s << sh['i']))}, v8")
                a.vmem(nm, f"global_load_dwordx4 {R4(KR+16*t+4*s)}, v27, {K}{nts('k')}")
            else: a.vmem(nm, f"global_load_dwordx4 {R4(KR+16*t+4*s)}, v{(7,26)[t]}, {K} offset:{64*s}{nts('k')}")
        else:
            t = int(nm[1])
            off = ((t >> 2) << sh["t"]) + ((t & 3) << sh["i"])
            if t: a(f"v_xor_b32 v27, {hx(off)}, v8")
            a.vmem(nm, f"global_load_dwordx4 {R4(VR+4*t)}, v{27 if t else 8}, {V}{nts('v')}")
    n0 = opts.get('n0', 6)
    for nm in seq[:n0]: kv(nm)
    a.stamp("K_iss")
    if opts.get("headk", 1): a("; HEAD_END")
    def prep():
        for r in range(ONE, ONE+4): a(f"v_mov_b32 v{r}, 0x3f803f80")
        a("v_bfe_u32 v14, v1, 2, 2")
        for e in range(4): a(f"v_cmp_eq_u32 s[50:51], {e}, v14\ns_nop 1\nv_cndmask_b32 v{MK+e}, 0, -1, s[50:51]")
        a(f"""
        s_mov_b32 s42, 0x05040100
        s_mov_b32 s43, 0x07060302
        s_mul_i32 s31, s3, {QSTR}
        s_add_u32 s31, s31, {L_Q}
        v_and_b32 v24, 31, v1
        v_lshl_add_u32 v24, v24, 3, s31
        v_lshrrev_b32 v14, 5, v1
        v_lshl_add_u32 v24, v14, 2, v24
        v_and_b32 v17, 3, v1
        v_mul_u32_u24 v17, {QSTR}, v17
        v_lshl_add_u32 v14, v10, 4, v17
        s_mov_b32 s48, {hx(f32(128**-0.5))}
        s_mov_b32 s49, {hx(f32(LOG2E))}
        s_mul_i32 s31, s3, {8*OSTR}
        v_mul_u32_u24 v15, {OSTR}, v10
        v_lshl_add_u32 v15, v9, 4, v15
        v_add_u32 v15, s31, v15
        v_add_u32 v16, v42, v2
        v_and_b32 v18, 12, v1
        v_add_u32 v18, v18, v10
        v_lshl_add_u32 v17, v18, 4, v17
        s_mul_i32 s31, s3, {4*OSTR}
        v_add_u32 v17, s31, v17
        v_lshlrev_b32 v18, 4, v10
        s_lshl_b32 s31, s30, 3
        s_add_u32 s31, s31, s3
        s_lshl_b32 s31, s31, 8
        s_add_u32 s31, s31, {OB}
        v_lshlrev_b32 v19, 9, v10
        v_lshl_add_u32 v19, v9, 4, v19
        v_add_u32 v19, s31, v19                  ; O voff
        s_lshl_b32 s31, s28, 10
        s_lshl_b32 s32, s29, 3
        s_add_u32 s31, s31, s32
        s_add_u32 s31, s31, {MLB}
        v_lshl_add_u32 v20, v10, 8, s31
        s_lshl_b32 s31, s28, 16
        s_and_b32 s32, s29, 24
        s_lshl_b32 s32, s32, 6
        s_add_u32 s31, s31, s32
        s_lshl_b32 s32, s3, 7
        s_add_u32 s31, s31, s32
        s_add_u32 s31, s31, {OB+4096}
        v_lshl_add_u32 v43, v12, 13, v13
        v_add_u32 v43, s31, v43
        s_lshl_b32 s31, s52, 8
        s_add_u32 s31, s31, {MLB}
        v_lshl_add_u32 v21, v12, 5, s31
        v_and_b32 v22, 3, v1
        v_lshlrev_b32 v22, 6, v22
        v_lshl_add_u32 v22, v10, 4, v22
        v_bfe_u32 v23, v1, 2, 1
        v_lshl_add_u32 v22, v23, 1, v22
        v_add_u32 v22, v42, v22
        s_mov_b32 s47, {SPIN}
        s_waitcnt lgkmcnt(0)
        """)
        tags(a)
    assert QSTR == OSTR
    prep()
    if vote:
        VM = f'''        s_memtime s[50:51]
        s_load_dword s53, {WS}, s32
        s_waitcnt lgkmcnt(0)
        s_memtime s[14:15]
        s_load_dword s53, {WS}, s46
        s_waitcnt lgkmcnt(0)
        s_memtime s[24:25]
        s_lshl_b32 s31, s31, 2
        s_add_u32 s31, s31, {VB}
        v_mov_b32 v25, s31
        s_waitcnt lgkmcnt(0)
        s_sub_u32 s50, s14, s50
        s_sub_u32 s51, s24, s14
        s_cmp_gt_u32 s50, s51
''' if vote == 1 else f'''        s_lshl_b32 s31, s31, 2
        s_add_u32 s31, s31, {VB}
        v_mov_b32 v25, s31
        s_mov_b32 s50, s55
        s_load_dword s50, {WS}, s32
        s_load_dword s51, {WS}, s46
        s_waitcnt lgkmcnt(1)
        s_cmp_eq_u32 s50, s55
        s_cselect_b32 s53, 1, 0
        s_waitcnt lgkmcnt(0)
        s_cmp_lg_u32 s53, 0
'''
        a(f"""
        s_lshl_b32 s31, s30, 2
        s_add_u32 s31, s31, s3
        s_and_b32 s32, s31, 63
        s_lshl_b32 s32, s32, 7
        s_lshr_b32 s33, s31, 6
        s_lshl_b32 s33, s33, 14
        s_add_u32 s32, s32, s33
        s_add_u32 s32, s32, {PRB}
        s_and_b32 s33, s3, 1
        s_lshl_b32 s46, s33, 13
        s_xor_b32 s32, s32, s46
        s_xor_b32 s46, s32, 8192
        {VM}
        s_cselect_b32 s50, 1, 0
        s_xor_b32 s50, s50, s33
        s_xor_b32 s50, s50, s55
        v_mov_b32 v37, s50
        s_mov_b64 exec, 1
        """)
        a.vmem("vote", f"global_store_dword v25, v37, {WS}")
        a("s_mov_b64 exec, -1")
    def pollq(g, r=28):
        g(f"global_load_dwordx4 {R4(r)}, v6, {PB} offset:-4096 sc1\nglobal_load_dwordx4 {R4(r+4)}, v6, {PB} sc1\nglobal_load_dword v{r+8}, v39, {PB} sc1")
    if n0 < 8:
        a.waitflag(FP)
        for nm in seq[n0:8]: kv(nm)
    pq_at = opts.get("pq_at", 4)
    def dopoll():
        a.setflag(FV)
        a.waitflag(FV)
        pollq(a); a.vm += ["pq0", "pq1", "pq"]
        a.stamp("pq_iss")
    a("s_mov_b64 vcc, -1")
    for t in range(8):
        if opts.get("gate", 0) == t: a.waitflag(FP)
        if 8 + t >= pace and opts.get("gate", 0) < 0:
            a(f"""
            s_cbranch_vccz L_pa{t}
            s_waitcnt vmcnt({pace-1})
            ds_read_b128 v[44:47], v40 offset:{FP}
            s_waitcnt lgkmcnt(0)
            v_or3_b32 v44, v44, v45, v46
            v_or_b32 v44, v44, v47
            v_cmp_ne_u32 vcc, 0, v44
L_pa{t}:
            """)
        if t == pq_at: dopoll()
        kv(seq[8+t])
    a.stamp("V_iss")
    if opts.get("so"):
        a.setflag(FV); a.setflag(FW)
        a("s_waitcnt vmcnt(0)")
        a.setflag(FQ)
        a("s_branch L_fin")
    if pq_at == 8: dopoll()
    pq2 = opts.get("pq2", 2)
    if pq2:
        if pq2 == 2:
            a.setflag(F1b); a.waitflag(F1b)
        pollq(a, 112); a.vm += ["pr0", "pr1", "pr"]
    a.setflag(FW)
    def vperm(tp):
        a.wait(f"V{2*tp+1}")
        for d in range(4):
            lo = VR + 8*tp + d; hi = lo + 4
            a(f"v_perm_b32 v{VT+4*(2*d)+tp}, v{hi}, v{lo}, s42")
            a(f"v_perm_b32 v{VT+4*(2*d+1)+tp}, v{hi}, v{lo}, s43")
    npre = pq_at // 2
    for tp in range(npre): vperm(tp)
    a.wait("pq")
    a.stamp("pq_ret")
    a("L_pq:")
    a.chk([28, 32], 25, 37)
    a(f"""
    v_xor_b32 v25, s60, v36
    v_or_b32 v37, v37, v25
    v_cmp_ne_u32 vcc, 0, v37
    s_cbranch_vccnz L_pq_retry
L_pq_ok:
    s_mov_b64 exec, -1
    v_pk_add_f32 v[28:29], v[28:29], v[32:33]
    v_pk_add_f32 v[30:31], v[30:31], v[34:35]
    s_nop 1
    v_permlane32_swap_b32 v28, v30
    v_permlane32_swap_b32 v29, v31
    v_pk_add_f32 v[28:29], v[28:29], v[30:31]
    v_cvt_pk_bf16_f32 v28, v28, v29
    ds_write_b32 v24, v28
    """)
    a.setflag(FQ)
    cold("L_pq_retry:\ns_sub_u32 s47, s47, 1\ns_cbranch_scc1 L_pq_ok")
    if pq2:
        cold(f"s_cmp_lg_u32 s47, {SPIN-1}\ns_cbranch_scc1 L_pq_r2\ns_waitcnt vmcnt(0)")
        for i in range(9): cold(f"v_mov_b32 v{28+i}, v{112+i}")
        cold("s_branch L_pq\nL_pq_r2:")
    cold(f"""
    s_cmp_lg_u32 s47, {SPIN-TFALL}
    s_cbranch_scc1 L_pq_nf
    s_mov_b32 s54, 1
    s_mov_b64 exec, -1
    s_mov_b64 s[50:51], vcc
    """)
    cold.waitflag(FP, lambda: cold(f"ds_read_b128 {R4(S)}, v41 offset:{L_QT}"), 0)
    cold("s_mov_b64 vcc, s[50:51]")
    cold.setexec(0x00010001)
    cold.tag(S, TG)
    cold(f"""
    global_store_dword v38, v{TG}, {WG} sc1
    global_store_dwordx4 v5, {R4(S)}, {WG} sc1
L_pq_nf:
    s_mov_b64 exec, vcc
    """)
    cold.toggle(); pollq(cold)
    cold("s_waitcnt vmcnt(0)\ns_branch L_pq")
    a.cnt("#pq")
    def qreads():
        for s in range(4): a(f"ds_read_b128 {R4(QO+4*s)}, v14 offset:{L_Q+64*s}")
    a.waitflag(FQ, qreads, 4)
    a.stamp("q_ok")
    for s in range(4):
        a.lg(3-s)
        for t in range(2):
            a(f"{MF} {R4(S+4*t)}, {R4(KR+16*t+4*s)}, {R4(QO+4*s)}, {'0' if s==0 else R4(S+4*t)}")
    a(f"s_mov_b32 s47, {SPIN}\ns_nop 5")
    for i in range(8): a(f"v_cvt_pk_bf16_f32 v{S+i}, 0, v{S+i}")
    for i in range(0, 8, 2): a(f"v_pk_mul_f32 {R2(S+i)}, {R2(S+i)}, s[48:49] op_sel_hi:[1,0]")
    for i in range(8): a(f"v_cvt_pk_bf16_f32 v{S+i}, 0, v{S+i}")
    a(f"""
    v_max3_f32 v108, v{S}, v{S+1}, v{S+2}
    v_max3_f32 v109, v{S+3}, v{S+4}, v{S+5}
    v_max3_f32 v108, v108, v{S+6}, v{S+7}
    v_max_f32 v108, v108, v109
    """)
    for sw in (16, 32):
        a(f"v_mov_b32 v109, v108\ns_nop 1\nv_permlane{sw}_swap_b32 v108, v109\nv_max_f32 v108, v108, v109")
    a("v_mul_f32 v108, s49, v108")
    for i in range(0, 8, 2):
        a(f"v_pk_fma_f32 {R2(S+i)}, {R2(S+i)}, s[48:49], v[108:109] op_sel:[0,1,0] op_sel_hi:[1,1,0] neg_lo:[0,0,1] neg_hi:[0,0,1]")
    for i in range(8): a(f"v_exp_f32 v{S+i}, v{S+i}")
    a("v_min_u32 v108, -2, v108")
    for i in range(4): a(f"v_cvt_pk_bf16_f32 v{S+i}, v{S+2*i}, v{S+2*i+1}")
    def msk(e):
        for i in range(4): a(f"v_and_b32 v{PM+4*e+i}, v{S+i}, v{MK+e}")
    def pv(e):
        for hf in range(2):
            a(f"{MF} {R4(DD+4*hf)}, {R4(VT+4*(4*hf+e))}, {R4(PM+4*e)}, {'0' if e==0 else R4(DD+4*hf)}")
    msk(0)
    a(f"{MF} {R4(LD)}, {R4(ONE)}, {R4(S)}, 0")
    if npre == 4:
        msk(1); a.stamp("V"); pv(0); msk(2); pv(1); msk(3); pv(2); pv(3)
    else:
        msk(1); msk(2); msk(3)
        for tp in range(npre, 4): vperm(tp)
        a.stamp("V")
        a("s_nop 1")
        for e in range(4): pv(e)
    a(f"""
    s_mov_b64 exec, 0xf
    ds_write_b32 v16, v{LD} offset:{L_L}
    s_mov_b64 exec, -1
    s_nop 3
    ds_write_b128 v15, {R4(DD)} offset:{L_O}
    ds_write_b128 v15, {R4(DD+4)} offset:{L_O+4*OSTR}
    s_mov_b64 exec, 0xf
    ds_write_b32 v16, v108 offset:{L_M}
    s_mov_b64 exec, -1
    """)
    a.stamp("PV")
    a(f"""
    s_cmp_ge_u32 s3, 2
    s_cbranch_scc1 L_nocomb
L_cmb:
    ds_read_b128 {R4(S)}, v18 offset:{L_M}
    ds_read_b128 {R4(S+4)}, v18 offset:{L_L}
    """)
    for w in range(4):
        a(f"ds_read_b128 {R4(PM+4*w)}, v17 offset:{L_O+8*OSTR*w}")
    a.lg(5)
    a(f"""
    v_max3_u32 v110, v{S}, v{S+1}, v{S+2}
    v_max3_f32 v108, v{S}, v{S+1}, v{S+2}
    v_max_u32 v110, v110, v{S+3}
    v_max_f32 v108, v108, v{S+3}
    v_cmp_eq_u32 vcc, -1, v110
    s_cbranch_vccnz L_cmb
    v_pk_add_f32 {R2(S)}, {R2(S)}, v[108:109] op_sel_hi:[1,0] neg_lo:[0,1] neg_hi:[0,1]
    v_pk_add_f32 {R2(S+2)}, {R2(S+2)}, v[108:109] op_sel_hi:[1,0] neg_lo:[0,1] neg_hi:[0,1]
    """)
    for w in range(4): a(f"v_exp_f32 v{S+w}, v{S+w}")
    a.lg(4)
    a(f"""
    v_pk_mul_f32 {R2(S+4)}, {R2(S)}, {R2(S+4)}
    v_pk_fma_f32 {R2(S+4)}, {R2(S+2)}, {R2(S+6)}, {R2(S+4)}
    v_add_f32 v110, v{S+4}, v{S+5}
    v_rcp_f32 v111, v110
    v_log_f32 v110, v110
    s_waitcnt lgkmcnt(0)
    """)
    a.pkmul(DD, PM, S); a.pkmul(DD+2, PM+2, S)
    a(f"v_add_f32 v108, v108, v110\nv_mov_b32 v109, v{TL}")
    for w in range(1, 4):
        a.pkfma(DD, PM+4*w, S+w); a.pkfma(DD+2, PM+4*w+2, S+w)
    a.pkmul(DD, DD, 111); a.pkmul(DD+2, DD+2, 111)
    a.tag(DD)
    a(f"global_store_dwordx4 v19, {R4(DD)}, {WS}")
    a.setexec(0x00010001)
    a(f"""
    global_store_dwordx2 v20, v[108:109], {WS}
    s_mov_b64 exec, -1
    s_cmp_lg_u32 s54, 0
    s_cbranch_scc1 L_fbO
L_nocomb:
    """)
    cold("L_fbO:")
    cold.tag(DD, TG)
    cold(f"v_mov_b32 v109, v{TG}\nglobal_store_dwordx4 v19, {R4(DD)}, {WG} sc1")
    cold.setexec(0x00010001)
    cold(f"global_store_dwordx2 v20, v[108:109], {WG} sc1\ns_mov_b64 exec, -1\ns_branch L_nocomb")
    a.setflag(FS)
    a.stamp("pubO")
    if opts.get("fx", 1): a.waitflag(FX)
    a.stamp("FX")
    LS, OD = 48, 56
    def odata(g):
        for k in range(4): g(f"global_load_dwordx4 {R4(OD+4*k)}, v43, {PB} offset:{2048*k-4096} sc1")
    if not opts.get("spec", 1): a("s_mov_b64 vcc, -1\ns_branch L_po_retry")
    a("L_po:")
    for k in range(2): a(f"global_load_dwordx4 {R4(LS+4*k)}, v21, {PB} offset:{16*k} sc1")
    odata(a)
    if opts.get("fw") == "pre": a.setflag(FY)
    a(f"""
    s_mov_b64 exec, -1
    s_waitcnt vmcnt(4)
    v_xor_b32 v76, s60, v{LS+1}
    v_xor_b32 v77, s60, v{LS+3}
    v_xor_b32 v78, s60, v{LS+5}
    v_or3_b32 v76, v76, v77, v78
    v_xor_b32 v77, s60, v{LS+7}
    v_or_b32 v76, v76, v77
    v_cmp_ne_u32 vcc, 0, v76
    s_cbranch_vccnz L_po_retry
L_po_ok:
    v_max3_f32 v76, v{LS}, v{LS+2}, v{LS+4}
    v_max_f32 v76, v76, v{LS+6}
    s_nop 1
    v_max_f32_dpp v76, v76, v76 row_ror:8 {DPP}
    v_mov_b32 v77, v76
    s_nop 1
    v_permlane16_swap_b32 v76, v77
    v_max_f32 v76, v76, v77
    v_mov_b32 v77, v76
    s_nop 1
    v_permlane32_swap_b32 v76, v77
    v_max_f32 v76, v76, v77
    v_sub_f32 v80, v{LS}, v76
    v_sub_f32 v81, v{LS+2}, v76
    v_sub_f32 v82, v{LS+4}, v76
    v_sub_f32 v83, v{LS+6}, v76
    v_exp_f32 v80, v80
    v_exp_f32 v81, v81
    v_exp_f32 v82, v82
    v_exp_f32 v83, v83
    s_nop 0
    v_pk_add_f32 v[84:85], v[80:81], v[82:83]
    v_add_f32 v84, v84, v85
    v_mov_b32 v85, v84
    s_nop 1
    v_permlane32_swap_b32 v84, v85
    v_add_f32 v84, v84, v85
    v_mov_b32 v85, v84
    s_nop 1
    v_permlane16_swap_b32 v84, v85
    v_add_f32 v84, v84, v85
L_pd:
    s_waitcnt vmcnt(0)
    """)
    a.chk([OD, OD+4, OD+8, OD+12], 76, 79)
    a(f"""
    v_cmp_ne_u32 vcc, 0, v79
    s_cbranch_vccnz L_pd_retry
L_pd_ok:
    s_mov_b64 exec, -1
    """)
    a.stamp("O_ok")
    cold(f"""
L_po_retry:
    s_sub_u32 s47, s47, 1
    s_cbranch_scc1 L_po_giveup
    s_cmp_lg_u32 s54, 0
    s_cbranch_scc1 L_po_fb
    s_mov_b64 exec, vcc
    {"s_sleep %d" % opts["oslp"] if opts.get("oslp") else ""}
    """)
    for k in range(2): cold(f"global_load_dwordx4 {R4(LS+4*k)}, v21, {PB} offset:{16*k} sc1")
    cold(f"""
    s_waitcnt vmcnt(0)
    v_xor_b32 v76, s60, v{LS+1}
    v_xor_b32 v77, s60, v{LS+3}
    v_xor_b32 v78, s60, v{LS+5}
    v_or3_b32 v76, v76, v77, v78
    v_xor_b32 v77, s60, v{LS+7}
    v_or_b32 v76, v76, v77
    v_cmp_ne_u32 vcc, 0, v76
    s_andn2_b64 exec, exec, vcc
    s_cbranch_execz L_po_retry
    """)
    odata(cold)
    cold(f"""
    s_cbranch_vccnz L_po_retry
L_po_giveup:
    s_mov_b64 exec, -1
    s_branch L_po_ok
L_po_fb:
    """)
    cold.toggle()
    cold(f"""
    s_branch L_po
L_pd_retry:
    s_sub_u32 s47, s47, 1
    s_cbranch_scc1 L_pd_ok
    s_mov_b64 exec, vcc
    """)
    odata(cold)
    cold("s_branch L_pd")
    a(f"v_add_f32_dpp v84, v84, v84 row_ror:8 {DPP}")
    a.pkmul(OD, OD, 80); a.pkmul(OD+2, OD+2, 80)
    a("v_rcp_f32 v84, v84")
    for k in range(1, 4):
        a.pkfma(OD, OD+4*k, 80+k); a.pkfma(OD+2, OD+4*k+2, 80+k)
    a(f"""
    s_nop 1
    v_permlane32_swap_b32 v{OD}, v{OD+2}
    v_permlane32_swap_b32 v{OD+1}, v{OD+3}
    v_pk_add_f32 {R2(OD)}, {R2(OD)}, {R2(OD+2)}
    s_nop 1
    v_permlane16_swap_b32 v{OD}, v{OD+1}
    v_add_f32 v{OD}, v{OD}, v{OD+1}
    s_nop 1
    v_add_f32_dpp v{OD}, v{OD}, v{OD} row_ror:8 {DPP}
    v_mul_f32 v{OD}, v{OD}, v84
    v_cvt_pk_bf16_f32 v{OD}, v{OD}, v{OD}
    ds_write_b16 v22, v{OD} offset:{L_OV}
    """)
    a.setflag(FO)
    if opts.get("wb"):
        a(f"s_lshl_b32 s31, s29, 2\ns_add_u32 s31, s31, s3\ns_cmp_lt_u32 s31, {128 - opts['wb']}\ns_cbranch_scc1 L_nwb\nbuffer_wbl2 sc1\nL_nwb:")
    a.stamp("o_wr")
    a.cnt("#po")
    a("s_branch L_fin" if opts.get("stamps") else "s_endpgm")

    TR, QD = 64, 88
    p(f"""
    s_and_b32 s31, s29, 3
    s_lshl_b32 s31, s31, 2
    s_add_u32 s31, s31, s3
    s_lshl_b32 s31, s31, 18
    s_lshr_b32 s32, s30, 2
    s_lshl_b32 s32, s32, 7
    s_add_u32 s31, s31, s32
    v_and_b32 v43, 16, v1
    v_lshlrev_b32 v43, 1, v43
    v_xor_b32 v43, v43, v13
    v_lshl_add_u32 v3, v12, 13, v43
    v_add_u32 v3, s31, v3
    v_xor_b32 v4, 0x10040, v3
    v_add_u32 v7, 0x20000, v3
    v_xor_b32 v6, 0x30040, v3
    {"s_lshl_b32 s31, s30, 2" + chr(10) + "s_add_u32 s31, s31, s3" + chr(10) + "s_lshl_b32 s31, s31, 12" + chr(10) + "v_add_u32 v3, s31, v2" + chr(10) + "v_add_u32 v4, 1024, v3" + chr(10) + "v_add_u32 v7, 2048, v3" + chr(10) + "v_add_u32 v6, 3072, v3" if "q" in str(opts.get("wlin", "")) else ""}
    s_lshl_b32 m0, s3, 12
    s_setprio 2
    s_waitcnt lgkmcnt(0)
    """)
    p.stamp("karg")
    p.vmem("x", f"global_load_dwordx4 v[16:19], v2, {X}")
    for i in range(4):
        p.vmem(f"wq{i}", f"global_load_lds_dwordx4 v{(3,4,7,6)[i]}, {WQ}{nts('q')}")
        if i < 3: p("s_add_u32 m0, m0, 1024\ns_nop 0")
    p(f"s_load_dword s36, {WS}, 0")
    p("s_barrier")
    p("; HEAD_END")
    consts(p)
    p(f"""
    s_and_b32 s33, s29, 7
    s_lshl_b32 s31, s33, {3 if vote else 2}
    s_add_u32 s31, s31, s3
    s_lshl_b32 s31, s31, 11
    s_lshl_b32 s32, s52, 6
    s_add_u32 s31, s31, s32
    s_add_u32 s31, s31, {YB}
    v_lshl_add_u32 v39, v10, 4, s31         ; Y voff
    {"v_and_b32 v44, 1, v1" if vote else ""}
    {"v_lshl_add_u32 v39, v44, 13, v39" if vote else ""}
    s_lshl_b32 s31, s30, 11
    s_add_u32 s31, s31, {OB}
    s_mov_b32 s32, {0 if opts.get("pre", 1) == 2 else 15}
    s_lshl_b32 s48, s30, 9
    s_add_u32 s48, s48, {GB}
    s_cmp_eq_u32 s3, 1
    s_cselect_b32 s31, s48, s31
    s_cselect_b32 s32, 3, s32
    s_lshl_b32 s48, s30, 8
    s_add_u32 s48, s48, {QB}
    s_cmp_eq_u32 s3, 2
    s_cselect_b32 s31, s48, s31
    s_cselect_b32 s32, 1, s32
    s_lshl_b32 s48, s30, 5
    s_add_u32 s48, s48, {MLB}
    s_cmp_eq_u32 s3, 3
    s_cselect_b32 s31, s48, s31
    s_cselect_b32 s32, 0, s32
    v_and_b32 v44, s32, v1
    v_lshl_add_u32 v44, v44, 7, s31
    v_cmp_gt_u32 vcc, 16, v1
    v_cmp_gt_u32 s[50:51], 32, v1
    s_nop 0
    v_cndmask_b32 v44, v38, v44, vcc
    v_cndmask_b32 v44, v39, v44, s[50:51]
    """)
    if opts.get("pre", 1): p.vmem("pre", f"global_load_dword v{DUM}, v44, {WS}{nts('p')}")
    p(f"""
    s_and_b32 s53, s29, 24
    s_add_u32 s53, s53, s28
    s_lshl_b32 s32, s33, 2
    s_add_u32 s32, s32, s3
    s_mul_i32 s32, s32, {16*3584}
    s_lshl_b32 s31, s53, 7
    s_add_u32 s32, s32, s31
    v_mul_u32_u24 v11, 3584, v12
    v_add3_u32 v11, v11, v43, s32
    v_add_u32 v14, {8*3584}, v11
    v_xor_b32 v14, 64, v14
    v_lshl_add_u32 v37, v12, 10, v43
    s_lshl_b32 s31, s52, 2
    s_add_u32 s31, s31, s3
    s_lshl_b32 s31, s31, 15
    s_lshl_b32 s32, s33, 7
    s_add_u32 s31, s31, s32
    v_add_u32 v36, s31, v37
    s_lshl_b32 s31, s53, 2
    s_add_u32 s31, s31, s3
    s_lshl_b32 s31, s31, 14
    s_add_u32 s31, s31, s32
    v_add_u32 v37, s31, v37
    v_bfe_u32 v3, v1, 2, 2
    v_lshl_add_u32 v3, v10, 3, v3
    v_lshlrev_b32 v3, 7, v3
    v_and_b32 v4, 3, v1
    v_lshl_add_u32 v3, v4, 3, v3
    s_lshl_b32 s31, s3, 5
    v_add_u32 v3, s31, v3
    v_bfe_u32 v4, v1, 3, 2
    v_lshlrev_b32 v4, 5, v4
    v_xor_b32 v3, v3, v4
    s_and_b32 s31, s29, 3
    s_lshl_b32 s31, s31, 8
    v_lshl_add_u32 v4, v10, 4, s31
    s_lshl_b32 s31, s33, 7
    v_lshl_add_u32 v6, v10, 4, s31
    s_lshl_b32 s49, s3, 11
    """)
    wl = str(opts.get("wlin", ""))
    if "g" in wl: p("s_lshl_b32 s31, s30, 2\ns_add_u32 s31, s31, s3\ns_mul_i32 s31, s31, 1792\nv_add_u32 v11, s31, v2\nv_add_u32 v14, 768, v11")
    if "o" in wl: p("s_lshl_b32 s31, s30, 14\ns_lshl_b32 s32, s3, 10\ns_add_u32 s31, s31, s32\ns_and_b32 s32, s30, 1\ns_lshl_b32 s32, s32, 12\ns_and_b32 s31, s31, 0xffff8fff\ns_add_u32 s31, s31, s32\nv_add_u32 v36, s31, v2")
    early = opts.get("early", 0)
    def gu_issue():
        for i in range(2):
            for m, (nm, P) in enumerate((("g", G), ("u", U))):
                p(f"s_add_u32 m0, s49, {L_G + 1024*i + 8192*m}\ns_nop 0")
                p.vmem(f"{nm}{i}", f"global_load_lds_dwordx4 v{11 if i==0 else 14}, {P}{NT}")
    def wd_issue():
        for n in range(2):
            p(f"s_add_u32 m0, s49, {L_WO + 16384 + 1024*n}\ns_nop 0")
            p.vmem(f"w{4+n}", f"global_load_lds_dwordx4 v37, {D}{NT}")
            if n == 0: p("v_xor_b32 v37, 0x2040, v37")
    if early >= 1:
        p("s_cmp_ge_u32 s53, 28\ns_cselect_b64 exec, 1, -1\ns_cbranch_scc0 L_ef\nv_mov_b32 v11, 0\nv_mov_b32 v14, 0\nv_mov_b32 v37, 0\nL_ef:")
        gu_issue()
        if early >= 2: wd_issue()
        p("s_mov_b64 exec, -1")
    p.wait("x")
    p.stamp("x")
    xs = list(range(20, 28))
    for i in range(4):
        p(f"v_lshlrev_b32 v{xs[2*i]}, 16, v{16+i}\nv_and_b32 v{xs[2*i+1]}, 0xffff0000, v{16+i}")
    p("v_readfirstlane_b32 s50, v20\ns_nop 1")
    for i in range(4):
        p(f"v_pk_add_f32 {R2(48+2*i)}, {R2(20+2*i)}, s[50:51] op_sel_hi:[1,0] neg_lo:[0,1] neg_hi:[0,1]")
    p(f"""
    v_pk_mul_f32 v[30:31], v[48:49], v[48:49]
    v_pk_add_f32 v[28:29], v[48:49], v[50:51]
    v_pk_fma_f32 v[30:31], v[50:51], v[50:51], v[30:31]
    v_pk_add_f32 v[28:29], v[28:29], v[52:53]
    v_pk_fma_f32 v[30:31], v[52:53], v[52:53], v[30:31]
    v_pk_add_f32 v[28:29], v[28:29], v[54:55]
    v_pk_fma_f32 v[30:31], v[54:55], v[54:55], v[30:31]
    v_add_f32 v28, v28, v29
    v_add_f32 v29, v30, v31
    s_nop 0
    """)
    for r in (1, 2, 4, 8):
        p(f"v_add_f32_dpp v28, v28, v28 row_ror:{r} {DPP}\nv_add_f32_dpp v29, v29, v29 row_ror:{r} {DPP}\ns_nop 0")
    p(f"""
    s_nop 0
    v_permlane32_swap_b32 v28, v29
    v_add_f32 v28, v28, v29
    v_mov_b32 v29, v28
    s_nop 1
    v_permlane16_swap_b32 v28, v29
    v_add_f32 v28, v28, v29
    v_mul_f32 v28, {hx(f32(1/512))}, v28
    s_nop 0
    v_readlane_b32 s32, v28, 0
    v_readlane_b32 s48, v28, 32
    s_nop 0
    v_mov_b32 v28, s32
    v_fma_f32 v29, -v28, v28, s48
    v_add_f32 v28, s50, v28
    v_max_f32 v29, 0, v29
    v_cvt_pk_bf16_f32 v28, 0, v28
    v_cvt_pk_bf16_f32 v29, 0, v29
    v_add_f32 v29, {hx(f32(1e-5))}, v29
    v_cvt_pk_bf16_f32 v29, 0, v29
    v_sqrt_f32 v31, v29
    """)
    for i in range(4):
        p(f"v_pk_add_f32 {R2(20+2*i)}, {R2(20+2*i)}, v[28:29] op_sel_hi:[1,0] neg_lo:[0,1] neg_hi:[0,1]")
    p("v_cvt_pk_bf16_f32 v29, 0, v31\nv_rcp_f32 v30, v29")
    for i in range(8): p(f"v_cvt_pk_bf16_f32 v{xs[i]}, 0, v{xs[i]}")
    for i in range(4): p.pkmul(20+2*i, 20+2*i, 30)
    for i in range(4):
        p(f"v_cvt_pk_bf16_f32 v{16+i}, v{xs[2*i]}, v{xs[2*i+1]}")
    p(f"ds_write_b128 v2, v[16:19] offset:{L_XN}")
    for i in range(4):
        p(f"ds_read_b128 {R4(20+4*i)}, v4 offset:{L_XN+64*i}")
    p(f"ds_read_b128 v[48:51], v6 offset:{L_XN}\nds_read_b128 v[52:55], v6 offset:{L_XN+64}")
    p.stamp("ln")
    p.wait("wq3")
    p.setflag(F1)
    p("s_waitcnt lgkmcnt(0)")
    tags(p)
    def trr(n, base):
        for s in range(n):
            p(f"ds_read_b64_tr_b16 v[{TR+4*s}:{TR+4*s+1}], v3 offset:{base+4096*s}")
            p(f"ds_read_b64_tr_b16 v[{TR+4*s+2}:{TR+4*s+3}], v3 offset:{base+4096*s+512}")
    p.waitflag(F1, lambda: trr(4, L_WQ), 8)
    p.stamp("S1")
    for s in range(4):
        p.lg(6-2*s)
        p(f"{MF} {R4(QD)}, {R4(TR+4*s)}, {R4(20+4*s)}, {'0' if s==0 else R4(QD)}")
    p.setexec(0x00010001)
    p.vmem("hello", f"global_store_dword v38, v{TL}, {WS}")
    p("s_nop 4")
    for i in range(4): p(f"v_add_u32 v{QD+i}, 0x80, v{QD+i}")
    p.tag(QD)
    p.vmem("pubq", f"global_store_dwordx4 v5, {R4(QD)}, {WS}")
    p(f"ds_write_b128 v41, {R4(QD)} offset:{L_QT}")
    p("s_mov_b64 exec, -1")
    if opts.get("gg") == "p":
        p("s_cmp_ge_u32 s53, 28\ns_cbranch_scc1 L_sg")
        gu_issue()
        p("L_sg:")
        early = 1
    p.setflag(FP)
    if opts.get("so", 0) & 4:
        if opts["so"] & 8: p.waitflag(FQ)
        p("s_branch L_fin")
    p.stamp("pubq")
    p(f"""
    s_lshl_b32 s31, s30, 2
    s_add_u32 s31, s31, s3
    s_lshl_b32 s31, s31, 7
    s_add_u32 s31, s31, {GB}
    v_and_b32 v18, 1, v1
    v_lshlrev_b32 v18, 6, v18
    v_lshl_add_u32 v18, v10, 4, v18
    v_add_u32 v18, s31, v18
    s_and_b32 s31, s31, 0xfffff1ff
    v_lshl_add_u32 v5, v12, 9, v13
    v_add_u32 v5, s31, v5
    s_mov_b32 s50, 0x00020002
    s_mov_b32 s51, 0x00020002
    v_and_b32 v15, 3, v1
    v_lshlrev_b32 v15, 3, v15
    v_lshl_add_u32 v15, v10, 1, v15
    s_lshl_b32 s31, s2, 5
    v_add_u32 v17, s31, v15
    s_lshl_b32 s31, s3, 5
    v_add_u32 v15, s31, v15
    v_lshlrev_b32 v4, 4, v10
    s_and_b32 s31, s2, {28 if vote else 0}
    s_add_u32 s31, s31, s2
    s_lshl_b32 s31, s31, 11
    s_add_u32 s31, s31, {YB}
    v_add_u32 v13, s31, v2
    s_mov_b32 s47, {SPIN}
    s_lshl_b32 s46, s3, 12
    """)
    hold = opts.get("hold", 4)
    def wo_issue(g):
        for n in range(4):
            if n == 4 - hold:
                if g is p and early < 1 and opts.get("gfirst", 0): gcomp()
                g.waitflag(FS)
                if opts.get("fw") == "pre":
                    g.setflag(FX)
                    if g is p: p.vmem("pg", f"global_load_dwordx4 v[56:59], v5, {PB} sc1")
                    g.waitflag(FY)
            g(f"s_add_u32 m0, s46, {L_WO + 1024*n}\ns_nop 0")
            g.vmem(f"w{n}", f"global_load_lds_dwordx4 v36, {WO}{NT}")
            if n < 3: g(f"v_xor_b32 v36, {hx((0x2040, 0x6040, 0x2040)[n])}, v36")
    LG = {"w": FW, "q": FQ, "v": FV}[opts.get("lg", "w")]
    sp1 = opts.get("sp1", 0); sp2 = opts.get("sp2", 0); spd = opts.get("spd", 0)
    def spf(g, lo, hi, base="s[14:15]"):
        for r in range(lo, hi): g(f"s_load_dword s63, {base}, {1024*r}")
    spf(p, 0, sp1)
    p("s_cmp_ge_u32 s53, 28\ns_cbranch_scc1 L_noffn")
    def gcomp():
        p.wait("u1")
        p.setflag(FG)
        p.stamp("gu")
        p.waitflag(FG, lambda: trr(4, L_G), 8)
        for m in range(2):
            for s in range(2):
                p.lg(6-2*(2*m+s))
                p(f"{MF} {R4(QD+4*m)}, {R4(TR+8*m+4*s)}, {R4(48+4*s)}, {'0' if s==0 else R4(QD+4*m)}")
        p.setexec(0x00030003)
        p("s_nop 5")
        for i in range(4): p(f"v_cndmask_b32 v{QD+i}, v{QD+i}, v{QD+4+i}, s[50:51]")
        p.tag(QD)
        p.vmem("pubg", f"global_store_dwordx4 v18, {R4(QD)}, {WS}")
        p("s_mov_b64 exec, -1")
        p.stamp("pubg")
    if early >= 1: gcomp()
    p("s_setprio 0")
    if early < 1 and opts.get("gg", "w") == "v":
        p.waitflag(FV)
        if opts.get("ggprio"): p("s_setprio 2")
        gu_issue()
        p("s_setprio 0")
    p.waitflag(LG)
    if early >= 1 and opts.get("pgearly", 0): p.vmem("pg", f"global_load_dwordx4 v[56:59], v5, {PB} sc1")
    if early < 1 and opts.get("gg", "w") == "w": gu_issue()
    if early < 2 and not spd: wd_issue()
    spf(p, sp1, min(32, sp1+sp2))
    if spd: spf(p, 0, 16, "s[34:35]")
    late_wo = lambda: wo_issue(p)
    if not (early >= 1 and opts.get("pgearly", 0)): wo_issue(p)
    if spd: wd_issue()
    if opts.get("so"): p("s_waitcnt vmcnt(0)\ns_branch L_fin")
    p.stamp("iss")
    if early < 1 and not (opts.get("gfirst", 0) and hold): gcomp()
    if (early >= 1 and opts.get("pgearly", 0)) or opts.get("fw") == "pre":
        p.wait("pg"); p("s_branch L_pg1")
    else:
        if opts.get("fw", "none") != "none": p.wait(opts.get("fw", "none"))
        if opts.get("xdelay"): p(f"s_sleep {opts['xdelay']}")
        p.setflag(FX)
        p.stamp("fw")
    hfirst = (early >= 1 and opts.get("pgearly", 0)) or opts.get("fw") == "pre"
    if opts.get("fin", 1) and not hfirst:
        p("s_waitcnt vmcnt(0)")
        p(f"global_load_dwordx4 v[56:59], v5, {PB} sc1")
        p.setflag(FD)
        p.waitflag(FD, lambda: trr(6, L_WO), 12)
        p("s_branch L_pg0")
    p(f"""
L_pg:
    global_load_dwordx4 v[56:59], v5, {PB} sc1
L_pg0:
    s_waitcnt vmcnt(0)
L_pg1:
    """)
    p.chk([56], 60, 63)
    p(f"""
    v_cmp_ne_u32 vcc, 0, v63
    s_cbranch_vccnz L_pg_retry
L_pg_ok:
    s_mov_b64 exec, -1
    """)
    cold(f"""
L_pg_retry:
    s_sub_u32 s47, s47, 1
    s_cbranch_scc1 L_pg_ok
    s_cmp_lg_u32 s47, {SPIN-TFALL}
    s_cbranch_scc1 L_pg_nf
    s_mov_b32 s54, 1
    """)
    cold.setexec(0x00030003)
    cold.tag(QD, TG)
    cold(f"global_store_dwordx4 v18, {R4(QD)}, {WG} sc1\nL_pg_nf:\ns_mov_b64 exec, vcc")
    cold.toggle()
    cold("s_branch L_pg")
    c1 = -2*0.7978845608028654*LOG2E
    p(f"""
    v_permlane32_swap_b32 v56, v58
    v_permlane32_swap_b32 v57, v59
    v_pk_add_f32 v[56:57], v[56:57], v[58:59]
    s_nop 1
    v_permlane16_swap_b32 v56, v57
    v_add_f32 v56, v56, v57
    s_nop 1
    v_add_f32_dpp v56, v56, v56 row_ror:8 {DPP}
    v_cvt_pk_bf16_f32 v56, 0, v56
    v_mul_f32 v57, v56, v56
    v_mul_f32 v57, {hx(f32(0.044715))}, v57
    v_mov_b32_dpp v58, v56 row_ror:4 {DPP}
    v_fma_f32 v57, v57, v56, v56
    v_mul_f32 v57, {hx(f32(c1))}, v57
    v_exp_f32 v57, v57
    s_nop 0
    v_add_f32 v57, 1.0, v57
    v_rcp_f32 v57, v57
    s_nop 0
    v_mul_f32 v56, v56, v57
    v_cvt_pk_bf16_f32 v56, 0, v56
    v_mul_f32 v56, v56, v58
    v_cvt_pk_bf16_f32 v56, v56, v56
    """)
    p.setexec(0x000f000f)
    p(f"ds_write_b16 v15, v56 offset:{L_OV+256}\ns_mov_b64 exec, -1")
    p.stamp("h")
    if early >= 1 and opts.get("pgearly", 0):
        late_wo()
        if opts.get("fw", "none") != "none": p.wait(opts["fw"])
        p.setflag(FX); p.stamp("fw")
    if opts.get("fin", 1) == 0 or hfirst:
        p("s_waitcnt vmcnt(0)")
        p.setflag(FD)
        p.stamp("allin")
        def dreads():
            p(f"ds_read_b128 v[48:51], v4 offset:{L_OV+256}\nds_read_b128 v[52:55], v4 offset:{L_OV+320}")
            trr(6, L_WO)
        p.waitflag(FD, dreads, 14)
        p(f"""
        s_waitcnt lgkmcnt(0)
        {MF} {R4(QD)}, {R4(TR+16)}, v[48:51], 0
        {MF} {R4(QD)}, {R4(TR+20)}, v[52:55], {R4(QD)}
L_final:
        """)
    else:
        p.setflag(FY)
        p.stamp("allin")
        p.waitflag(FY, lambda: p(f"ds_read_b128 v[48:51], v4 offset:{L_OV+256}\nds_read_b128 v[52:55], v4 offset:{L_OV+320}"), 2)
        p(f"""
        s_waitcnt lgkmcnt(0)
        {MF} {R4(QD)}, {R4(TR+16)}, v[48:51], 0
        {MF} {R4(QD)}, {R4(TR+20)}, v[52:55], {R4(QD)}
L_final:
        """)
    nf = Gen(opts)
    nf("L_noffn:\ns_setprio 0")
    nf.waitflag(LG)
    spf(nf, sp1, min(32, sp1+sp2))
    wo_issue(nf)
    nf("s_waitcnt vmcnt(0)"); nf.setflag(FX)
    if opts.get("so"): nf("s_waitcnt vmcnt(0)\ns_branch L_fin")
    for i in range(4): nf(f"v_mov_b32 v{QD+i}, 0")
    nf("s_waitcnt vmcnt(0)")
    nf.setflag(FD)
    def nreads():
        for s in range(4):
            nf(f"ds_read_b64_tr_b16 v[{TR+4*s}:{TR+4*s+1}], v3 offset:{L_WO+4096*s}")
            nf(f"ds_read_b64_tr_b16 v[{TR+4*s+2}:{TR+4*s+3}], v3 offset:{L_WO+4096*s+512}")
    nf.waitflag(FD, nreads, 8)
    nf("s_branch L_final")
    p("s_lshl_b32 s31, s3, 5\ns_add_u32 s31, s31, s2\ns_cmp_ge_u32 s31, 32\ns_cbranch_scc1 L_nr")
    if opts.get("xe", 1): p(f"global_load_ushort v61, v17, {X}")
    if vote: p(f"s_lshl_b32 s31, s28, 9\ns_add_u32 s31, s31, {VB}\nv_lshl_add_u32 v19, v1, 3, s31\nglobal_load_dwordx2 v[62:63], v19, {WS} sc1")
    p("L_nr:")
    def oreads():
        for s in range(4): p(f"ds_read_b128 {R4(20+4*s)}, v4 offset:{L_OV+64*s}")
    p.waitflag(FO, oreads, 4)
    for s in range(4):
        p.lg(3-s)
        p(f"{MF} {R4(QD)}, {R4(TR+4*s)}, {R4(20+4*s)}, {R4(QD)}")
    p.setexec(0x00030003 if vote else 0x00010001)
    p("s_nop 5")
    p.tag(QD, TG)
    p(f"global_store_dwordx4 v39, {R4(QD)}, {WS} sc1")
    p("s_mov_b64 exec, -1")
    p.stamp("pubY")
    VOTE = "" if not vote else f'''s_xor_b32 s32, s55, 1
    s_waitcnt vmcnt(1)
    v_cmp_eq_u32 vcc, s32, v62
    v_cmp_eq_u32 s[50:51], s32, v63
    s_bcnt1_i32_b64 s31, vcc
    s_bcnt1_i32_b64 s32, s[50:51]
    s_add_u32 s31, s31, s32
    {"v_mov_b32 v62, s31" + chr(10) + "s_lshl_b32 s32, s2, 2" + chr(10) + "v_mov_b32 v63, s32" + chr(10) + "global_store_dword v63, v62, s[24:25]" if opts.get("vdbg") else ""}
    s_cmp_gt_u32 s31, 64
    s_cselect_b32 s31, 8192, 0
    v_add_u32 v13, s31, v13'''
    p(f"""
    s_cmp_ge_u32 s2, 32
    s_cbranch_scc1 L_fin
    s_cmp_lg_u32 s3, 0
    s_cbranch_scc1 L_fin
    {"" if opts.get("xe", 1) else "global_load_ushort v61, v17, " + X}
    s_mov_b32 s47, {SPIN}
    s_bfe_u32 s98, s36, 0x80000
    s_bfe_u32 s99, s36, 0x80008
    s_bfe_u32 s100, s36, 0x80010
    s_bfe_u32 s101, s36, 0x80018
    {VOTE}
L_py:
    global_load_dwordx4 v[48:51], v13, {WS} sc1
    global_load_dwordx4 v[52:55], v13, {WS} offset:1024 sc1
    s_waitcnt vmcnt(0)
    """)
    p.chk([48, 52], 56, 59, "s36")
    p(f"""
    v_cmp_ne_u32 vcc, 0, v59
    s_cbranch_vccz L_py_ok
    s_mov_b64 exec, vcc
    s_sub_u32 s47, s47, 1
    s_cbranch_scc0 L_py
L_py_ok:
    s_mov_b64 exec, -1
    v_pk_add_f32 v[48:49], v[48:49], v[52:53]
    v_pk_add_f32 v[50:51], v[50:51], v[54:55]
    v_lshlrev_b32 v61, 16, v61
    s_nop 0
    v_permlane32_swap_b32 v48, v50
    v_permlane32_swap_b32 v49, v51
    v_pk_add_f32 v[48:49], v[48:49], v[50:51]
    s_nop 1
    v_permlane16_swap_b32 v48, v49
    v_add_f32 v48, v48, v49
    s_nop 1
    v_add_f32_dpp v48, v48, v48 row_ror:4 {DPP}
    s_nop 1
    v_add_f32_dpp v48, v48, v48 row_ror:8 {DPP}
    """)
    p.setexec(0x000f000f)
    p(f"""
    v_add_f32 v48, v48, v61
    v_cvt_pk_bf16_f32 v48, v48, v48
    global_store_short v17, v48, {OUT} {opts.get("ost", "").replace("_", " ")}
    s_cmp_lg_u32 s2, 0
    s_cbranch_scc1 L_fin
    s_mov_b64 exec, 1
    global_store_dword v40, v{TG}, {WS} {opts.get("ost", "").replace("_", " ")}
L_fin:
    """)
    E = NSTAMP - 1
    if "amp2" in opts:
        p(f"""
        s_memrealtime s[{64+2*E}:{65+2*E}]
        s_cmp_lg_u32 s62, 0
        s_cbranch_scc1 L_end
        s_mov_b64 exec, 1
        s_lshl_b32 s50, s2, 2
        s_add_u32 s50, s50, 0x300000
        v_mov_b32 v3, s50
        v_mov_b32 v4, s64
        global_store_dword v3, v4, {WS} sc1
        s_cmp_lg_u32 s2, 0
        s_cbranch_scc1 L_end
        s_mov_b64 exec, -1
        s_sleep 100
        v_add_u32 v3, 0x300000, v2
        global_load_dwordx4 v[4:7], v3, {WS} sc1
        s_waitcnt vmcnt(0) lgkmcnt(0)
        v_sub_u32 v4, s{64+2*E}, v4
        v_sub_u32 v5, s{64+2*E}, v5
        v_sub_u32 v6, s{64+2*E}, v6
        v_sub_u32 v7, s{64+2*E}, v7
        v_min3_u32 v8, v4, v5, v6
        v_min_u32 v8, v8, v7
        v_max3_u32 v9, v4, v5, v6
        v_max_u32 v9, v9, v7
        v_add3_u32 v4, v4, v5, v6
        v_add_u32 v4, v4, v7
        s_mov_b32 s50, 0
        s_mov_b32 s51, -1
        s_mov_b32 s53, 0
        s_mov_b32 s52, 0
L_a2:
        v_readlane_b32 s31, v4, s52
        v_readlane_b32 s32, v8, s52
        v_readlane_b32 s33, v9, s52
        s_add_u32 s50, s50, s31
        s_min_u32 s51, s51, s32
        s_max_u32 s53, s53, s33
        s_add_u32 s52, s52, 1
        s_cmp_lt_u32 s52, 64
        s_cbranch_scc1 L_a2
        s_mul_i32 s50, s50, {(5,10,0,0)[opts["amp2"]]}
        s_lshr_b32 s50, s50, 8
        s_mul_i32 s51, s51, {(5,0,10,0)[opts["amp2"]]}
        s_mul_i32 s53, s53, {(0,0,0,10)[opts["amp2"]]}
        s_add_u32 s63, s50, s51
        s_add_u32 s63, s63, s53
        s_min_u32 s63, s63, 100000
        s_add_u32 s63, s63, s{64+2*E}
L_amp:
        s_memrealtime s[50:51]
        s_waitcnt lgkmcnt(0)
        s_sub_u32 s61, s50, s63
        s_cmp_lt_i32 s61, 0
        s_cbranch_scc1 L_amp
        """)
    elif "amp" in opts:
        i = opts["amp"]
        p(f"""
        s_memrealtime s[{64+2*E}:{65+2*E}]
        s_waitcnt lgkmcnt(0)
        s_cmp_lg_u32 s2, {opts.get("ampwg", 0)}
        s_cbranch_scc1 L_end
        s_cmp_lg_u32 s62, {opts.get("ampw", 0)}
        s_cbranch_scc1 L_end
        s_sub_u32 s63, s{64+2*i}, s64
        s_mul_i32 s63, s63, 10
        s_min_u32 s63, s63, 100000
        s_add_u32 s63, s63, s{64+2*E}
L_amp:
        s_memrealtime s[50:51]
        s_waitcnt lgkmcnt(0)
        s_sub_u32 s61, s50, s63
        s_cmp_lt_i32 s61, 0
        s_cbranch_scc1 L_amp
        """)
    elif opts.get("stamps"):
        p(f"""
        s_memrealtime s[{64+2*E}:{65+2*E}]
        s_sleep 127
        s_waitcnt lgkmcnt(0)
        s_lshl_b32 s50, s2, 3
        s_add_u32 s50, s50, s62
        s_lshl_b32 s50, s50, 8
        s_add_u32 s50, s50, {STAMP_OFF}
        s_mov_b64 exec, 1
        v_mov_b32 v3, s50
        """)
        for i in ((0, E) if opts.get("light") else range(NSTAMP)):
            p(f"v_mov_b32 v4, s{64+2*i}\nv_mov_b32 v5, s{65+2*i}\nglobal_store_dwordx2 v3, v[4:5], {WS} offset:{8*i}")
    p("s_endpgm")
    al = a.L
    ia = next(i for i, l in enumerate(al) if "HEAD_END" in l)
    ip = next(i for i, l in enumerate(p.L) if "HEAD_END" in l)
    body = (c.L + p.L[:ip] + ["    s_branch L_P2", "L_A1:"] + al[:ia] + ["    s_branch L_A2", "L_P2:"] + p.L[ip+1:]
            + ["L_A2:"] + al[ia+1:] + nf.L + cold.L + ["L_end:", "    s_endpgm"])
    opts["names"] = [f"{p.names[i] if i < len(p.names) else '-'}|{a.names[i] if i < len(a.names) else '-'}" for i in range(E)] + ["end"]
    hdr = open("cdna_kernels/" + NAME + ".s.ref").read().split("; Override")[0]
    return hdr + f"""; @launch grid=(256,1,1) block=(512,1,1) lds={opts.get("lds", LDS_BYTES)}
""" + DOC + f""".amdgcn_target "amdgcn-amd-amdhsa--gfx950"
.text
.globl {NAME}_kernel
.p2align 8
.type {NAME}_kernel,@function
{NAME}_kernel:
""" + "\n".join(body) + f"""
.section .rodata,"a"
.p2align 6
.amdhsa_kernel {NAME}_kernel
  .amdhsa_next_free_vgpr 224
  .amdhsa_next_free_sgpr 102
  .amdhsa_accum_offset 224
  .amdhsa_group_segment_fixed_size 0
  .amdhsa_kernarg_size 96
  .amdhsa_user_sgpr_count 2
  .amdhsa_user_sgpr_kernarg_segment_ptr 1
  .amdhsa_system_sgpr_workgroup_id_x 1
  .amdhsa_float_denorm_mode_32 3
.end_amdhsa_kernel
"""

if __name__ == "__main__":
    out = sys.argv[1]
    opts = {}
    for kv in sys.argv[2:]:
        k, v = kv.split("=")
        try: v = int(v)
        except ValueError: pass
        opts[k] = v
    open(out, "w").write(build(opts))
    if opts.get("stamps") and not opts.get("light"): print(",".join(opts["names"]))
```

```python
import sys, struct
NAME = "parallel_sum__sliding_block_cached__geglu_ffn__decode"
STAMP_OFF = 0x10000000
def f32(x): return struct.unpack("<I", struct.pack("<f", x))[0]
def hx(x): return "0x%08x" % (x & 0xffffffff)
DPP = "row_mask:0xf bank_mask:0xf"
NSTAMP = 17
HB = 0x800; QB = 0x1000; GB = 0x11000; MLB = 0x31000; YB = 0x38000; OB = 0x50000; GOFF = 0x100000
L_WQ = 0x0000; L_G = 0x4000; L_WO = 0x8000; L_XN = 0xE000; L_M = 0xE400; L_L = 0xE440; L_F = 0xE480; L_OV = 0xE540
L_QT = 0xE6C0; L_Q = 0xE800; QSTR = 272; L_O = 0x0000; OSTR = 272
F1, FG, FQ, FW, FP, FV, FD, FO, F1b, FX, FS, FY = [L_F + 16*i for i in range(12)]
LDS_BYTES = 98304
SPIN = 2000000; TFALL = 256
LOG2E = 1.4426950408889634
X, K, V, WQ, WO, G, U, D, OUT, WS = "s[4:5]", "s[6:7]", "s[8:9]", "s[10:11]", "s[12:13]", "s[16:17]", "s[18:19]", "s[20:21]", "s[22:23]", "s[26:27]"
WG, PB = "s[56:57]", "s[58:59]"
MF = "v_mfma_f32_16x16x32_bf16"
TL, TG, DUM = 124, 125, 126
def R4(r): return f"v[{r}:{r+3}]"
def R2(r): return f"v[{r}:{r+1}]"
def bc(r):
    return (f"v[{r}:{r+1}]", 0) if r % 2 == 0 else (f"v[{r-1}:{r}]", 1)

DOC = '''; ---------------------------------------------------------------------------------------------
;   waves 0-3 ("P"): LayerNorm, a 128x64 tile of wq, 64x64 tiles of w_gate / w_up, a 128x64 tile of wo
; epoch word found in d_ws).  q / gate-up / o partials use plain stores with a tag bound to the XCC id
; Generated by the author's own script.
; ---------------------------------------------------------------------------------------------
'''

class Gen:
    nsync = 0
    def __init__(self, opts):
        self.L = []; self.o = opts; self.vm = []; self.nst = 1; self.names = ["start"]
    def __call__(self, s):
        for l in s.strip("\n").split("\n"):
            l = l.strip()
            if not l: continue
            self.L.append(l if l.endswith(":") else "    " + l)
    def vmem(self, name, s):
        self(s); self.vm.append(name)
    def wait(self, name):
        idx = max(i for i, n in enumerate(self.vm) if n == name)
        self(f"s_waitcnt vmcnt({len(self.vm) - 1 - idx})")
    def lg(self, n): self(f"s_waitcnt lgkmcnt({n})")
    def stamp(self, label=""):
        if not self.o.get("stamps") or self.o.get("light"): return
        i = self.nst; self.nst += 1
        assert i < NSTAMP - 1
        self(f"s_memrealtime s[{64+2*i}:{65+2*i}]   ; stamp {i} {label}")
        self.names.append(label)
    def cnt(self, label):
        if not self.o.get("stamps") or self.o.get("light"): return
        i = self.nst; self.nst += 1
        self(f"s_sub_u32 s31, {SPIN}, s47\ns_mul_i32 s31, s31, 100\ns_add_u32 s{64+2*i}, s64, s31\ns_addc_u32 s{65+2*i}, s65, 0")
        self.names.append(label)
    def setexec(self, m32):
        self(f"s_mov_b32 exec_lo, {hx(m32)}\ns_mov_b32 exec_hi, {hx(m32)}")
    def tag(self, r, tv=TL):
        for i in range(4): self(f"v_perm_b32 v{r+i}, v{r+i}, v{tv}, s{38+i}")
    def chk(self, units, t, acc, ts=None):
        regs = [r + i for r in units for i in range(4)]
        for r in regs: self(f"v_xor_b32 v{r}, s{98 + (r - units[0]) % 4}, v{r}")
        self(f"v_or3_b32 v{acc}, v{regs[0]}, v{regs[1]}, v{regs[2]}")
        rest = regs[3:]
        if len(rest) > 5:
            self(f"v_or3_b32 v{t}, v{rest[0]}, v{rest[1]}, v{rest[2]}"); rest = rest[3:]
            k = 0
            while len(rest) > 2:
                d = (acc, t)[k & 1]; k += 1
                self(f"v_or3_b32 v{d}, v{d}, v{rest[0]}, v{rest[1]}"); rest = rest[2:]
            rest = rest + [t]
        while len(rest) >= 2:
            self(f"v_or3_b32 v{acc}, v{acc}, v{rest[0]}, v{rest[1]}"); rest = rest[2:]
        if rest: self(f"v_bitop3_b32 v{acc}, v{acc}, v{rest[0]}, s44 bitop3:0xa8")
        else: self(f"v_and_b32 v{acc}, 0xff, v{acc}")
    def tagbytes(self, src):
        for i in range(4): self(f"s_bfe_u32 s{98+i}, {src}, {hx((8 << 16) | (8*i))}")
    def toggle(self):
        self(f"s_and_b32 s31, s47, s54\ns_cselect_b64 {PB}, {WG}, {WS}\ns_cselect_b32 s60, s36, s55")
        self.tagbytes("s60")
    def setflag(self, F): self(f"ds_write_b32 v42, v40 offset:{F}")
    def waitflag(self, F, reads=None, nreads=0):
        n = Gen.nsync; Gen.nsync += 1
        self(f"L_ps{n}:\nds_read_b128 v[44:47], v40 offset:{F}")
        if reads: reads()
        self(f"s_waitcnt lgkmcnt({nreads})\nv_or3_b32 v44, v44, v45, v46\nv_or_b32 v44, v44, v47\nv_cmp_ne_u32 vcc, 0, v44\ns_cbranch_vccnz L_ps{n}")
    def pkmul(self, d, s, f):
        src, h = bc(f); self(f"v_pk_mul_f32 {R2(d)}, {R2(s)}, {src} op_sel:[0,{h}] op_sel_hi:[1,{h}]")
    def pkfma(self, d, s, f):
        src, h = bc(f); self(f"v_pk_fma_f32 {R2(d)}, {R2(s)}, {src}, {R2(d)} op_sel:[0,{h},0] op_sel_hi:[1,{h},1]")

def build(opts):
    Gen.nsync = 0
    global YB
    YB = 0xD0000 + opts.get("yb", 0); PRB = 0x1C0000 + opts.get("yb", 0); VB = 0x36000
    vote = opts.get("vote", 0)
    c = Gen(opts); p = Gen(opts); a = Gen(opts); cold = Gen(opts)
    ntm = str(opts.get("nt", "kvwq"))
    if ntm == "1": ntm = "kvwqp"
    nts = lambda ch: " nt" if ch in ntm else ""
    NT = nts("w")
    pace = opts.get("pace", 8)
    sc = lambda ch: " sc1" if ch in str(opts.get("sc", "")) else ""
    def tags(g):
        g(f"""
        s_mul_i32 s36, s36, 0x9E3779B1
        s_add_u32 s36, s36, 0x7F4A7C15
        s_add_u32 s55, s55, 1
        s_mul_i32 s55, s55, 0x85EBCA6B
        s_xor_b32 s55, s55, s36
        s_mov_b32 s60, s55
        v_mov_b32 v{TL}, s55
        v_mov_b32 v{TG}, s36
        """)
        g.tagbytes("s55")
    def consts(g):
        g(f"""
        s_getreg_b32 s55, hwreg(HW_REG_XCC_ID, 0, 4)
        s_add_u32 s56, s26, {GOFF}
        s_addc_u32 s57, s27, 0
        s_mov_b64 {PB}, {WS}
        s_mov_b32 s54, 0
        s_lshr_b32 s31, s29, 3
        s_lshl_b32 s52, s28, 2
        s_add_u32 s52, s52, s31                 ; 4g+hh
        s_mov_b32 s38, 0x07060500
        s_mov_b32 s39, 0x07060501
        s_mov_b32 s40, 0x07060502
        s_mov_b32 s41, 0x07060503
        s_movk_i32 s44, 0xff
        s_lshl_b32 s31, s3, 2
        v_mov_b32 v42, s31
        v_mov_b32 v40, 0
        s_lshl_b32 s61, s28, 13
        s_add_u32 s61, s61, {QB}
        s_and_b32 s31, s29, 3
        s_lshl_b32 s31, s31, 11
        s_add_u32 s31, s31, s61
        s_and_b32 s32, s29, 28
        s_add_u32 s32, s32, s3
        s_lshl_b32 s32, s32, 6
        s_add_u32 s31, s31, s32
        v_lshl_add_u32 v5, v10, 4, s31
        s_lshl_b32 s31, s30, 2
        s_add_u32 s31, s31, {HB}
        v_mov_b32 v38, s31
        s_lshl_b32 s31, s3, 6
        v_lshl_add_u32 v41, v10, 4, s31
        """)
    if opts.get("stamps"): c("s_memrealtime s[64:65]")
    c(f"""
    s_load_dwordx16 s[4:19], s[0:1], 0
    s_load_dwordx8 s[20:27], s[0:1], 64
    s_cmp_ge_u32 s2, 256
    s_cbranch_scc1 L_end
    """)
    if opts.get("stamps"):
        for i in range(1, NSTAMP): c(f"s_mov_b64 s[{64+2*i}:{65+2*i}], 0")
    c(f"""
    v_lshrrev_b32 v2, 6, v0
    v_and_b32 v1, 63, v0
    v_readfirstlane_b32 s62, v2
    s_and_b32 s28, s2, 7
    s_lshr_b32 s29, s2, 3
    {"s_xor_b32 s29, s29, %d" % opts["jx"] if opts.get("jx") else ""}
    s_lshl_b32 s30, s28, 5
    s_add_u32 s30, s30, s29                 ; p
    v_lshlrev_b32 v2, 4, v1                 ; lane*16
    v_lshrrev_b32 v12, 3, v1                ; lane>>3
    v_and_b32 v13, 0x70, v2                 ; (lane&7)*16
    v_and_b32 v9, 15, v1
    v_lshrrev_b32 v10, 4, v1
    s_and_b32 s3, s62, 3
    s_cmp_ge_u32 s62, 4
    s_cbranch_scc1 L_A1
    """)
    KR, VR, VT = 128, 160, 192
    QO, S, PM, DD = 48, 64, 72, 88
    ONE, LD, MK = 96, 100, 104
    order = opts.get("ord", "i.q.t.w.j").split(".")
    width = {"i":2, "q":2, "t":1, "w":2, "j":5, "jl":3, "jh":2}
    sh = {}; b_ = 8
    for f_ in order: sh[f_] = b_; b_ += width[f_]
    assert b_ == 20
    KMAP = f"s_lshl_b32 s31, s3, {sh['w']}\n"
    if "j" in sh: KMAP += f"s_lshl_b32 s32, s29, {sh['j']}\ns_add_u32 s31, s31, s32\n"
    else: KMAP += f"s_and_b32 s32, s29, 7\ns_lshl_b32 s32, s32, {sh['jl']}\ns_add_u32 s31, s31, s32\ns_lshr_b32 s32, s29, 3\ns_lshl_b32 s32, s32, {sh['jh']}\ns_add_u32 s31, s31, s32\n"
    opts.setdefault("xm", 7)
    if opts.get("xm"): KMAP += f"s_xor_b32 s33, s29, s28\ns_and_b32 s33, s33, {opts['xm']}\ns_lshl_b32 s33, s33, {sh['t']}\ns_xor_b32 s31, s31, s33\n"
    KMAP += f'''s_lshl_b32 s32, s28, 24
    s_add_u32 s31, s31, s32
    s_add_u32 s31, s31, {61440*256}
    v_and_b32 v7, 3, v9
    v_lshlrev_b32 v7, {sh["i"]}, v7
    v_lshrrev_b32 v8, 2, v9
    v_lshl_add_u32 v7, v8, {sh["q"]}, v7
    v_lshl_add_u32 v7, v10, 4, v7
    v_add_u32 v7, s31, v7
    v_xor_b32 v26, {1 << sh["t"]}, v7
    v_lshlrev_b32 v8, {sh["q"]}, v10
    v_lshl_add_u32 v8, v9, 4, v8
    v_add_u32 v8, s31, v8                   ; V voff'''
    a(f"""
    s_getpc_b64 s[34:35]
L_pc:
    s_lshl_b32 s31, s29, 2
    s_add_u32 s31, s31, s3
    s_lshl_b32 s31, s31, 7
    s_min_u32 s31, s31, L_end-L_pc
    v_mov_b32 v14, s31
    s_mov_b64 exec, 1
    global_load_dword v{DUM}, v14, s[34:35]{nts('c')}
    s_mov_b64 exec, -1
    v_lshlrev_b32 v14, 2, v1
    v_mov_b32 v15, -1
    ds_write_b32 v14, v15 offset:{L_M}
    ds_write_b32 v14, v15 offset:{L_M+64}
    {KMAP}
    s_setprio 1
    s_waitcnt lgkmcnt(0)
    """)
    a.stamp("karg")
    a(f"s_load_dword s36, {WS}, 0")
    a("s_barrier")
    if opts.get("headk", 1) == 0: a("; HEAD_END")
    consts(a)
    a(f"""
    s_lshl_b32 s31, s3, 9
    s_add_u32 s31, s31, s61
    s_add_u32 s31, s31, 4096
    v_and_b32 v14, 0x1f0, v2
    v_lshrrev_b32 v6, 5, v1
    v_lshl_add_u32 v6, v6, 11, v14
    v_add_u32 v6, s31, v6
    s_lshl_b32 s31, s28, 7
    s_add_u32 s31, s31, {HB}
    v_lshrrev_b32 v14, 2, v14
    v_add_u32 v39, s31, v14
    """)
    if opts.get("kdelay", 0): a(f"s_sleep {opts.get('kdelay', 0)}")
    if opts.get("alt", 0): seq = "K00 K01 V4 V5 K02 K03 V6 V7 K10 K11 V0 V1 K12 K13 V2 V3".split()
    else: seq = "K00 K01 K02 K03 K10 K11 K12 K13 V0 V1 V2 V3 V4 V5 V6 V7".split()
    def kv(nm):
        if nm[0] == "K":
            t, s = int(nm[1]), int(nm[2])
            if opts.get("klin"):
                a(f"v_xor_b32 v27, {hx((t << sh['t']) + (s << sh['i']))}, v8")
                a.vmem(nm, f"global_load_dwordx4 {R4(KR+16*t+4*s)}, v27, {K}{nts('k')}")
            else: a.vmem(nm, f"global_load_dwordx4 {R4(KR+16*t+4*s)}, v{(7,26)[t]}, {K} offset:{64*s}{nts('k')}")
        else:
            t = int(nm[1])
            off = ((t >> 2) << sh["t"]) + ((t & 3) << sh["i"])
            if t: a(f"v_xor_b32 v27, {hx(off)}, v8")
            a.vmem(nm, f"global_load_dwordx4 {R4(VR+4*t)}, v{27 if t else 8}, {V}{nts('v')}")
    n0 = opts.get('n0', 6)
    for nm in seq[:n0]: kv(nm)
    a.stamp("K_iss")
    if opts.get("headk", 1): a("; HEAD_END")
    def prep():
        for r in range(ONE, ONE+4): a(f"v_mov_b32 v{r}, 0x3f803f80")
        a("v_bfe_u32 v14, v1, 2, 2")
        for e in range(4): a(f"v_cmp_eq_u32 s[50:51], {e}, v14\ns_nop 1\nv_cndmask_b32 v{MK+e}, 0, -1, s[50:51]")
        a(f"""
        s_mov_b32 s42, 0x05040100
        s_mov_b32 s43, 0x07060302
        s_mul_i32 s31, s3, {QSTR}
        s_add_u32 s31, s31, {L_Q}
        v_and_b32 v24, 31, v1
        v_lshl_add_u32 v24, v24, 3, s31
        v_lshrrev_b32 v14, 5, v1
        v_lshl_add_u32 v24, v14, 2, v24
        v_and_b32 v17, 3, v1
        v_mul_u32_u24 v17, {QSTR}, v17
        v_lshl_add_u32 v14, v10, 4, v17
        s_mov_b32 s48, {hx(f32(128**-0.5))}
        s_mov_b32 s49, {hx(f32(LOG2E))}
        s_mul_i32 s31, s3, {8*OSTR}
        v_mul_u32_u24 v15, {OSTR}, v10
        v_lshl_add_u32 v15, v9, 4, v15
        v_add_u32 v15, s31, v15
        v_add_u32 v16, v42, v2
        v_and_b32 v18, 12, v1
        v_add_u32 v18, v18, v10
        v_lshl_add_u32 v17, v18, 4, v17
        s_mul_i32 s31, s3, {4*OSTR}
        v_add_u32 v17, s31, v17
        v_lshlrev_b32 v18, 4, v10
        s_lshl_b32 s31, s30, 3
        s_add_u32 s31, s31, s3
        s_lshl_b32 s31, s31, 8
        s_add_u32 s31, s31, {OB}
        v_lshlrev_b32 v19, 9, v10
        v_lshl_add_u32 v19, v9, 4, v19
        v_add_u32 v19, s31, v19                  ; O voff
        s_lshl_b32 s31, s28, 10
        s_lshl_b32 s32, s29, 3
        s_add_u32 s31, s31, s32
        s_add_u32 s31, s31, {MLB}
        v_lshl_add_u32 v20, v10, 8, s31
        s_lshl_b32 s31, s28, 16
        s_and_b32 s32, s29, 24
        s_lshl_b32 s32, s32, 6
        s_add_u32 s31, s31, s32
        s_lshl_b32 s32, s3, 7
        s_add_u32 s31, s31, s32
        s_add_u32 s31, s31, {OB+4096}
        v_lshl_add_u32 v43, v12, 13, v13
        v_add_u32 v43, s31, v43
        s_lshl_b32 s31, s52, 8
        s_add_u32 s31, s31, {MLB}
        v_lshl_add_u32 v21, v12, 5, s31
        v_and_b32 v22, 3, v1
        v_lshlrev_b32 v22, 6, v22
        v_lshl_add_u32 v22, v10, 4, v22
        v_bfe_u32 v23, v1, 2, 1
        v_lshl_add_u32 v22, v23, 1, v22
        v_add_u32 v22, v42, v22
        s_mov_b32 s47, {SPIN}
        s_waitcnt lgkmcnt(0)
        """)
        tags(a)
    assert QSTR == OSTR
    prep()
    if vote:
        VM = f'''        s_memtime s[50:51]
        s_load_dword s53, {WS}, s32
        s_waitcnt lgkmcnt(0)
        s_memtime s[14:15]
        s_load_dword s53, {WS}, s46
        s_waitcnt lgkmcnt(0)
        s_memtime s[24:25]
        s_lshl_b32 s31, s31, 2
        s_add_u32 s31, s31, {VB}
        v_mov_b32 v25, s31
        s_waitcnt lgkmcnt(0)
        s_sub_u32 s50, s14, s50
        s_sub_u32 s51, s24, s14
        s_cmp_gt_u32 s50, s51
''' if vote == 1 else f'''        s_lshl_b32 s31, s31, 2
        s_add_u32 s31, s31, {VB}
        v_mov_b32 v25, s31
        s_mov_b32 s50, s55
        s_load_dword s50, {WS}, s32
        s_load_dword s51, {WS}, s46
        s_waitcnt lgkmcnt(1)
        s_cmp_eq_u32 s50, s55
        s_cselect_b32 s53, 1, 0
        s_waitcnt lgkmcnt(0)
        s_cmp_lg_u32 s53, 0
'''
        a(f"""
        s_lshl_b32 s31, s30, 2
        s_add_u32 s31, s31, s3
        s_and_b32 s32, s31, 63
        s_lshl_b32 s32, s32, 7
        s_lshr_b32 s33, s31, 6
        s_lshl_b32 s33, s33, 14
        s_add_u32 s32, s32, s33
        s_add_u32 s32, s32, {PRB}
        s_and_b32 s33, s3, 1
        s_lshl_b32 s46, s33, 13
        s_xor_b32 s32, s32, s46
        s_xor_b32 s46, s32, 8192
        {VM}
        s_cselect_b32 s50, 1, 0
        s_xor_b32 s50, s50, s33
        s_xor_b32 s50, s50, s55
        v_mov_b32 v37, s50
        s_mov_b64 exec, 1
        """)
        a.vmem("vote", f"global_store_dword v25, v37, {WS}")
        a("s_mov_b64 exec, -1")
    def pollq(g, r=28):
        g(f"global_load_dwordx4 {R4(r)}, v6, {PB} offset:-4096 sc1\nglobal_load_dwordx4 {R4(r+4)}, v6, {PB} sc1\nglobal_load_dword v{r+8}, v39, {PB} sc1")
    if n0 < 8:
        a.waitflag(FP)
        for nm in seq[n0:8]: kv(nm)
    pq_at = opts.get("pq_at", 4)
    def dopoll():
        a.setflag(FV)
        a.waitflag(FV)
        pollq(a); a.vm += ["pq0", "pq1", "pq"]
        a.stamp("pq_iss")
    if opts.get("gate", 0) < 0: a("s_mov_b64 vcc, -1")
    for t in range(8):
        if opts.get("gate", 0) == t and n0 >= 8: a.waitflag(FP)
        if 8 + t >= pace and opts.get("gate", 0) < 0:
            a(f"""
            s_cbranch_vccz L_pa{t}
            s_waitcnt vmcnt({pace-1})
            ds_read_b128 v[44:47], v40 offset:{FP}
            s_waitcnt lgkmcnt(0)
            v_or3_b32 v44, v44, v45, v46
            v_or_b32 v44, v44, v47
            v_cmp_ne_u32 vcc, 0, v44
L_pa{t}:
            """)
        if t == pq_at: dopoll()
        kv(seq[8+t])
    a.stamp("V_iss")
    if opts.get("so"):
        a.setflag(FV); a.setflag(FW)
        a("s_waitcnt vmcnt(0)")
        a.setflag(FQ)
        a("s_branch L_fin")
    if pq_at == 8: dopoll()
    pq2 = opts.get("pq2", 2)
    if pq2:
        if pq2 == 2:
            a.setflag(F1b); a.waitflag(F1b)
        pollq(a, 112); a.vm += ["pr0", "pr1", "pr"]
    a.setflag(FW)
    def vperm(tp):
        a.wait(f"V{2*tp+1}")
        for d in range(4):
            lo = VR + 8*tp + d; hi = lo + 4
            a(f"v_perm_b32 v{VT+4*(2*d)+tp}, v{hi}, v{lo}, s42")
            a(f"v_perm_b32 v{VT+4*(2*d+1)+tp}, v{hi}, v{lo}, s43")
    npre = pq_at // 2
    for tp in range(npre): vperm(tp)
    a.wait("pq")
    a.stamp("pq_ret")
    a("L_pq:")
    a.chk([28, 32], 25, 37)
    a(f"""
    v_xor_b32 v25, s60, v36
    v_or_b32 v37, v37, v25
    v_cmp_ne_u32 vcc, 0, v37
    s_cbranch_vccnz L_pq_retry
L_pq_ok:
    s_mov_b64 exec, -1
    v_pk_add_f32 v[28:29], v[28:29], v[32:33]
    v_pk_add_f32 v[30:31], v[30:31], v[34:35]
    s_nop 1
    v_permlane32_swap_b32 v28, v30
    v_permlane32_swap_b32 v29, v31
    v_pk_add_f32 v[28:29], v[28:29], v[30:31]
    v_cvt_pk_bf16_f32 v28, v28, v29
    ds_write_b32 v24, v28
    """)
    a.setflag(FQ)
    cold("L_pq_retry:\ns_sub_u32 s47, s47, 1\ns_cbranch_scc1 L_pq_ok")
    if pq2:
        cold(f"s_cmp_lg_u32 s47, {SPIN-1}\ns_cbranch_scc1 L_pq_r2\ns_waitcnt vmcnt(0)")
        for i in range(9): cold(f"v_mov_b32 v{28+i}, v{112+i}")
        cold("s_branch L_pq\nL_pq_r2:")
    cold(f"""
    s_cmp_lg_u32 s47, {SPIN-TFALL}
    s_cbranch_scc1 L_pq_nf
    s_mov_b32 s54, 1
    s_mov_b64 exec, -1
    s_mov_b64 s[50:51], vcc
    """)
    cold.waitflag(FP, lambda: cold(f"ds_read_b128 {R4(S)}, v41 offset:{L_QT}"), 0)
    cold("s_mov_b64 vcc, s[50:51]")
    cold.setexec(0x00010001)
    cold.tag(S, TG)
    cold(f"""
    global_store_dword v38, v{TG}, {WG} sc1
    global_store_dwordx4 v5, {R4(S)}, {WG} sc1
L_pq_nf:
    s_mov_b64 exec, vcc
    """)
    cold.toggle(); pollq(cold)
    cold("s_waitcnt vmcnt(0)\ns_branch L_pq")
    a.cnt("#pq")
    def qreads():
        for s in range(4): a(f"ds_read_b128 {R4(QO+4*s)}, v14 offset:{L_Q+64*s}")
    a.waitflag(FQ, qreads, 4)
    a.stamp("q_ok")
    for s in range(4):
        a.lg(3-s)
        for t in range(2):
            a(f"{MF} {R4(S+4*t)}, {R4(KR+16*t+4*s)}, {R4(QO+4*s)}, {'0' if s==0 else R4(S+4*t)}")
    a(f"s_mov_b32 s47, {SPIN}\ns_nop 5")
    for i in range(8): a(f"v_cvt_pk_bf16_f32 v{S+i}, 0, v{S+i}")
    for i in range(0, 8, 2): a(f"v_pk_mul_f32 {R2(S+i)}, {R2(S+i)}, s[48:49] op_sel_hi:[1,0]")
    for i in range(8): a(f"v_cvt_pk_bf16_f32 v{S+i}, 0, v{S+i}")
    a(f"""
    v_max3_f32 v108, v{S}, v{S+1}, v{S+2}
    v_max3_f32 v109, v{S+3}, v{S+4}, v{S+5}
    v_max3_f32 v108, v108, v{S+6}, v{S+7}
    v_max_f32 v108, v108, v109
    """)
    for sw in (16, 32):
        a(f"v_mov_b32 v109, v108\ns_nop 1\nv_permlane{sw}_swap_b32 v108, v109\nv_max_f32 v108, v108, v109")
    a("v_mul_f32 v108, s49, v108")
    for i in range(0, 8, 2):
        a(f"v_pk_fma_f32 {R2(S+i)}, {R2(S+i)}, s[48:49], v[108:109] op_sel:[0,1,0] op_sel_hi:[1,1,0] neg_lo:[0,0,1] neg_hi:[0,0,1]")
    for i in range(8): a(f"v_exp_f32 v{S+i}, v{S+i}")
    a("v_min_u32 v108, -2, v108")
    for i in range(4): a(f"v_cvt_pk_bf16_f32 v{S+i}, v{S+2*i}, v{S+2*i+1}")
    def msk(e):
        for i in range(4): a(f"v_and_b32 v{PM+4*e+i}, v{S+i}, v{MK+e}")
    def pv(e):
        for hf in range(2):
            a(f"{MF} {R4(DD+4*hf)}, {R4(VT+4*(4*hf+e))}, {R4(PM+4*e)}, {'0' if e==0 else R4(DD+4*hf)}")
    msk(0)
    a(f"{MF} {R4(LD)}, {R4(ONE)}, {R4(S)}, 0")
    if npre == 4:
        msk(1); a.stamp("V"); pv(0); msk(2); pv(1); msk(3); pv(2); pv(3)
    else:
        msk(1); msk(2); msk(3)
        for tp in range(npre, 4): vperm(tp)
        a.stamp("V")
        a("s_nop 1")
        for e in range(4): pv(e)
    a(f"""
    s_mov_b64 exec, 0xf
    ds_write_b32 v16, v{LD} offset:{L_L}
    s_mov_b64 exec, -1
    s_nop 3
    ds_write_b128 v15, {R4(DD)} offset:{L_O}
    ds_write_b128 v15, {R4(DD+4)} offset:{L_O+4*OSTR}
    s_mov_b64 exec, 0xf
    ds_write_b32 v16, v108 offset:{L_M}
    s_mov_b64 exec, -1
    """)
    a.stamp("PV")
    a(f"""
    s_cmp_ge_u32 s3, 2
    s_cbranch_scc1 L_nocomb
L_cmb:
    ds_read_b128 {R4(S)}, v18 offset:{L_M}
    ds_read_b128 {R4(S+4)}, v18 offset:{L_L}
    """)
    for w in range(4):
        a(f"ds_read_b128 {R4(PM+4*w)}, v17 offset:{L_O+8*OSTR*w}")
    a.lg(5)
    a(f"""
    v_max3_u32 v110, v{S}, v{S+1}, v{S+2}
    v_max3_f32 v108, v{S}, v{S+1}, v{S+2}
    v_max_u32 v110, v110, v{S+3}
    v_max_f32 v108, v108, v{S+3}
    v_cmp_eq_u32 vcc, -1, v110
    s_cbranch_vccnz L_cmb
    v_pk_add_f32 {R2(S)}, {R2(S)}, v[108:109] op_sel_hi:[1,0] neg_lo:[0,1] neg_hi:[0,1]
    v_pk_add_f32 {R2(S+2)}, {R2(S+2)}, v[108:109] op_sel_hi:[1,0] neg_lo:[0,1] neg_hi:[0,1]
    """)
    for w in range(4): a(f"v_exp_f32 v{S+w}, v{S+w}")
    a.lg(4)
    a(f"""
    v_pk_mul_f32 {R2(S+4)}, {R2(S)}, {R2(S+4)}
    v_pk_fma_f32 {R2(S+4)}, {R2(S+2)}, {R2(S+6)}, {R2(S+4)}
    v_add_f32 v110, v{S+4}, v{S+5}
    v_rcp_f32 v111, v110
    v_log_f32 v110, v110
    s_waitcnt lgkmcnt(0)
    """)
    a.pkmul(DD, PM, S); a.pkmul(DD+2, PM+2, S)
    a(f"v_add_f32 v108, v108, v110\nv_mov_b32 v109, v{TL}")
    for w in range(1, 4):
        a.pkfma(DD, PM+4*w, S+w); a.pkfma(DD+2, PM+4*w+2, S+w)
    a.pkmul(DD, DD, 111); a.pkmul(DD+2, DD+2, 111)
    a.tag(DD)
    a(f"global_store_dwordx4 v19, {R4(DD)}, {WS}{sc('o')}")
    a.setexec(0x00010001)
    a(f"""
    global_store_dwordx2 v20, v[108:109], {WS}{sc('o')}
    s_mov_b64 exec, -1
    s_cmp_lg_u32 s54, 0
    s_cbranch_scc1 L_fbO
L_nocomb:
    """)
    cold("L_fbO:")
    cold.tag(DD, TG)
    cold(f"v_mov_b32 v109, v{TG}\nglobal_store_dwordx4 v19, {R4(DD)}, {WG} sc1")
    cold.setexec(0x00010001)
    cold(f"global_store_dwordx2 v20, v[108:109], {WG} sc1\ns_mov_b64 exec, -1\ns_branch L_nocomb")
    a.setflag(FS)
    a.stamp("pubO")
    if opts.get("fx", 1): a.waitflag(FX)
    a.stamp("FX")
    LS, OD = 48, 56
    def odata(g):
        for k in range(4): g(f"global_load_dwordx4 {R4(OD+4*k)}, v43, {PB} offset:{2048*k-4096} sc1")
    if not opts.get("spec", 1): a("s_mov_b64 vcc, -1\ns_branch L_po_retry")
    a("L_po:")
    for k in range(2): a(f"global_load_dwordx4 {R4(LS+4*k)}, v21, {PB} offset:{16*k} sc1")
    odata(a)
    if opts.get("fw") == "pre": a.setflag(FY)
    a(f"""
    s_mov_b64 exec, -1
    s_waitcnt vmcnt(4)
    v_xor_b32 v76, s60, v{LS+1}
    v_xor_b32 v77, s60, v{LS+3}
    v_xor_b32 v78, s60, v{LS+5}
    v_or3_b32 v76, v76, v77, v78
    v_xor_b32 v77, s60, v{LS+7}
    v_or_b32 v76, v76, v77
    v_cmp_ne_u32 vcc, 0, v76
    s_cbranch_vccnz L_po_retry
L_po_ok:
    v_max3_f32 v76, v{LS}, v{LS+2}, v{LS+4}
    v_max_f32 v76, v76, v{LS+6}
    s_nop 1
    v_max_f32_dpp v76, v76, v76 row_ror:8 {DPP}
    v_mov_b32 v77, v76
    s_nop 1
    v_permlane16_swap_b32 v76, v77
    v_max_f32 v76, v76, v77
    v_mov_b32 v77, v76
    s_nop 1
    v_permlane32_swap_b32 v76, v77
    v_max_f32 v76, v76, v77
    v_sub_f32 v80, v{LS}, v76
    v_sub_f32 v81, v{LS+2}, v76
    v_sub_f32 v82, v{LS+4}, v76
    v_sub_f32 v83, v{LS+6}, v76
    v_exp_f32 v80, v80
    v_exp_f32 v81, v81
    v_exp_f32 v82, v82
    v_exp_f32 v83, v83
    s_nop 0
    v_pk_add_f32 v[84:85], v[80:81], v[82:83]
    v_add_f32 v84, v84, v85
    v_mov_b32 v85, v84
    s_nop 1
    v_permlane32_swap_b32 v84, v85
    v_add_f32 v84, v84, v85
    v_mov_b32 v85, v84
    s_nop 1
    v_permlane16_swap_b32 v84, v85
    v_add_f32 v84, v84, v85
L_pd:
    s_waitcnt vmcnt(0)
    """)
    a.chk([OD, OD+4, OD+8, OD+12], 76, 79)
    a(f"""
    v_cmp_ne_u32 vcc, 0, v79
    s_cbranch_vccnz L_pd_retry
L_pd_ok:
    s_mov_b64 exec, -1
    """)
    a.stamp("O_ok")
    cold(f"""
L_po_retry:
    s_sub_u32 s47, s47, 1
    s_cbranch_scc1 L_po_giveup
    s_cmp_lg_u32 s54, 0
    s_cbranch_scc1 L_po_fb
    s_mov_b64 exec, vcc
    {"s_sleep %d" % opts["oslp"] if opts.get("oslp") else ""}
    """)
    for k in range(2): cold(f"global_load_dwordx4 {R4(LS+4*k)}, v21, {PB} offset:{16*k} sc1")
    cold(f"""
    s_waitcnt vmcnt(0)
    v_xor_b32 v76, s60, v{LS+1}
    v_xor_b32 v77, s60, v{LS+3}
    v_xor_b32 v78, s60, v{LS+5}
    v_or3_b32 v76, v76, v77, v78
    v_xor_b32 v77, s60, v{LS+7}
    v_or_b32 v76, v76, v77
    v_cmp_ne_u32 vcc, 0, v76
    s_andn2_b64 exec, exec, vcc
    s_cbranch_execz L_po_retry
    """)
    odata(cold)
    cold(f"""
    s_cbranch_vccnz L_po_retry
L_po_giveup:
    s_mov_b64 exec, -1
    s_branch L_po_ok
L_po_fb:
    """)
    cold.toggle()
    cold(f"""
    s_branch L_po
L_pd_retry:
    s_sub_u32 s47, s47, 1
    s_cbranch_scc1 L_pd_ok
    s_mov_b64 exec, vcc
    """)
    odata(cold)
    cold("s_branch L_pd")
    a(f"v_add_f32_dpp v84, v84, v84 row_ror:8 {DPP}")
    a.pkmul(OD, OD, 80); a.pkmul(OD+2, OD+2, 80)
    a("v_rcp_f32 v84, v84")
    for k in range(1, 4):
        a.pkfma(OD, OD+4*k, 80+k); a.pkfma(OD+2, OD+4*k+2, 80+k)
    a(f"""
    s_nop 1
    v_permlane32_swap_b32 v{OD}, v{OD+2}
    v_permlane32_swap_b32 v{OD+1}, v{OD+3}
    v_pk_add_f32 {R2(OD)}, {R2(OD)}, {R2(OD+2)}
    s_nop 1
    v_permlane16_swap_b32 v{OD}, v{OD+1}
    v_add_f32 v{OD}, v{OD}, v{OD+1}
    s_nop 1
    v_add_f32_dpp v{OD}, v{OD}, v{OD} row_ror:8 {DPP}
    v_mul_f32 v{OD}, v{OD}, v84
    v_cvt_pk_bf16_f32 v{OD}, v{OD}, v{OD}
    ds_write_b16 v22, v{OD} offset:{L_OV}
    """)
    a.setflag(FO)
    if opts.get("wb"):
        a(f"s_lshl_b32 s31, s29, 2\ns_add_u32 s31, s31, s3\ns_cmp_lt_u32 s31, {128 - opts['wb']}\ns_cbranch_scc1 L_nwb\nbuffer_wbl2 sc1\nL_nwb:")
    a.stamp("o_wr")
    a.cnt("#po")
    a("s_branch L_fin" if opts.get("stamps") else "s_endpgm")

    TR, QD = 64, 88
    p(f"""
    s_and_b32 s31, s29, 3
    s_lshl_b32 s31, s31, 2
    s_add_u32 s31, s31, s3
    s_lshl_b32 s31, s31, 18
    s_lshr_b32 s32, s30, 2
    s_lshl_b32 s32, s32, 7
    s_add_u32 s31, s31, s32
    v_and_b32 v43, 16, v1
    v_lshlrev_b32 v43, 1, v43
    v_xor_b32 v43, v43, v13
    v_lshl_add_u32 v3, v12, 13, v43
    v_add_u32 v3, s31, v3
    v_xor_b32 v4, 0x10040, v3
    v_add_u32 v7, 0x20000, v3
    v_xor_b32 v6, 0x30040, v3
    {"s_lshl_b32 s31, s30, 2" + chr(10) + "s_add_u32 s31, s31, s3" + chr(10) + "s_lshl_b32 s31, s31, 12" + chr(10) + "v_add_u32 v3, s31, v2" + chr(10) + "v_add_u32 v4, 1024, v3" + chr(10) + "v_add_u32 v7, 2048, v3" + chr(10) + "v_add_u32 v6, 3072, v3" if "q" in str(opts.get("wlin", "")) else ""}
    s_lshl_b32 m0, s3, 12
    s_setprio 2
    s_waitcnt lgkmcnt(0)
    """)
    p.stamp("karg")
    p.vmem("x", f"global_load_dwordx4 v[16:19], v2, {X}{nts('x')}")
    for i in range(4):
        p.vmem(f"wq{i}", f"global_load_lds_dwordx4 v{(3,4,7,6)[i]}, {WQ}{nts('q')}")
        if i < 3: p("s_add_u32 m0, m0, 1024\ns_nop 0")
    p(f"s_load_dword s36, {WS}, 0")
    p("s_barrier")
    p("; HEAD_END")
    consts(p)
    p(f"""
    s_and_b32 s33, s29, 7
    s_lshl_b32 s31, s33, {3 if vote else 2}
    s_add_u32 s31, s31, s3
    s_lshl_b32 s31, s31, 11
    s_lshl_b32 s32, s52, 6
    s_add_u32 s31, s31, s32
    s_add_u32 s31, s31, {YB}
    v_lshl_add_u32 v39, v10, 4, s31         ; Y voff
    {"v_and_b32 v44, 1, v1" if vote else ""}
    {"v_lshl_add_u32 v39, v44, 13, v39" if vote else ""}
    s_lshl_b32 s31, s30, 11
    s_add_u32 s31, s31, {OB}
    s_mov_b32 s32, {0 if opts.get("pre", 1) == 2 else 15}
    s_lshl_b32 s48, s30, 9
    s_add_u32 s48, s48, {GB}
    s_cmp_eq_u32 s3, 1
    s_cselect_b32 s31, s48, s31
    s_cselect_b32 s32, 3, s32
    s_lshl_b32 s48, s30, 8
    s_add_u32 s48, s48, {QB}
    s_cmp_eq_u32 s3, 2
    s_cselect_b32 s31, s48, s31
    s_cselect_b32 s32, 1, s32
    s_lshl_b32 s48, s30, 5
    s_add_u32 s48, s48, {MLB}
    s_cmp_eq_u32 s3, 3
    s_cselect_b32 s31, s48, s31
    s_cselect_b32 s32, 0, s32
    v_and_b32 v44, s32, v1
    v_lshl_add_u32 v44, v44, 7, s31
    v_cmp_gt_u32 vcc, 16, v1
    v_cmp_gt_u32 s[50:51], 32, v1
    s_nop 0
    v_cndmask_b32 v44, v38, v44, vcc
    v_cndmask_b32 v44, v39, v44, s[50:51]
    """)
    if opts.get("pre", 1): p.vmem("pre", f"global_load_dword v{DUM}, v44, {WS}{nts('p')}")
    p(f"""
    s_and_b32 s53, s29, 24
    s_add_u32 s53, s53, s28
    s_lshl_b32 s32, s33, 2
    s_add_u32 s32, s32, s3
    s_mul_i32 s32, s32, {16*3584}
    s_lshl_b32 s31, s53, 7
    s_add_u32 s32, s32, s31
    v_mul_u32_u24 v11, 3584, v12
    v_add3_u32 v11, v11, v43, s32
    v_add_u32 v14, {8*3584}, v11
    v_xor_b32 v14, 64, v14
    v_lshl_add_u32 v37, v12, 10, v43
    s_lshl_b32 s31, s52, 2
    s_add_u32 s31, s31, s3
    s_lshl_b32 s31, s31, 15
    s_lshl_b32 s32, s33, 7
    s_add_u32 s31, s31, s32
    v_add_u32 v36, s31, v37
    s_lshl_b32 s31, s53, 2
    s_add_u32 s31, s31, s3
    s_lshl_b32 s31, s31, 14
    s_add_u32 s31, s31, s32
    v_add_u32 v37, s31, v37
    v_bfe_u32 v3, v1, 2, 2
    v_lshl_add_u32 v3, v10, 3, v3
    v_lshlrev_b32 v3, 7, v3
    v_and_b32 v4, 3, v1
    v_lshl_add_u32 v3, v4, 3, v3
    s_lshl_b32 s31, s3, 5
    v_add_u32 v3, s31, v3
    v_bfe_u32 v4, v1, 3, 2
    v_lshlrev_b32 v4, 5, v4
    v_xor_b32 v3, v3, v4
    s_and_b32 s31, s29, 3
    s_lshl_b32 s31, s31, 8
    v_lshl_add_u32 v4, v10, 4, s31
    s_lshl_b32 s31, s33, 7
    v_lshl_add_u32 v6, v10, 4, s31
    s_lshl_b32 s49, s3, 11
    """)
    wl = str(opts.get("wlin", ""))
    if "g" in wl: p("s_lshl_b32 s31, s30, 2\ns_add_u32 s31, s31, s3\ns_mul_i32 s31, s31, 1792\nv_add_u32 v11, s31, v2\nv_add_u32 v14, 768, v11")
    if "o" in wl: p("s_lshl_b32 s31, s30, 14\ns_lshl_b32 s32, s3, 10\ns_add_u32 s31, s31, s32\ns_and_b32 s32, s30, 1\ns_lshl_b32 s32, s32, 12\ns_and_b32 s31, s31, 0xffff8fff\ns_add_u32 s31, s31, s32\nv_add_u32 v36, s31, v2")
    early = opts.get("early", 0)
    def gu_issue():
        for i in range(2):
            for m, (nm, P) in enumerate((("g", G), ("u", U))):
                p(f"s_add_u32 m0, s49, {L_G + 1024*i + 8192*m}\ns_nop 0")
                p.vmem(f"{nm}{i}", f"global_load_lds_dwordx4 v{11 if i==0 else 14}, {P}{NT}")
    def wd_issue():
        for n in range(2):
            p(f"s_add_u32 m0, s49, {L_WO + 16384 + 1024*n}\ns_nop 0")
            p.vmem(f"w{4+n}", f"global_load_lds_dwordx4 v37, {D}{NT}")
            if n == 0: p("v_xor_b32 v37, 0x2040, v37")
    if early >= 1:
        p("s_cmp_ge_u32 s53, 28\ns_cselect_b64 exec, 1, -1\ns_cbranch_scc0 L_ef\nv_mov_b32 v11, 0\nv_mov_b32 v14, 0\nv_mov_b32 v37, 0\nL_ef:")
        gu_issue()
        if early >= 2: wd_issue()
        p("s_mov_b64 exec, -1")
    p.wait("x")
    p.stamp("x")
    xs = list(range(20, 28))
    for i in range(4):
        p(f"v_lshlrev_b32 v{xs[2*i]}, 16, v{16+i}\nv_and_b32 v{xs[2*i+1]}, 0xffff0000, v{16+i}")
    p("v_readfirstlane_b32 s50, v20\ns_nop 1")
    for i in range(4):
        p(f"v_pk_add_f32 {R2(48+2*i)}, {R2(20+2*i)}, s[50:51] op_sel_hi:[1,0] neg_lo:[0,1] neg_hi:[0,1]")
    p(f"""
    v_pk_mul_f32 v[30:31], v[48:49], v[48:49]
    v_pk_add_f32 v[28:29], v[48:49], v[50:51]
    v_pk_fma_f32 v[30:31], v[50:51], v[50:51], v[30:31]
    v_pk_add_f32 v[28:29], v[28:29], v[52:53]
    v_pk_fma_f32 v[30:31], v[52:53], v[52:53], v[30:31]
    v_pk_add_f32 v[28:29], v[28:29], v[54:55]
    v_pk_fma_f32 v[30:31], v[54:55], v[54:55], v[30:31]
    v_add_f32 v28, v28, v29
    v_add_f32 v29, v30, v31
    s_nop 0
    """)
    for r in (1, 2, 4, 8):
        p(f"v_add_f32_dpp v28, v28, v28 row_ror:{r} {DPP}\nv_add_f32_dpp v29, v29, v29 row_ror:{r} {DPP}\ns_nop 0")
    p(f"""
    s_nop 0
    v_permlane32_swap_b32 v28, v29
    v_add_f32 v28, v28, v29
    v_mov_b32 v29, v28
    s_nop 1
    v_permlane16_swap_b32 v28, v29
    v_add_f32 v28, v28, v29
    v_mul_f32 v28, {hx(f32(1/512))}, v28
    s_nop 0
    v_readlane_b32 s32, v28, 0
    v_readlane_b32 s48, v28, 32
    s_nop 0
    v_mov_b32 v28, s32
    v_fma_f32 v29, -v28, v28, s48
    v_add_f32 v28, s50, v28
    v_max_f32 v29, 0, v29
    v_cvt_pk_bf16_f32 v28, 0, v28
    v_cvt_pk_bf16_f32 v29, 0, v29
    v_add_f32 v29, {hx(f32(1e-5))}, v29
    v_cvt_pk_bf16_f32 v29, 0, v29
    v_sqrt_f32 v31, v29
    """)
    for i in range(4):
        p(f"v_pk_add_f32 {R2(20+2*i)}, {R2(20+2*i)}, v[28:29] op_sel_hi:[1,0] neg_lo:[0,1] neg_hi:[0,1]")
    p("v_cvt_pk_bf16_f32 v29, 0, v31\nv_rcp_f32 v30, v29")
    for i in range(8): p(f"v_cvt_pk_bf16_f32 v{xs[i]}, 0, v{xs[i]}")
    for i in range(4): p.pkmul(20+2*i, 20+2*i, 30)
    for i in range(4):
        p(f"v_cvt_pk_bf16_f32 v{16+i}, v{xs[2*i]}, v{xs[2*i+1]}")
    p(f"ds_write_b128 v2, v[16:19] offset:{L_XN}")
    for i in range(4):
        p(f"ds_read_b128 {R4(20+4*i)}, v4 offset:{L_XN+64*i}")
    p(f"ds_read_b128 v[48:51], v6 offset:{L_XN}\nds_read_b128 v[52:55], v6 offset:{L_XN+64}")
    p.stamp("ln")
    p.wait("wq3")
    p.setflag(F1)
    p("s_waitcnt lgkmcnt(0)")
    tags(p)
    def trr(n, base):
        for s in range(n):
            p(f"ds_read_b64_tr_b16 v[{TR+4*s}:{TR+4*s+1}], v3 offset:{base+4096*s}")
            p(f"ds_read_b64_tr_b16 v[{TR+4*s+2}:{TR+4*s+3}], v3 offset:{base+4096*s+512}")
    p.waitflag(F1, lambda: trr(4, L_WQ), 8)
    p.stamp("S1")
    for s in range(4):
        p.lg(6-2*s)
        p(f"{MF} {R4(QD)}, {R4(TR+4*s)}, {R4(20+4*s)}, {'0' if s==0 else R4(QD)}")
    p.setexec(0x00010001)
    p.vmem("hello", f"global_store_dword v38, v{TL}, {WS}{sc('q')}")
    p("s_nop 4")
    for i in range(4): p(f"v_add_u32 v{QD+i}, 0x80, v{QD+i}")
    p.tag(QD)
    p.vmem("pubq", f"global_store_dwordx4 v5, {R4(QD)}, {WS}{sc('q')}")
    p(f"ds_write_b128 v41, {R4(QD)} offset:{L_QT}")
    p("s_mov_b64 exec, -1")
    if opts.get("gg") == "p":
        p("s_cmp_ge_u32 s53, 28\ns_cbranch_scc1 L_sg")
        gu_issue()
        p("L_sg:")
        early = 1
    p.setflag(FP)
    if opts.get("so", 0) & 4:
        if opts["so"] & 8: p.waitflag(FQ)
        p("s_branch L_fin")
    p.stamp("pubq")
    p(f"""
    s_lshl_b32 s31, s30, 2
    s_add_u32 s31, s31, s3
    s_lshl_b32 s31, s31, 7
    s_add_u32 s31, s31, {GB}
    v_and_b32 v18, 1, v1
    v_lshlrev_b32 v18, 6, v18
    v_lshl_add_u32 v18, v10, 4, v18
    v_add_u32 v18, s31, v18
    s_and_b32 s31, s31, 0xfffff1ff
    v_lshl_add_u32 v5, v12, 9, v13
    v_add_u32 v5, s31, v5
    s_mov_b32 s50, 0x00020002
    s_mov_b32 s51, 0x00020002
    v_and_b32 v15, 3, v1
    v_lshlrev_b32 v15, 3, v15
    v_lshl_add_u32 v15, v10, 1, v15
    s_lshl_b32 s31, s2, 5
    v_add_u32 v17, s31, v15
    s_lshl_b32 s31, s3, 5
    v_add_u32 v15, s31, v15
    v_lshlrev_b32 v4, 4, v10
    s_and_b32 s31, s2, {28 if vote else 0}
    s_add_u32 s31, s31, s2
    s_lshl_b32 s31, s31, 11
    s_add_u32 s31, s31, {YB}
    v_add_u32 v13, s31, v2
    s_mov_b32 s47, {SPIN}
    s_lshl_b32 s46, s3, 12
    """)
    hold = opts.get("hold", 4)
    def wo_issue(g):
        for n in range(4):
            if n == 4 - hold:
                if g is p and early < 1 and opts.get("gfirst", 0): gcomp()
                g.waitflag(FS)
                if opts.get("fw") == "pre":
                    g.setflag(FX)
                    if g is p: p.vmem("pg", f"global_load_dwordx4 v[56:59], v5, {PB} sc1")
                    g.waitflag(FY)
            g(f"s_add_u32 m0, s46, {L_WO + 1024*n}\ns_nop 0")
            g.vmem(f"w{n}", f"global_load_lds_dwordx4 v36, {WO}{NT}")
            if n < 3: g(f"v_xor_b32 v36, {hx((0x2040, 0x6040, 0x2040)[n])}, v36")
    LG = {"w": FW, "q": FQ, "v": FV}[opts.get("lg", "w")]
    sp1 = opts.get("sp1", 0); sp2 = opts.get("sp2", 0); spd = opts.get("spd", 0)
    def spf(g, lo, hi, base="s[14:15]"):
        for r in range(lo, hi): g(f"s_load_dword s63, {base}, {1024*r}")
    spf(p, 0, sp1)
    p("s_cmp_ge_u32 s53, 28\ns_cbranch_scc1 L_noffn")
    def gcomp():
        p.wait("u1")
        p.setflag(FG)
        p.stamp("gu")
        p.waitflag(FG, lambda: trr(4, L_G), 8)
        for m in range(2):
            for s in range(2):
                p.lg(6-2*(2*m+s))
                p(f"{MF} {R4(QD+4*m)}, {R4(TR+8*m+4*s)}, {R4(48+4*s)}, {'0' if s==0 else R4(QD+4*m)}")
        p.setexec(0x00030003)
        p("s_nop 5")
        for i in range(4): p(f"v_cndmask_b32 v{QD+i}, v{QD+i}, v{QD+4+i}, s[50:51]")
        p.tag(QD)
        p.vmem("pubg", f"global_store_dwordx4 v18, {R4(QD)}, {WS}{sc('g')}")
        p("s_mov_b64 exec, -1")
        p.stamp("pubg")
    if early >= 1: gcomp()
    p("s_setprio 0")
    if early < 1 and opts.get("gg", "w") == "v":
        p.waitflag(FV)
        if opts.get("ggprio"): p("s_setprio 2")
        gu_issue()
        p("s_setprio 0")
    p.waitflag(LG)
    if early >= 1 and opts.get("pgearly", 0): p.vmem("pg", f"global_load_dwordx4 v[56:59], v5, {PB} sc1")
    if early < 1 and opts.get("gg", "w") == "w": gu_issue()
    if early < 2 and not spd: wd_issue()
    spf(p, sp1, min(32, sp1+sp2))
    if spd: spf(p, 0, 16, "s[34:35]")
    late_wo = lambda: wo_issue(p)
    if not (early >= 1 and opts.get("pgearly", 0)): wo_issue(p)
    if spd: wd_issue()
    if opts.get("so"): p("s_waitcnt vmcnt(0)\ns_branch L_fin")
    p.stamp("iss")
    if early < 1 and not (opts.get("gfirst", 0) and hold): gcomp()
    if (early >= 1 and opts.get("pgearly", 0)) or opts.get("fw") == "pre":
        p.wait("pg"); p("s_branch L_pg1")
    else:
        if opts.get("fw", "none") != "none": p.wait(opts.get("fw", "none"))
        if opts.get("xdelay"): p(f"s_sleep {opts['xdelay']}")
        p.setflag(FX)
        p.stamp("fw")
    hfirst = (early >= 1 and opts.get("pgearly", 0)) or opts.get("fw") == "pre"
    if opts.get("fin", 1) and not hfirst:
        p("s_waitcnt vmcnt(0)")
        p(f"global_load_dwordx4 v[56:59], v5, {PB} sc1")
        p.setflag(FD)
        p.waitflag(FD, lambda: trr(6, L_WO), 12)
        p("s_branch L_pg0")
    p(f"""
L_pg:
    global_load_dwordx4 v[56:59], v5, {PB} sc1
L_pg0:
    s_waitcnt vmcnt(0)
L_pg1:
    """)
    p.chk([56], 60, 63)
    p(f"""
    v_cmp_ne_u32 vcc, 0, v63
    s_cbranch_vccnz L_pg_retry
L_pg_ok:
    s_mov_b64 exec, -1
    """)
    cold(f"""
L_pg_retry:
    s_sub_u32 s47, s47, 1
    s_cbranch_scc1 L_pg_ok
    s_cmp_lg_u32 s47, {SPIN-TFALL}
    s_cbranch_scc1 L_pg_nf
    s_mov_b32 s54, 1
    """)
    cold.setexec(0x00030003)
    cold.tag(QD, TG)
    cold(f"global_store_dwordx4 v18, {R4(QD)}, {WG} sc1\nL_pg_nf:\ns_mov_b64 exec, vcc")
    cold.toggle()
    cold("s_branch L_pg")
    c1 = -2*0.7978845608028654*LOG2E
    p(f"""
    v_permlane32_swap_b32 v56, v58
    v_permlane32_swap_b32 v57, v59
    v_pk_add_f32 v[56:57], v[56:57], v[58:59]
    s_nop 1
    v_permlane16_swap_b32 v56, v57
    v_add_f32 v56, v56, v57
    s_nop 1
    v_add_f32_dpp v56, v56, v56 row_ror:8 {DPP}
    v_cvt_pk_bf16_f32 v56, 0, v56
    v_mul_f32 v57, v56, v56
    v_mul_f32 v57, {hx(f32(0.044715))}, v57
    v_mov_b32_dpp v58, v56 row_ror:4 {DPP}
    v_fma_f32 v57, v57, v56, v56
    v_mul_f32 v57, {hx(f32(c1))}, v57
    v_exp_f32 v57, v57
    s_nop 0
    v_add_f32 v57, 1.0, v57
    v_rcp_f32 v57, v57
    s_nop 0
    v_mul_f32 v56, v56, v57
    v_cvt_pk_bf16_f32 v56, 0, v56
    v_mul_f32 v56, v56, v58
    v_cvt_pk_bf16_f32 v56, v56, v56
    """)
    p.setexec(0x000f000f)
    p(f"ds_write_b16 v15, v56 offset:{L_OV+256}\ns_mov_b64 exec, -1")
    p.stamp("h")
    if early >= 1 and opts.get("pgearly", 0):
        late_wo()
        if opts.get("fw", "none") != "none": p.wait(opts["fw"])
        p.setflag(FX); p.stamp("fw")
    if opts.get("fin", 1) == 0 or hfirst:
        p("s_waitcnt vmcnt(0)")
        p.setflag(FD)
        p.stamp("allin")
        def dreads():
            p(f"ds_read_b128 v[48:51], v4 offset:{L_OV+256}\nds_read_b128 v[52:55], v4 offset:{L_OV+320}")
            trr(6, L_WO)
        p.waitflag(FD, dreads, 14)
        p(f"""
        s_waitcnt lgkmcnt(0)
        {MF} {R4(QD)}, {R4(TR+16)}, v[48:51], 0
        {MF} {R4(QD)}, {R4(TR+20)}, v[52:55], {R4(QD)}
L_final:
        """)
    else:
        p.setflag(FY)
        p.stamp("allin")
        p.waitflag(FY, lambda: p(f"ds_read_b128 v[48:51], v4 offset:{L_OV+256}\nds_read_b128 v[52:55], v4 offset:{L_OV+320}"), 2)
        p(f"""
        s_waitcnt lgkmcnt(0)
        {MF} {R4(QD)}, {R4(TR+16)}, v[48:51], 0
        {MF} {R4(QD)}, {R4(TR+20)}, v[52:55], {R4(QD)}
L_final:
        """)
    nf = Gen(opts)
    nf("L_noffn:\ns_setprio 0")
    nf.waitflag(LG)
    spf(nf, sp1, min(32, sp1+sp2))
    wo_issue(nf)
    nf("s_waitcnt vmcnt(0)"); nf.setflag(FX)
    if opts.get("so"): nf("s_waitcnt vmcnt(0)\ns_branch L_fin")
    for i in range(4): nf(f"v_mov_b32 v{QD+i}, 0")
    nf("s_waitcnt vmcnt(0)")
    nf.setflag(FD)
    def nreads():
        for s in range(4):
            nf(f"ds_read_b64_tr_b16 v[{TR+4*s}:{TR+4*s+1}], v3 offset:{L_WO+4096*s}")
            nf(f"ds_read_b64_tr_b16 v[{TR+4*s+2}:{TR+4*s+3}], v3 offset:{L_WO+4096*s+512}")
    nf.waitflag(FD, nreads, 8)
    nf("s_branch L_final")
    p("s_lshl_b32 s31, s3, 5\ns_add_u32 s31, s31, s2\ns_cmp_ge_u32 s31, 32\ns_cbranch_scc1 L_nr")
    if opts.get("xe", 1): p(f"global_load_ushort v61, v17, {X}")
    if vote: p(f"s_lshl_b32 s31, s28, 9\ns_add_u32 s31, s31, {VB}\nv_lshl_add_u32 v19, v1, 3, s31\nglobal_load_dwordx2 v[62:63], v19, {WS} sc1")
    p("L_nr:")
    def oreads():
        for s in range(4): p(f"ds_read_b128 {R4(20+4*s)}, v4 offset:{L_OV+64*s}")
    p.waitflag(FO, oreads, 4)
    for s in range(4):
        p.lg(3-s)
        p(f"{MF} {R4(QD)}, {R4(TR+4*s)}, {R4(20+4*s)}, {R4(QD)}")
    p.setexec(0x00030003 if vote else 0x00010001)
    p("s_nop 5")
    p.tag(QD, TG)
    p(f"global_store_dwordx4 v39, {R4(QD)}, {WS} sc1")
    p("s_mov_b64 exec, -1")
    p.stamp("pubY")
    VOTE = "" if not vote else f'''s_xor_b32 s32, s55, 1
    s_waitcnt vmcnt(1)
    v_cmp_eq_u32 vcc, s32, v62
    v_cmp_eq_u32 s[50:51], s32, v63
    s_bcnt1_i32_b64 s31, vcc
    s_bcnt1_i32_b64 s32, s[50:51]
    s_add_u32 s31, s31, s32
    {"v_mov_b32 v62, s31" + chr(10) + "s_lshl_b32 s32, s2, 2" + chr(10) + "v_mov_b32 v63, s32" + chr(10) + "global_store_dword v63, v62, s[24:25]" if opts.get("vdbg") else ""}
    s_cmp_gt_u32 s31, 64
    s_cselect_b32 s31, 8192, 0
    v_add_u32 v13, s31, v13'''
    p(f"""
    s_cmp_ge_u32 s2, 32
    s_cbranch_scc1 L_fin
    s_cmp_lg_u32 s3, 0
    s_cbranch_scc1 L_fin
    {"" if opts.get("xe", 1) else "global_load_ushort v61, v17, " + X}
    s_mov_b32 s47, {SPIN}
    s_bfe_u32 s98, s36, 0x80000
    s_bfe_u32 s99, s36, 0x80008
    s_bfe_u32 s100, s36, 0x80010
    s_bfe_u32 s101, s36, 0x80018
    {VOTE}
L_py:
    global_load_dwordx4 v[48:51], v13, {WS} sc1
    global_load_dwordx4 v[52:55], v13, {WS} offset:1024 sc1
    s_waitcnt vmcnt(0)
    """)
    p.chk([48, 52], 56, 59, "s36")
    p(f"""
    v_cmp_ne_u32 vcc, 0, v59
    s_cbranch_vccz L_py_ok
    s_mov_b64 exec, vcc
    s_sub_u32 s47, s47, 1
    s_cbranch_scc0 L_py
L_py_ok:
    s_mov_b64 exec, -1
    v_pk_add_f32 v[48:49], v[48:49], v[52:53]
    v_pk_add_f32 v[50:51], v[50:51], v[54:55]
    v_lshlrev_b32 v61, 16, v61
    s_nop 0
    v_permlane32_swap_b32 v48, v50
    v_permlane32_swap_b32 v49, v51
    v_pk_add_f32 v[48:49], v[48:49], v[50:51]
    s_nop 1
    v_permlane16_swap_b32 v48, v49
    v_add_f32 v48, v48, v49
    s_nop 1
    v_add_f32_dpp v48, v48, v48 row_ror:4 {DPP}
    s_nop 1
    v_add_f32_dpp v48, v48, v48 row_ror:8 {DPP}
    """)
    p.setexec(0x000f000f)
    p(f"""
    v_add_f32 v48, v48, v61
    v_cvt_pk_bf16_f32 v48, v48, v48
    global_store_short v17, v48, {OUT} {opts.get("ost", "").replace("_", " ")}
    s_cmp_lg_u32 s2, 0
    s_cbranch_scc1 L_fin
    s_mov_b64 exec, 1
    global_store_dword v40, v{TG}, {WS} {opts.get("ost", "").replace("_", " ")}
L_fin:
    """)
    E = NSTAMP - 1
    if "amp2" in opts:
        p(f"""
        s_memrealtime s[{64+2*E}:{65+2*E}]
        s_cmp_lg_u32 s62, 0
        s_cbranch_scc1 L_end
        s_mov_b64 exec, 1
        s_lshl_b32 s50, s2, 2
        s_add_u32 s50, s50, 0x300000
        v_mov_b32 v3, s50
        v_mov_b32 v4, s64
        global_store_dword v3, v4, {WS} sc1
        s_cmp_lg_u32 s2, 0
        s_cbranch_scc1 L_end
        s_mov_b64 exec, -1
        s_sleep 100
        v_add_u32 v3, 0x300000, v2
        global_load_dwordx4 v[4:7], v3, {WS} sc1
        s_waitcnt vmcnt(0) lgkmcnt(0)
        v_sub_u32 v4, s{64+2*E}, v4
        v_sub_u32 v5, s{64+2*E}, v5
        v_sub_u32 v6, s{64+2*E}, v6
        v_sub_u32 v7, s{64+2*E}, v7
        v_min3_u32 v8, v4, v5, v6
        v_min_u32 v8, v8, v7
        v_max3_u32 v9, v4, v5, v6
        v_max_u32 v9, v9, v7
        v_add3_u32 v4, v4, v5, v6
        v_add_u32 v4, v4, v7
        s_mov_b32 s50, 0
        s_mov_b32 s51, -1
        s_mov_b32 s53, 0
        s_mov_b32 s52, 0
L_a2:
        v_readlane_b32 s31, v4, s52
        v_readlane_b32 s32, v8, s52
        v_readlane_b32 s33, v9, s52
        s_add_u32 s50, s50, s31
        s_min_u32 s51, s51, s32
        s_max_u32 s53, s53, s33
        s_add_u32 s52, s52, 1
        s_cmp_lt_u32 s52, 64
        s_cbranch_scc1 L_a2
        s_mul_i32 s50, s50, {(5,10,0,0)[opts["amp2"]]}
        s_lshr_b32 s50, s50, 8
        s_mul_i32 s51, s51, {(5,0,10,0)[opts["amp2"]]}
        s_mul_i32 s53, s53, {(0,0,0,10)[opts["amp2"]]}
        s_add_u32 s63, s50, s51
        s_add_u32 s63, s63, s53
        s_min_u32 s63, s63, 100000
        s_add_u32 s63, s63, s{64+2*E}
L_amp:
        s_memrealtime s[50:51]
        s_waitcnt lgkmcnt(0)
        s_sub_u32 s61, s50, s63
        s_cmp_lt_i32 s61, 0
        s_cbranch_scc1 L_amp
        """)
    elif "amp" in opts:
        i = opts["amp"]
        p(f"""
        s_memrealtime s[{64+2*E}:{65+2*E}]
        s_waitcnt lgkmcnt(0)
        s_cmp_lg_u32 s2, {opts.get("ampwg", 0)}
        s_cbranch_scc1 L_end
        s_cmp_lg_u32 s62, {opts.get("ampw", 0)}
        s_cbranch_scc1 L_end
        s_sub_u32 s63, s{64+2*i}, s64
        s_mul_i32 s63, s63, 10
        s_min_u32 s63, s63, 100000
        s_add_u32 s63, s63, s{64+2*E}
L_amp:
        s_memrealtime s[50:51]
        s_waitcnt lgkmcnt(0)
        s_sub_u32 s61, s50, s63
        s_cmp_lt_i32 s61, 0
        s_cbranch_scc1 L_amp
        """)
    elif opts.get("stamps"):
        p(f"""
        s_memrealtime s[{64+2*E}:{65+2*E}]
        s_sleep 127
        s_waitcnt lgkmcnt(0)
        s_lshl_b32 s50, s2, 3
        s_add_u32 s50, s50, s62
        s_lshl_b32 s50, s50, 8
        s_add_u32 s50, s50, {STAMP_OFF}
        s_mov_b64 exec, 1
        v_mov_b32 v3, s50
        """)
        for i in ((0, E) if opts.get("light") else range(NSTAMP)):
            p(f"v_mov_b32 v4, s{64+2*i}\nv_mov_b32 v5, s{65+2*i}\nglobal_store_dwordx2 v3, v[4:5], {WS} offset:{8*i}")
    p("s_endpgm")
    al = a.L
    ia = next(i for i, l in enumerate(al) if "HEAD_END" in l)
    ip = next(i for i, l in enumerate(p.L) if "HEAD_END" in l)
    body = (c.L + p.L[:ip] + ["    s_branch L_P2", "L_A1:"] + al[:ia] + ["    s_branch L_A2", "L_P2:"] + p.L[ip+1:]
            + ["L_A2:"] + al[ia+1:] + nf.L + cold.L + ["L_end:", "    s_endpgm"])
    opts["names"] = [f"{p.names[i] if i < len(p.names) else '-'}|{a.names[i] if i < len(a.names) else '-'}" for i in range(E)] + ["end"]
    hdr = open("cdna_kernels/" + NAME + ".s.ref").read().split("; Override")[0]
    return hdr + f"""; @launch grid=(256,1,1) block=(512,1,1) lds={opts.get("lds", LDS_BYTES)}
""" + DOC + f""".amdgcn_target "amdgcn-amd-amdhsa--gfx950"
.text
.globl {NAME}_kernel
.p2align 8
.type {NAME}_kernel,@function
{NAME}_kernel:
""" + "\n".join(body) + f"""
.section .rodata,"a"
.p2align 6
.amdhsa_kernel {NAME}_kernel
  .amdhsa_next_free_vgpr 224
  .amdhsa_next_free_sgpr 102
  .amdhsa_accum_offset 224
  .amdhsa_group_segment_fixed_size 0
  .amdhsa_kernarg_size 96
  .amdhsa_user_sgpr_count 2
  .amdhsa_user_sgpr_kernarg_segment_ptr 1
  .amdhsa_system_sgpr_workgroup_id_x 1
  .amdhsa_float_denorm_mode_32 3
.end_amdhsa_kernel
"""

if __name__ == "__main__":
    out = sys.argv[1]
    opts = {}
    for kv in sys.argv[2:]:
        k, v = kv.split("=")
        try: v = int(v)
        except ValueError: pass
        opts[k] = v
    open(out, "w").write(build(opts))
    if opts.get("stamps") and not opts.get("light"): print(",".join(opts["names"]))
```
